```python
import torch

def _softmax(x, axis=-1):
    return torch.softmax(x, dim=axis)
def _gelu(x):
    return torch.nn.functional.gelu(x, approximate="tanh")
def _silu(x):
    return torch.nn.functional.silu(x)
def _sigmoid(x):
    return torch.sigmoid(x)
def _layernorm(x, axis=-1, eps=1e-5):
    m = x.mean(dim=axis, keepdim=True)
    v = x.var(dim=axis, keepdim=True, unbiased=False)
    return (x - m) / torch.sqrt(v + eps)
def _scatter_add(tgt, idx, src, axis=0):
    return tgt.clone().index_add_(axis, idx, src)
def _segment_sum(src, seg, n):
    out = torch.zeros((n,) + src.shape[1:], dtype=src.dtype)
    return out.index_add_(0, seg, src)
def _pad(x, pw):
    flat = tuple(v for pair in reversed(pw) for v in pair)
    return torch.nn.functional.pad(x, flat)

kernel_name = 'standalone__moe_arch_mod__prompt'

def setup_inputs():

    _w = (lambda a: (lambda t: t.to(torch.bfloat16) if t.is_floating_point() else t)(torch.as_tensor(a)))
    B, S, D, F, C = 1, 2048, 576, 4608, 1
    return {
        "x": _w((lambda *s: torch.randn(*s, dtype=torch.bfloat16) * 0.1)(B, S, D)),
        "w_r": _w((lambda *s: torch.randn(*s, dtype=torch.bfloat16) * 0.1)(D)),
        "w_gate": _w((lambda *s: torch.randn(*s, dtype=torch.bfloat16) * 0.1)(D, F)),
        "w_up": _w((lambda *s: torch.randn(*s, dtype=torch.bfloat16) * 0.1)(D, F)),
        "w_down": _w((lambda *s: torch.randn(*s, dtype=torch.bfloat16) * 0.1)(F, D)),
    }

def reference(x, w_r, w_gate, w_up, w_down):
    B, S, D = x.shape
    C = 1
    r = x @ w_r
    idx = torch.argsort(-r, axis=-1)[:, :C]
    idx_e = (lambda x, n, axis: torch.repeat_interleave(x, n, dim=axis))(idx.reshape(B, C, 1), D, axis=2)
    x_sel = (lambda x, i, axis: torch.take_along_dim(x, i, dim=axis))(x, idx_e, axis=1)
    g = _silu(x_sel @ w_gate)
    u = x_sel @ w_up
    y = (g * u) @ w_down
    r_sel = _sigmoid((lambda x, i, axis: torch.take_along_dim(x, i, dim=axis))(r, idx, axis=1))
    y = y * r_sel.reshape(B, C, 1)
    b_off = (torch.arange(B) * S).reshape(B, 1)
    flat_idx = (idx + b_off).reshape(B * C)
    zero = (x * 0.0).reshape(B * S, D)
    upd = _scatter_add(zero, flat_idx, y.reshape(B * C, D), axis=0)
    return x + upd.reshape(B, S, D)
```

```python
import sys

STAMP = '--stamp' in sys.argv
NR = 64
NF = 144
NWG = NR + NF
NRED = 36
SPIN = 200000

L = []
def e(s): L.append('    ' + s)
def lab(s): L.append(s + ':')
def c(s): L.append('    ; ' + s)

X, WR, WG, WU, WD, OUT, DBG, WS = 4, 6, 8, 10, 12, 14, 16, 18
def sp(n): return f's[{n}:{n+1}]'
S_WAVE = 20
S_T0, S_T1, S_T2, S_T3 = 21, 22, 23, 24
S_SELLO, S_SELHI = 25, 26
S_CNT = 27
S_K64 = 28
S_TILE = 30
S_KEY = 31
S_EX = 32
S_ST = 40
nst = [0]

LDS_X = 0
LDS_P = 1280
LDS_WIN = 4096
LDS_BYTES = 4352

def stamp(i):
    if STAMP:
        e(f's_memrealtime s[{S_ST+2*i}:{S_ST+2*i+1}]')

def stamp_flush():
    if not STAMP: return
    e('s_waitcnt lgkmcnt(0)')
    e('s_mov_b64 exec, 1')
    e(f's_lshl_b32 s{S_T0}, s2, 4')
    e(f's_add_u32 s{S_T0}, s{S_T0}, s{S_WAVE}')
    e(f's_lshl_b32 s{S_T0}, s{S_T0}, 6')
    e(f's_add_u32 s{S_T0}, s{S_T0}, 0x8000000')
    e(f'v_mov_b32 v2, s{S_T0}')
    for i in range(4):
        for k in range(4):
            e(f'v_mov_b32 v{4+k}, s{S_ST+4*i+k}')
        e(f'global_store_dwordx4 v2, v[4:7], {sp(WS)} offset:{16*i}')
        e('s_nop 1')

def endpgm():
    stamp_flush()
    e('s_endpgm')

def wave_max_u32(v):
    for mod in ['row_shr:1', 'row_shr:2', 'row_shr:4', 'row_shr:8']:
        e('s_nop 1')
        e(f'v_max_u32_dpp v{v}, v{v}, v{v} {mod} row_mask:0xf bank_mask:0xf')
    e('s_nop 1')
    e(f'v_max_u32_dpp v{v}, v{v}, v{v} row_bcast:15 row_mask:0xa bank_mask:0xf')
    e('s_nop 1')
    e(f'v_max_u32_dpp v{v}, v{v}, v{v} row_bcast:31 row_mask:0xc bank_mask:0xf')

def poll_keys(name, voff, vk):
    e(f's_mov_b32 s{S_CNT}, {SPIN}')
    lab(f'L_{name}_poll')
    e(f'global_load_dword v{vk}, v{voff}, {sp(DBG)} sc1')
    e(f's_sub_u32 s{S_CNT}, s{S_CNT}, 1')
    e(f's_cbranch_scc1 L_{name}_done')
    e('s_waitcnt vmcnt(0)')
    e(f'v_cmp_eq_u32 vcc, 0, v{vk}')
    e(f's_cbranch_vccnz L_{name}_poll')
    lab(f'L_{name}_done')
    e('s_waitcnt vmcnt(0)')
    wave_max_u32(vk)
    e('s_nop 1')
    e(f'v_readlane_b32 s{S_KEY}, v{vk}, 63')

def transpose(raw, T):
    for p in range(4):
        e(f's_waitcnt vmcnt({6-2*p})')
        for j in range(8):
            sel = S_SELHI if (j & 1) else S_SELLO
            e(f'v_perm_b32 v{T+4*j+p}, v{raw+4*(2*p+1)+j//2}, v{raw+4*(2*p)+j//2}, s{sel}')

hdr = f'''; MoD (mixture-of-depths, capacity 1) router + SwiGLU FFN on the routed token.
; @launch grid=({NWG},1,1) block=(960,1,1) lds={LDS_BYTES}
.amdgcn_target "amdgcn-amd-amdhsa--gfx950"
.text
.globl standalone__moe_arch_mod__prompt_kernel
.p2align 8
.type standalone__moe_arch_mod__prompt_kernel,@function
standalone__moe_arch_mod__prompt_kernel:'''

e(f's_cmp_ge_u32 s2, {NWG}')
e('s_cbranch_scc1 L_exit')
e('s_load_dwordx16 s[4:19], s[0:1], 0')
if STAMP:
    for i in range(8):
        e(f's_mov_b64 s[{S_ST+2*i}:{S_ST+2*i+1}], 0')
stamp(0)
e(f'v_readfirstlane_b32 s{S_WAVE}, v0')
e('v_and_b32 v0, 63, v0')
e(f's_mov_b32 s{S_SELLO}, 0x05040100')
e(f's_mov_b32 s{S_SELHI}, 0x07060302')
e(f's_lshr_b32 s{S_WAVE}, s{S_WAVE}, 6')
e(f's_cmp_lt_u32 s2, {NR}')
e('s_cbranch_scc1 L_router')
e(f's_sub_u32 s{S_T0}, s2, {NR}')
e(f's_and_b32 s{S_T1}, s{S_T0}, 7')
e(f's_lshr_b32 s{S_T0}, s{S_T0}, 3')
e(f's_mul_i32 s{S_T1}, s{S_T1}, 18')
e(f's_add_u32 s{S_TILE}, s{S_T0}, s{S_T1}')
e(f's_cmp_ge_u32 s{S_WAVE}, 9')
e('s_cbranch_scc1 L_ffn_down')

RAW, T, A = 8, 40, 72
D = 8
c('gate/up wave: rows 64w + 8*(l>>3) + e ; cols tile*32 + (l&3)*8 ; matrix (l>>2)&1')
e('v_lshrrev_b32 v1, 3, v0')
e(f's_lshl_b32 s{S_T0}, s{S_WAVE}, 3')
e(f'v_add_u32 v1, s{S_T0}, v1')
e(f's_mov_b32 s{S_T1}, {8*9216}')
e(f'v_mul_lo_u32 v1, v1, s{S_T1}')
e('v_and_b32 v2, 3, v0')
e('v_lshlrev_b32 v2, 4, v2')
e(f's_lshl_b32 s{S_T2}, s{S_TILE}, 6')
e(f'v_add3_u32 v1, v1, v2, s{S_T2}')
e('v_and_b32 v3, 4, v0')
e('v_cmp_ne_u32 vcc, 0, v3')
e(f's_mov_b32 s{S_K64}, 9216')
e(f's_mov_b32 s{S_K64+1}, 0')
e('v_lshrrev_b32 v6, 4, v0')
e('v_lshlrev_b32 v6, 1, v6')
e('v_and_b32 v7, 1, v0')
e(f'v_add3_u32 v6, v6, v7, s{S_T0}')
e('v_lshlrev_b32 v6, 4, v6')
e('s_waitcnt lgkmcnt(0)')
e(f'v_mov_b32 v2, s{WG}')
e(f'v_mov_b32 v3, s{WG+1}')
e(f'v_mov_b32 v4, s{WU}')
e(f'v_mov_b32 v5, s{WU+1}')
e('v_cndmask_b32 v2, v2, v4, vcc')
e('v_cndmask_b32 v3, v3, v5, vcc')
e('v_add_co_u32 v2, vcc, v2, v1')
e('s_nop 1')
e('v_addc_co_u32 v3, vcc, 0, v3, vcc')
for r in range(8):
    e(f'global_load_dwordx4 v[{RAW+4*r}:{RAW+4*r+3}], v[2:3], off')
    if r < 7:
        e(f'v_lshl_add_u64 v[2:3], v[2:3], 0, {sp(S_K64)}')
stamp(1)
e('v_and_b32 v7, 7, v0')
e('v_lshlrev_b32 v7, 5, v7')
e(f's_lshl_b32 s{S_T1}, s{S_WAVE}, 8')
e(f'v_add_u32 v7, s{S_T1}, v7')
transpose(RAW, T)
stamp(2)
e('s_barrier')
stamp(3)
e(f'ds_read_b128 v[{A}:{A+3}], v6 offset:{LDS_X}')
e('s_waitcnt lgkmcnt(0)')
for j in range(8):
    e(f'v_mfma_f32_16x16x32_bf16 v[{D+4*j}:{D+4*j+3}], v[{A}:{A+3}], v[{T+4*j}:{T+4*j+3}], 0')
e('s_nop 1')
for j in range(8):
    if j == 7: e('s_nop 0')
    e(f'v_add_f32_dpp v{T+j}, v{D+4*j+1}, v{D+4*j} row_ror:8 row_mask:0xf bank_mask:0xf')
e('s_mov_b64 exec, 0xff')
e(f'ds_write_b128 v7, v[{T}:{T+3}] offset:{LDS_P}')
e(f'ds_write_b128 v7, v[{T+4}:{T+7}] offset:{LDS_P+16}')
e('s_waitcnt lgkmcnt(0)')
stamp(4)
e('s_barrier')
endpgm()

lab('L_ffn_down')
e(f's_cmp_eq_u32 s{S_WAVE}, 14')
e('s_cbranch_scc1 L_ffn_poll')
c('down wave v=w-9: octet o = 16v + (l&15) (clamped to 71), rows tile*32 + 8*(l>>4) + e')
e(f's_sub_u32 s{S_T0}, s{S_WAVE}, 9')
e(f's_lshl_b32 s{S_T0}, s{S_T0}, 4')
e('v_and_b32 v1, 15, v0')
e(f'v_add_u32 v1, s{S_T0}, v1')
e('v_lshrrev_b32 v2, 4, v0')
e('v_cmp_gt_u32 vcc, 72, v1')
e('v_min_u32 v1, 71, v1')
e(f's_mov_b32 s{S_T1}, {8*1152}')
e(f'v_mul_lo_u32 v3, v2, s{S_T1}')
e(f's_mul_i32 s{S_T2}, s{S_TILE}, {32*1152}')
e('v_lshlrev_b32 v4, 4, v1')
e(f'v_add3_u32 v3, v3, v4, s{S_T2}')
e('v_add_u32 v4, 4608, v3')
e(f's_and_b32 s{S_EX}, vcc_lo, 0xffff')
e(f's_mov_b32 s{S_EX+1}, 0')
e('s_waitcnt lgkmcnt(0)')
for r in range(8):
    e(f'global_load_dwordx4 v[{RAW+4*r}:{RAW+4*r+3}], v{3 + r//4}, {sp(WD)} offset:{1152*(r%4)}')
stamp(1)
e('v_lshrrev_b32 v5, 1, v1')
e(f's_movk_i32 s{S_T1}, 9216')
e(f'v_mul_lo_u32 v5, v5, s{S_T1}')
e('v_and_b32 v6, 1, v1')
e('v_lshlrev_b32 v6, 5, v6')
e(f's_lshl_b32 s{S_T2}, s{S_TILE}, 6')
e(f'v_add3_u32 v5, v5, v6, s{S_T2}')
e('v_and_b32 v6, 8, v0')
e('v_cmp_eq_u32 s[34:35], 0, v6')
e('v_lshlrev_b32 v6, 2, v6')
e('v_and_b32 v7, 7, v0')
e('v_lshlrev_b32 v2, 3, v2')
e('v_add3_u32 v6, v6, v7, v2')
e('v_lshlrev_b32 v6, 2, v6')
transpose(RAW, T)
stamp(2)
e('s_barrier')
e('s_barrier')
stamp(3)
P = 8
for k in range(4):
    e(f'ds_read2st64_b32 v[{P+2*k}:{P+2*k+1}], v6 offset0:{LDS_P//256+2*k} offset1:{LDS_P//256+2*k+1}')
e(f'ds_read_b32 v{P+8}, v6 offset:{LDS_P+8*256}')
e('s_waitcnt lgkmcnt(0)')
e(f'v_pk_add_f32 v[{P}:{P+1}], v[{P}:{P+1}], v[{P+2}:{P+3}]')
e(f'v_pk_add_f32 v[{P+4}:{P+5}], v[{P+4}:{P+5}], v[{P+6}:{P+7}]')
e(f'v_add_f32 v{P}, v{P}, v{P+8}')
e(f'v_pk_add_f32 v[{P}:{P+1}], v[{P}:{P+1}], v[{P+4}:{P+5}]')
e(f'v_add_f32 v{P}, v{P}, v{P+1}')
e(f'v_cvt_pk_bf16_f32 v{P}, v{P}, v{P}')
e(f'v_lshlrev_b32 v{P}, 16, v{P}')
e(f'v_mul_f32 v{P+1}, 0xbfb8aa3b, v{P}')
e(f'v_exp_f32 v{P+1}, v{P+1}')
e('s_nop 0')
e(f'v_add_f32 v{P+1}, 1.0, v{P+1}')
e(f'v_rcp_f32 v{P+1}, v{P+1}')
e('s_nop 0')
e(f'v_mul_f32 v{P+1}, v{P}, v{P+1}')
e(f'v_cvt_pk_bf16_f32 v{P+1}, v{P+1}, v{P+1}')
e(f'v_lshlrev_b32 v{P+1}, 16, v{P+1}')
e(f'v_cndmask_b32 v{P}, v{P}, v{P+1}, s[34:35]')
e('s_nop 1')
e(f'v_mul_f32_dpp v{P+1}, v{P}, v{P} row_ror:8 row_mask:0xf bank_mask:0xf')
e('s_nop 1')
e(f'v_mov_b32_dpp v{P+2}, v{P+1} quad_perm:[1,1,3,3] row_mask:0xf bank_mask:0xf')
e(f'v_cvt_pk_bf16_f32 v{P+1}, v{P+1}, v{P+2}')
e('s_nop 1')
for p in range(4):
    e(f'v_mov_b32_dpp v{A+p}, v{P+1} row_newbcast:{2*p} row_mask:0xf bank_mask:0xf')
e('s_nop 1')
for j in range(8):
    e(f'v_mfma_f32_16x16x32_bf16 v[{D+4*j}:{D+4*j+3}], v[{A}:{A+3}], v[{T+4*j}:{T+4*j+3}], 0')
e('s_nop 1')
for j in range(8):
    if j == 7: e('s_nop 0')
    e(f'v_min_u32 v{T+j}, -2, v{D+4*j}')
e(f's_mov_b64 exec, {sp(S_EX)}')
e(f'global_store_dwordx4 v5, v[{T}:{T+3}], {sp(WS)} sc1')
e(f'global_store_dwordx4 v5, v[{T+4}:{T+7}], {sp(WS)} offset:16 sc1')
stamp(4)
if STAMP:
    e('s_waitcnt vmcnt(0)')
    stamp(5)
endpgm()

lab('L_ffn_poll')
e('v_lshlrev_b32 v1, 2, v0')
e('v_lshlrev_b32 v3, 4, v0')
e('s_waitcnt lgkmcnt(0)')
poll_keys('fp', 1, 2)
stamp(1)
e(f's_not_b32 s{S_T0}, s{S_KEY}')
e(f's_and_b32 s{S_T0}, s{S_T0}, 0x7ff')
e(f's_mul_i32 s{S_T0}, s{S_T0}, 1152')
e(f'v_add_u32 v3, s{S_T0}, v3')
e(f's_mov_b32 m0, {LDS_X}')
e('s_nop 0')
e(f'global_load_lds_dwordx4 v3, {sp(X)}')
e('s_mov_b64 exec, 0xff')
e(f'global_load_lds_dwordx4 v3, {sp(X)} offset:1024')
e('s_waitcnt vmcnt(0)')
stamp(2)
e('s_barrier')
endpgm()

lab('L_router')
e(f's_cmp_gt_u32 s{S_WAVE}, 9')
e('s_cbranch_scc1 L_exit')
e(f's_cmp_eq_u32 s{S_WAVE}, 9')
e('s_cbranch_scc1 L_reducer')
XR, WW, ACC = 8, 24, 28
c('router wave v: rows 32*wg + (l>>3) + 8i, bytes 128v + 16*(l&7)')
e('v_lshrrev_b32 v1, 3, v0')
e(f's_lshl_b32 s{S_T0}, s2, 5')
e(f'v_add_u32 v1, s{S_T0}, v1')
e('v_and_b32 v2, 7, v0')
e('v_cmp_eq_u32 s[34:35], 0, v2')
e('v_lshlrev_b32 v2, 4, v2')
e(f's_lshl_b32 s{S_T1}, s{S_WAVE}, 7')
e(f'v_add_u32 v2, s{S_T1}, v2')
e(f's_movk_i32 s{S_T2}, 1152')
e(f'v_mad_u32_u24 v4, v1, s{S_T2}, v2')
e('v_add_u32 v5, 9216, v4')
e(f'v_add_u32 v6, {2*9216}, v4')
e(f'v_add_u32 v7, {3*9216}, v4')
e('s_waitcnt lgkmcnt(0)')
for i in range(4):
    e(f'global_load_dwordx4 v[{XR+4*i}:{XR+4*i+3}], v{4+i}, {sp(X)}')
e(f'global_load_dwordx4 v[{WW}:{WW+3}], v2, {sp(WR)}')
stamp(1)
e('v_lshrrev_b32 v3, 3, v0')
e('v_lshlrev_b32 v3, 4, v3')
e(f'v_add_u32 v3, s{S_T1}, v3')
for i in range(4):
    e(f'v_mov_b32 v{ACC+i}, 0')
e('s_waitcnt vmcnt(0)')
stamp(2)
for d in range(4):
    for i in range(4):
        e(f'v_dot2c_f32_bf16 v{ACC+i}, v{XR+4*i+d}, v{WW+d}')
e('s_nop 1')
for mod in ['quad_perm:[1,0,3,2]', 'quad_perm:[2,3,0,1]', 'row_half_mirror']:
    for i in range(4):
        e(f'v_add_f32_dpp v{ACC+i}, v{ACC+i}, v{ACC+i} {mod} row_mask:0xf bank_mask:0xf')
e('s_mov_b64 exec, s[34:35]')
e(f'ds_write_b128 v3, v[{ACC}:{ACC+3}] offset:{LDS_P}')
e('s_mov_b64 exec, -1')
e('s_waitcnt lgkmcnt(0)')
e('s_barrier')
e(f's_cmp_lg_u32 s{S_WAVE}, 0')
e('s_cbranch_scc1 L_r_wait')
Q = 32
e('v_and_b32 v3, 31, v0')
e('v_lshlrev_b32 v2, 2, v3')
e(f'v_add_u32 v2, {LDS_P}, v2')
for k in range(4):
    e(f'ds_read2_b32 v[{Q+2*k}:{Q+2*k+1}], v2 offset0:{64*k} offset1:{64*k+32}')
e(f'ds_read_b32 v{Q+8}, v2 offset:1024')
e('v_lshrrev_b32 v2, 2, v3')
e('v_and_b32 v3, 3, v3')
e('v_lshlrev_b32 v3, 3, v3')
e(f'v_add3_u32 v3, v2, v3, s{S_T0}')
e('v_sub_u32 v3, 0xffff, v3')
e('s_waitcnt lgkmcnt(0)')
e(f'v_pk_add_f32 v[{Q}:{Q+1}], v[{Q}:{Q+1}], v[{Q+2}:{Q+3}]')
e(f'v_pk_add_f32 v[{Q+4}:{Q+5}], v[{Q+4}:{Q+5}], v[{Q+6}:{Q+7}]')
e(f'v_add_f32 v{Q}, v{Q}, v{Q+8}')
e(f'v_pk_add_f32 v[{Q}:{Q+1}], v[{Q}:{Q+1}], v[{Q+4}:{Q+5}]')
e(f'v_add_f32 v{Q}, v{Q}, v{Q+1}')
e(f'v_cmp_o_f32 vcc, v{Q}, v{Q}')
e(f'v_cvt_pk_bf16_f32 v{Q}, v{Q}, v{Q}')
e(f'v_ashrrev_i32 v{Q+1}, 31, v{Q}')
e(f'v_or_b32 v{Q+1}, 0x80000000, v{Q+1}')
e(f'v_xor_b32 v{Q}, v{Q}, v{Q+1}')
e(f'v_cndmask_b32 v{Q}, 0, v{Q}, vcc')
e(f's_mov_b32 s{S_T2}, 0xffff0000')
e(f'v_and_or_b32 v{Q}, v{Q}, s{S_T2}, v3')
wave_max_u32(Q)
e(f's_lshl_b32 s{S_T2}, s2, 2')
e(f'v_mov_b32 v2, s{S_T2}')
e('s_mov_b32 exec_lo, 0')
e('s_brev_b32 exec_hi, 1')
e(f'global_store_dword v2, v{Q}, {sp(DBG)} sc1')
e('s_mov_b64 exec, -1')
stamp(3)
lab('L_r_wait')
e(f'v_add_f32 v{Q}, v{ACC}, v{ACC+1}')
e(f'v_add_f32 v{Q+1}, v{ACC+2}, v{ACC+3}')
e(f'v_add_f32 v{Q}, v{Q}, v{Q+1}')
e(f'v_mov_b32 v{Q+1}, 0x207')
e(f'v_cmp_class_f32 vcc, v{Q}, v{Q+1}')
e('s_cbranch_vccz L_r_nofix')
for d in range(16):
    r = XR + d
    e(f'v_lshlrev_b32 v{Q}, 16, v{r}')
    e(f'v_and_b32 v{Q+1}, 0xffff0000, v{r}')
    e(f'v_fma_f32 v{Q}, v{Q}, 0, v{Q}')
    e(f'v_fma_f32 v{Q+1}, v{Q+1}, 0, v{Q+1}')
    e(f'v_perm_b32 v{r}, v{Q+1}, v{Q}, s{S_SELHI}')
lab('L_r_nofix')
e('s_barrier')
e('v_mov_b32 v2, 0')
e(f'ds_read_b32 v2, v2 offset:{LDS_WIN}')
e('s_waitcnt lgkmcnt(0)')
stamp(4)
e('v_sub_u32 v2, v2, v1')
for i in range(4):
    e(f'v_cmp_ne_u32 vcc, {8*i}, v2')
    e('s_mov_b64 exec, vcc')
    e(f'global_store_dwordx4 v{4+i}, v[{XR+4*i}:{XR+4*i+3}], {sp(OUT)}')
    e('s_mov_b64 exec, -1')
if STAMP:
    e('s_waitcnt vmcnt(0)')
    stamp(5)
endpgm()

lab('L_reducer')
PR = 8
e('v_lshlrev_b32 v1, 2, v0')
e('v_lshlrev_b32 v3, 4, v0')
e(f's_mul_i32 s{S_T0}, s2, 9216')
e(f's_add_u32 s{S_T0}, s{S_T0}, 4096')
e(f'v_add_u32 v3, s{S_T0}, v3')
e('v_add_u32 v4, 4096, v3')
for k in range(4):
    e(f'v_mov_b32 v{PR+k}, -1')
e('s_waitcnt lgkmcnt(0)')
e(f's_cmp_ge_u32 s2, {NRED}')
e('s_cbranch_scc1 L_red_noclear')
for i in range(8):
    e(f'global_store_dwordx4 v3, v[{PR}:{PR+3}], {sp(WS)} offset:{1024*i-4096} sc1')
e(f'global_store_dwordx4 v4, v[{PR}:{PR+3}], {sp(WS)} sc1')
e('s_waitcnt vmcnt(0)')
lab('L_red_noclear')
stamp(1)
e('s_barrier')
poll_keys('rp', 1, 2)
stamp(2)
e(f's_not_b32 s{S_T0}, s{S_KEY}')
e(f's_and_b32 s{S_T0}, s{S_T0}, 0x7ff')
e(f'v_mov_b32 v5, s{S_T0}')
e('v_mov_b32 v6, 0')
e(f'ds_write_b32 v6, v5 offset:{LDS_WIN}')
e('s_waitcnt lgkmcnt(0)')
e('s_barrier')
e(f's_cmp_ge_u32 s2, {NRED}')
e('s_cbranch_scc1 L_red_end')
e('v_lshrrev_b32 v5, 4, v0')
e('v_bfrev_b32 v5, v5')
e('v_lshrrev_b32 v5, 30, v5')
e('v_and_b32 v6, 3, v0')
e('v_lshl_add_u32 v5, v6, 2, v5')
e(f's_mul_i32 s{S_T0}, s{S_T0}, 1152')
e(f's_lshl_b32 s{S_T1}, s2, 5')
e(f's_add_u32 s{S_T0}, s{S_T0}, s{S_T1}')
e(f'v_lshl_add_u32 v5, v5, 1, s{S_T0}')
e(f'global_load_ushort v6, v5, {sp(X)}')
e(f's_and_b32 s{S_T1}, s{S_KEY}, 0xffff0000')
e(f's_ashr_i32 s{S_T2}, s{S_T1}, 31')
e(f's_not_b32 s{S_T2}, s{S_T2}')
e(f's_or_b32 s{S_T2}, s{S_T2}, 0x80000000')
e(f's_xor_b32 s{S_T1}, s{S_T1}, s{S_T2}')
e(f's_and_b32 s{S_T1}, s{S_T1}, 0xffff0000')
e(f'v_mov_b32 v7, s{S_T1}')
e('v_mul_f32 v7, 0xbfb8aa3b, v7')
e('v_exp_f32 v7, v7')
e('s_nop 0')
e('v_add_f32 v7, 1.0, v7')
e('v_rcp_f32 v7, v7')
e('s_nop 0')
e('v_cvt_pk_bf16_f32 v7, v7, v7')
e('v_lshlrev_b32 v7, 16, v7')
e(f's_mov_b32 s{S_CNT}, {SPIN}')
lab('L_red_poll')
for i in range(8):
    e(f'global_load_dwordx4 v[{PR+4*i}:{PR+4*i+3}], v3, {sp(WS)} offset:{1024*i-4096} sc1')
e(f'global_load_dwordx4 v[{PR+32}:{PR+35}], v4, {sp(WS)} sc1')
e(f's_sub_u32 s{S_CNT}, s{S_CNT}, 1')
e('s_cbranch_scc1 L_red_done')
M = 48
for i in range(9):
    e(f's_waitcnt vmcnt({8-i})')
    if i == 0:
        e(f'v_max_u32 v{M}, v{PR}, v{PR+1}')
    else:
        e(f'v_max3_u32 v{M}, v{M}, v{PR+4*i}, v{PR+4*i+1}')
    e(f'v_max3_u32 v{M}, v{M}, v{PR+4*i+2}, v{PR+4*i+3}')
e(f'v_cmp_eq_u32 vcc, -1, v{M}')
e('s_cbranch_vccnz L_red_poll')
lab('L_red_done')
e('s_waitcnt vmcnt(0)')
stamp(3)
def padd(a, b):
    e(f'v_pk_add_f32 v[{PR+4*a}:{PR+4*a+1}], v[{PR+4*a}:{PR+4*a+1}], v[{PR+4*b}:{PR+4*b+1}]')
    e(f'v_pk_add_f32 v[{PR+4*a+2}:{PR+4*a+3}], v[{PR+4*a+2}:{PR+4*a+3}], v[{PR+4*b+2}:{PR+4*b+3}]')
padd(0,1); padd(2,3); padd(4,5); padd(6,7); padd(0,8); padd(0,2); padd(4,6); padd(0,4)
e('s_nop 1')
e(f'v_permlane32_swap_b32 v{PR}, v{PR+1}')
e(f'v_permlane32_swap_b32 v{PR+2}, v{PR+3}')
e(f'v_add_f32 v{PR}, v{PR}, v{PR+1}')
e(f'v_add_f32 v{PR+2}, v{PR+2}, v{PR+3}')
e('s_nop 1')
e(f'v_permlane16_swap_b32 v{PR}, v{PR+2}')
e(f'v_add_f32 v{PR}, v{PR}, v{PR+2}')
e('s_nop 1')
e(f'v_add_f32_dpp v{PR}, v{PR}, v{PR} row_ror:4 row_mask:0xf bank_mask:0xf')
e('s_nop 1')
e(f'v_add_f32_dpp v{PR}, v{PR}, v{PR} row_ror:8 row_mask:0xf bank_mask:0xf')
e(f'v_cvt_pk_bf16_f32 v{PR}, v{PR}, v{PR}')
e(f'v_lshlrev_b32 v{PR}, 16, v{PR}')
e(f'v_mul_f32 v{PR}, v{PR}, v7')
e(f'v_cvt_pk_bf16_f32 v{PR}, v{PR}, v{PR}')
e(f'v_lshlrev_b32 v{PR}, 16, v{PR}')
e('v_lshlrev_b32 v6, 16, v6')
e(f'v_fma_f32 v{PR}, v6, 0, v{PR}')
e(f'v_add_f32 v{PR}, v6, v{PR}')
e(f'v_cvt_pk_bf16_f32 v{PR}, v{PR}, v{PR}')
e('s_mov_b32 exec_lo, 0x000f000f')
e('s_mov_b32 exec_hi, 0x000f000f')
e(f'global_store_short v5, v{PR}, {sp(OUT)}')
if STAMP:
    stamp(4)
    e('s_waitcnt vmcnt(0)')
    stamp(5)
lab('L_red_end')
endpgm()
lab('L_exit')
e('s_endpgm')

tail = '''.section .rodata,"a"
.p2align 6
.amdhsa_kernel standalone__moe_arch_mod__prompt_kernel
  .amdhsa_next_free_vgpr 80
  .amdhsa_next_free_sgpr 64
  .amdhsa_accum_offset 80
  .amdhsa_group_segment_fixed_size 0
  .amdhsa_kernarg_size 64
  .amdhsa_user_sgpr_count 2
  .amdhsa_user_sgpr_kernarg_segment_ptr 1
  .amdhsa_system_sgpr_workgroup_id_x 1
  .amdhsa_float_denorm_mode_32 3
.end_amdhsa_kernel
'''
print(hdr)
print('\n'.join(L))
print(tail)
```

```python
import sys, subprocess, re, tempfile
def opt(name, d):
    a = sys.argv
    return type(d)(a[a.index(name)+1]) if name in a else d
def mod(name, d):
    v = opt(name, d); return '' if v == '-' else ' ' + v.replace('+', ' ')
STAMP = '--stamp' in sys.argv
WING = opt('--wing', 8); WIND = opt('--wind', 10); WIN0 = opt('--win0', 4)
NT = mod('--nt', 'nt'); XNT = mod('--xnt', '-'); ONT = mod('--ont', '-')
KSTR = opt('--kstr', 128)
FINL = opt('--fin', 'A')
RA = opt('--ra', 'early')
CP = opt('--cp', 'C')
DIAG = opt('--diag', '')
KFULL = opt('--kfull', 0)
KST = mod('--kst', 'sc1')
AGN = opt('--agn', 40); AGD = opt('--agd', 0); PSL = opt('--psl', 0); NOP = opt('--nop', 0)
SPIN = 100000
LOCN = opt('--locn', 60)
NU = 2 if RA == 'early' else 1
NKEY = 256 // NU

L = []
def e(s): L.append('    ' + s)
def lab(s): L.append(s + ':')
def c(s): L.append('    ; ' + s)
X, WR, WG, WU, WD, OUT, DBG, WS = 4, 6, 8, 10, 12, 14, 16, 18
def sp(n): return f's[{n}:{n+1}]'
S_WAVE, S_XCD, S_SLOT = 20, 21, 22
S_T0, S_T1, S_T2, S_T3 = 23, 24, 25, 26
S_SELLO, S_SELHI = 27, 28
S_CNT, S_TAG, S_T, S_K = 29, 30, 31, 32
S_KEY = 33
S_A, S_B = 34, 36
S_TB = 38; S_PS = 42
S_XS = 48
S_ST = 80
K1L, K1G, RDY, WING_, BC, K2, EXL, EXG, FIN = 0x1000, 0x2000, 0x3000, 0x4000, 0x8000, 0x10000, 0x20000, 0x80000, 0xE0000
NG = 4 if RA == 'early' else 8
NRW = opt('--nrw', 1)
NCH = opt('--nch', 2)
LDS_X, LDS_WIN = 0, 128
LDS_BYTES = 256

def stamp(i):
    if STAMP: e(f's_memrealtime s[{S_ST+2*i}:{S_ST+2*i+1}]')
def endpgm():
    e('s_branch L_flush' if STAMP else 's_endpgm')
def dpp(op, d, a, b, m, rm='0xf'):
    e(f'{op}_dpp v{d}, v{a}, v{b} {m} row_mask:{rm} bank_mask:0xf')
def wave_max_u32(v, steps=('row_shr:1', 'row_shr:2', 'row_shr:4', 'row_shr:8')):
    for m in steps:
        e('s_nop 1'); dpp('v_max_u32', v, v, v, m)
    e('s_nop 1'); dpp('v_max_u32', v, v, v, 'row_bcast:15', '0xa')
    e('s_nop 1'); dpp('v_max_u32', v, v, v, 'row_bcast:31', '0xc')
def perms(raw, T, p):
    for j in range(8):
        sel = S_SELHI if (j & 1) else S_SELLO
        e(f'v_perm_b32 v{T+4*j+p}, v{raw+4*(2*p+1)+j//2}, v{raw+4*(2*p)+j//2}, s{sel}')
def tag_bytes():
    for i in range(4): e(f's_bfe_u32 s{S_TB+i}, s{S_TAG}, {(8<<16)|(8*i)}')
def tag_sels():
    for i in range(4): e(f's_mov_b32 s{S_PS+i}, {0x07060500+i:#x}')
def bf16r(d, s):
    e(f'v_cvt_pk_bf16_f32 v{d}, v{s}, v{s}'); e(f'v_lshlrev_b32 v{d}, 16, v{d}')
def five_loads(R, addr):
    for i in range(4):
        e(f'global_load_dwordx4 v[{R+4*i}:{R+4*i+3}], v{addr[i][0]}, {sp(WS)} offset:{addr[i][1]} sc1')
    e('s_mov_b32 exec_hi, 0')
    e(f'global_load_dwordx4 v[{R+16}:{R+19}], v{addr[4][0]}, {sp(WS)} offset:{addr[4][1]} sc1')
    e('s_mov_b32 exec_hi, -1')
def five_check(R, M):
    for i in range(5):
        e(f's_waitcnt vmcnt({4-i})')
        if i == 4: e('s_mov_b32 exec_hi, 0')
        for d in range(4): e(f'v_xor_b32 v{R+4*i+d}, s{S_TB+d}, v{R+4*i+d}')
        if i == 0: e(f'v_or_b32 v{M}, v{R}, v{R+1}')
        else: e(f'v_or3_b32 v{M}, v{M}, v{R+4*i}, v{R+4*i+1}')
        e(f'v_or3_b32 v{M}, v{M}, v{R+4*i+2}, v{R+4*i+3}')
        if i > 0:
            e(f'v_pk_add_f32 v[{R}:{R+1}], v[{R}:{R+1}], v[{R+4*i}:{R+4*i+1}]')
            e(f'v_pk_add_f32 v[{R+2}:{R+3}], v[{R+2}:{R+3}], v[{R+4*i+2}:{R+4*i+3}]')
    e('s_mov_b32 exec_hi, -1')
    e(f'v_and_b32 v{M}, 0xff, v{M}')
    e(f'v_cmp_ne_u32 vcc, 0, v{M}')
def slot9():
    e(f's_mul_i32 s{S_T0}, s{S_SLOT}, 57')
    e(f's_lshr_b32 s{S_T0}, s{S_T0}, 9')
    e(f's_mul_i32 s{S_K}, s{S_T0}, 9')
    e(f's_sub_u32 s{S_K}, s{S_SLOT}, s{S_K}')
    e(f's_mul_i32 s{S_T}, s{S_XCD}, 3')
    e(f's_add_u32 s{S_T}, s{S_T}, s{S_T0}')
    e(f's_mul_i32 s{S_T}, s{S_T}, 3')

e('s_cmp_ge_u32 s2, 256')
e('s_cbranch_scc1 L_exit0')
e('s_load_dwordx16 s[4:19], s[0:1], 0')
stamp(0)
if DIAG: e('s_memrealtime s[76:77]')
e(f'v_readfirstlane_b32 s{S_WAVE}, v0')
e('v_and_b32 v0, 63, v0')
e(f's_and_b32 s{S_XCD}, s2, 7')
e(f's_lshr_b32 s{S_SLOT}, s2, 3')
e(f's_lshr_b32 s{S_WAVE}, s{S_WAVE}, 6')
if STAMP:
    for i in range(1, 8): e(f's_mov_b64 s[{S_ST+2*i}:{S_ST+2*i+1}], 0')
e(f's_cmp_lt_u32 s{S_WAVE}, 4'); e('s_cbranch_scc1 L_notp')
e('s_barrier')
e(f's_cmp_eq_u32 s{S_WAVE}, 4'); e('s_cbranch_scc1 L_warm1')
e(f's_cmp_eq_u32 s{S_WAVE}, 5'); e('s_cbranch_scc1 L_warm2')
e('s_branch L_warm3')
lab('L_spare0')
e(f's_cmp_ge_u32 s{S_WAVE}, {NRW}'); e('s_cbranch_scc1 L_exit0')
e('s_barrier')
e('s_branch L_spare')
lab('L_exit0')
e('s_endpgm')
lab('L_notp')
e(f's_cmp_lg_u32 s{S_WAVE}, 3'); e('s_cbranch_scc1 L_w')

XR, WW, ACC = 8, 80, 116
if RA == 'early':
    e(f's_cmp_ge_u32 s{S_XCD}, 4'); e('s_cbranch_scc1 L_exit0')
    e(f's_lshl_b32 s{S_T0}, s{S_SLOT}, 2')
    e(f's_add_u32 s{S_T0}, s{S_T0}, s{S_XCD}')
    e(f's_lshl_b32 s{S_T1}, s{S_T0}, 4')
else:
    e(f's_mov_b32 s{S_T0}, s2')
    e(f's_lshl_b32 s{S_T1}, s2, 3')
e('v_lshrrev_b32 v1, 3, v0')
e(f'v_add_u32 v1, s{S_T1}, v1')
e('v_and_b32 v2, 7, v0')
e('v_lshlrev_b32 v2, 4, v2')
e(f's_movk_i32 s{S_T2}, 1152')
e(f'v_mad_u32_u24 v4, v1, s{S_T2}, v2')
if NU == 2: e('v_add_u32 v5, 9216, v4')
e('s_waitcnt lgkmcnt(0)')
for cc in range(9):
    e(f'global_load_dwordx4 v[{WW+4*cc}:{WW+4*cc+3}], v2, {sp(WR)} offset:{128*cc}')
for cc in range(9):
    for i in range(NU):
        e(f'global_load_dwordx4 v[{XR+36*i+4*cc}:{XR+36*i+4*cc+3}], v{4+i}, {sp(X)} offset:{128*cc}{XNT}')
e(f's_load_dword s{S_TAG}, {sp(WS)}, 0')
e('s_barrier')
stamp(1)
e('s_branch L_r2')

lab('L_w')
e(f's_cmp_ge_u32 s{S_SLOT}, 27'); e('s_cbranch_scc1 L_spare0')
RAW, TX, DA, AF = 16, 112, 144, 176
slot9()
e(f's_add_u32 s{S_T}, s{S_T}, s{S_WAVE}')
c('G: row = 64k + 32u + 8*(l>>4) + e ; col bytes = 128c + 16*(l&7) ; matrix = (l>>3)&1')
e('v_lshrrev_b32 v8, 4, v0')
e(f's_lshl_b32 s{S_T0}, s{S_K}, 3')
e(f'v_add_u32 v1, s{S_T0}, v8')
e(f's_mov_b32 s{S_T1}, {8*9216}')
e(f'v_mul_lo_u32 v1, v1, s{S_T1}')
e('v_and_b32 v9, 7, v0')
e('v_lshlrev_b32 v9, 4, v9')
e(f's_lshl_b32 s{S_T2}, s{S_T}, 7')
e(f'v_add3_u32 v1, v1, v9, s{S_T2}')
e('v_and_b32 v10, 8, v0')
e('v_cmp_ne_u32 vcc, 0, v10')
e(f's_mov_b32 s{S_A}, 9216'); e(f's_mov_b32 s{S_A+1}, 0')
e(f's_mov_b32 s{S_B}, {25*9216}'); e(f's_mov_b32 s{S_B+1}, 0')
e('s_waitcnt lgkmcnt(0)')
e(f'v_mov_b32 v2, s{WG}'); e(f'v_mov_b32 v3, s{WG+1}')
e(f'v_mov_b32 v4, s{WU}'); e(f'v_mov_b32 v5, s{WU+1}')
e('v_cndmask_b32 v2, v2, v4, vcc'); e('v_cndmask_b32 v3, v3, v5, vcc')
e('v_add_co_u32 v2, vcc, v2, v1')
e(f's_load_dword s{S_TAG}, {sp(WS)}, 0')
e('s_barrier')
e('v_addc_co_u32 v3, vcc, 0, v3, vcc')
DOFF = [-2880, -1728, 1728, 2880]
def wload(n):
    if n < 16:
        e(f'global_load_dwordx4 v[{RAW+4*n}:{RAW+4*n+3}], v[2:3], off{NT}')
        if n < 15: e(f'v_lshl_add_u64 v[2:3], v[2:3], 0, {sp(S_B if n == 7 else S_A)}')
    else:
        r = n - 16
        e(f'global_load_dwordx4 v[{RAW+4*n}:{RAW+4*n+3}], v{6+r//4}, {sp(WD)} offset:{DOFF[r%4]}{NT}')
TG = [TX, RAW]; TD = RAW + 32
def gperm(pair): perms(RAW + 32*(pair//4), TG[pair//4], pair % 4)
for n in range(WING):
    if n == WIN0 and WIN0 < WING:
        if RA == 'early':
            e(f's_cmp_ge_u32 s{S_XCD}, 4'); e('s_cbranch_scc1 L_w_nowait')
        e(f's_waitcnt vmcnt({WIN0-1})')
        if RA == 'early': lab('L_w_nowait')
    wload(n)
c('D: row = 64c + 32*(kg&1) + 16*m + 2*(kg>>1) + {0,1,4,5,8,9,12,13} ; col bytes = 128k + 16q')
e('v_and_b32 v6, 24, v0')
e('v_lshlrev_b32 v6, 1, v6')
e('v_lshrrev_b32 v7, 5, v0')
e('v_lshl_add_u32 v6, v7, 1, v6')
e(f's_lshl_b32 s{S_T0}, s{S_T}, 6')
e(f'v_add_u32 v6, s{S_T0}, v6')
e(f's_movk_i32 s{S_T1}, 1152')
e(f'v_mul_lo_u32 v6, v6, s{S_T1}')
e(f's_lshl_b32 s{S_T3}, s{S_K}, 7')
e(f's_add_u32 s{S_T3}, s{S_T3}, 2880')
e(f'v_add3_u32 v6, v6, v9, s{S_T3}')
e('v_add_u32 v7, 9216, v6')
e(f's_mov_b32 s{S_SELLO}, 0x05040100')
e(f's_mov_b32 s{S_SELHI}, 0x07060302')
stamp(1)
done_pairs = 0; got = 0
for n in range(WING, 24):
    w = WING if n < 16 else WIND
    need = n - w + 1
    if need > got:
        e(f's_waitcnt vmcnt({w-1})'); got = need
    wload(n)
    while done_pairs < 8 and 2*done_pairs + 2 <= got:
        gperm(done_pairs); done_pairs += 1
    if n == WING:
        c('A-fragment LDS address, exchange and final offsets')
        e('v_lshlrev_b32 v11, 4, v8')
        e(f's_mul_i32 s{S_T0}, s{S_T}, 4608')
        e(f's_add_u32 s{S_T0}, s{S_T0}, {EXL+2048}')
        e(f'v_lshl_add_u32 v13, v0, 4, s{S_T0}')
        e(f's_lshl_b32 s{S_T1}, s{S_K}, 9')
        e(f's_add_u32 s{S_T0}, s{S_T0}, s{S_T1}')
        e(f's_sub_u32 s{S_T0}, s{S_T0}, 2048')
        e('v_and_b32 v12, 4, v0'); e('v_lshlrev_b32 v12, 6, v12')
        e('v_lshl_add_u32 v12, v10, 4, v12')
        e('v_and_b32 v14, 3, v0'); e('v_lshl_add_u32 v12, v14, 5, v12')
        e(f'v_add3_u32 v12, v12, v11, s{S_T0}')
        e(f'v_add_u32 v4, {EXG-EXL}, v12')
        e(f'v_cmp_eq_u32 {sp(S_XS)}, 0, v10')
    if n == WING + 1:
        if FINL == 'A':
            e('v_bfe_u32 v14, v0, 1, 2')
            e(f's_lshl_b32 s{S_T0}, s{S_K}, 2')
            e(f'v_add_u32 v14, s{S_T0}, v14')
            e(f's_movk_i32 s{S_T1}, 4608')
            e(f'v_mul_lo_u32 v14, v14, s{S_T1}')
            e('v_and_b32 v15, 1, v0'); e('v_lshlrev_b32 v15, 5, v15')
            e(f's_lshl_b32 s{S_T0}, s{S_T}, 6')
            e(f's_add_u32 s{S_T0}, s{S_T0}, {FIN}')
            e(f'v_add3_u32 v14, v14, v15, s{S_T0}')
            e('v_add_u32 v14, v11, v14')
        else:
            e(f's_mul_i32 s{S_T0}, s{S_T}, 2304')
            e(f's_lshl_b32 s{S_T1}, s{S_K}, 8')
            e(f's_add_u32 s{S_T0}, s{S_T0}, s{S_T1}')
            e(f's_add_u32 s{S_T0}, s{S_T0}, {FIN}')
            e('v_lshl_add_u32 v14, v9, 1, v11')
            e(f'v_add_u32 v14, s{S_T0}, v14')
    if n == WING + 2:
        e('s_waitcnt lgkmcnt(0)')
        e(f's_add_u32 s{S_TAG}, s{S_TAG}, 1')
        tag_bytes(); tag_sels()
        e(f'v_mov_b32 v15, s{S_TAG}')
    L.append(';;WARMSPOT')
while done_pairs < 4:
    e(f's_waitcnt vmcnt({24 - (2*done_pairs+2)})'); gperm(done_pairs); done_pairs += 1
stamp(2)
e('s_barrier')
e(f'ds_read_b128 v[{AF}:{AF+3}], v11 offset:{LDS_X}')
e(f'ds_read_b128 v[{AF+4}:{AF+7}], v11 offset:{LDS_X+64}')
e('s_waitcnt lgkmcnt(0)')
stamp(3)
JO = (0, 4, 1, 5, 2, 6, 3, 7)
for j in JO:
    e(f'v_mfma_f32_16x16x32_bf16 v[{DA+4*j}:{DA+4*j+3}], v[{AF}:{AF+3}], v[{TG[0]+4*j}:{TG[0]+4*j+3}], 0')
while done_pairs < 8:
    e(f's_waitcnt vmcnt({24 - (2*done_pairs+2)})'); gperm(done_pairs); done_pairs += 1
for j in JO:
    e(f'v_mfma_f32_16x16x32_bf16 v[{DA+4*j}:{DA+4*j+3}], v[{AF+4}:{AF+7}], v[{TG[1]+4*j}:{TG[1]+4*j+3}], v[{DA+4*j}:{DA+4*j+3}]')
EX = TX
e('s_nop 1')
for j in range(4):
    e(f'v_mov_b32_dpp v{DA+4*j}, v{DA+4*j+16} quad_perm:[0,1,2,3] row_mask:0x2 bank_mask:0xf')
    e(f'v_perm_b32 v{AF+j}, v{DA+4*j}, v15, s{S_PS+j}')
e('s_mov_b32 exec_hi, 0')
e(f'global_store_dwordx4 v12, v[{AF}:{AF+3}], {sp(WS)}')
e('s_mov_b32 exec_hi, -1')
stamp(4)
L.append(';;WARMSPOT')
for p in range(3):
    e(f's_waitcnt vmcnt({7-2*p})'); perms(RAW+64, TD, p)
exa = [(13, 1024*i-2048) for i in range(5)]
five_loads(EX, exa)
e('s_waitcnt vmcnt(6)'); perms(RAW+64, TD, 3)
stamp(5)
e(f's_mov_b32 s{S_CNT}, 0')
e('s_branch L_w_chk')
L.append(';;WARMFREE')
lab('L_w_poll')
e(f's_add_u32 s{S_CNT}, s{S_CNT}, 1')
e(f's_cmp_lg_u32 s{S_CNT}, {LOCN}')
e('s_cbranch_scc1 L_w_same')
e(f'v_add_u32 v13, {EXG-EXL}, v13')
e('s_mov_b32 exec_hi, 0')
e(f'global_store_dwordx4 v4, v[{AF}:{AF+3}], {sp(WS)} sc1')
e('s_mov_b32 exec_hi, -1')
lab('L_w_same')
five_loads(EX, exa)
e(f's_cmp_gt_u32 s{S_CNT}, {SPIN}')
e('s_cbranch_scc1 L_w_go')
lab('L_w_chk')
five_check(EX, EX+20)
e('s_cbranch_vccnz L_w_poll')
lab('L_w_go')
if STAMP:
    stamp(6)
a0, a1, t0, t1 = EX, EX+1, EX+4, EX+5
e(f'v_permlane32_swap_b32 v{EX}, v{EX+2}')
e(f'v_permlane32_swap_b32 v{EX+1}, v{EX+3}')
e(f'v_pk_add_f32 v[{EX}:{EX+1}], v[{EX}:{EX+1}], v[{EX+2}:{EX+3}]')
e(f'v_cvt_pk_bf16_f32 v{EX+2}, v{a0}, v{a1}')
e(f'v_lshlrev_b32 v{a0}, 16, v{EX+2}')
e(f'v_and_b32 v{a1}, 0xffff0000, v{EX+2}')
e(f'v_mul_f32 v{t0}, 0xbfb8aa3b, v{a0}')
e(f'v_mul_f32 v{t1}, 0xbfb8aa3b, v{a1}')
e(f'v_exp_f32 v{t0}, v{t0}')
e(f'v_exp_f32 v{t1}, v{t1}')
e('s_nop 0')
e(f'v_pk_add_f32 v[{t0}:{t1}], v[{t0}:{t1}], 1.0 op_sel_hi:[1,0]')
e(f'v_rcp_f32 v{t0}, v{t0}')
e(f'v_rcp_f32 v{t1}, v{t1}')
e('s_nop 0')
e(f'v_pk_mul_f32 v[{t0}:{t1}], v[{a0}:{a1}], v[{t0}:{t1}]')
e(f'v_cvt_pk_bf16_f32 v{t0}, v{t0}, v{t1}')
e(f'v_cndmask_b32 v{t0}, v{EX+2}, v{t0}, {sp(S_XS)}')
e(f'v_lshlrev_b32 v{a0}, 16, v{t0}')
e(f'v_and_b32 v{a1}, 0xffff0000, v{t0}')
e('s_nop 0')
dpp('v_mul_f32', a0, a0, a0, 'row_ror:8')
dpp('v_mul_f32', a1, a1, a1, 'row_ror:8')
e(f'v_cvt_pk_bf16_f32 v{a0}, v{a0}, v{a1}')
e('s_nop 1')
for p in range(4):
    e(f'v_mov_b32_dpp v{AF+4+p}, v{a0} quad_perm:[{p},{p},{p},{p}] row_mask:0xf bank_mask:0xf')
e('s_nop 1')
for j in JO:
    e(f'v_mfma_f32_16x16x32_bf16 v[{DA+4*j}:{DA+4*j+3}], v[{AF+4}:{AF+7}], v[{TD+4*j}:{TD+4*j+3}], 0')
e('s_nop 1')
for j in range(4):
    if j > 0: e('s_nop 0')
    e(f'v_permlane16_swap_b32 v{DA+4*j}, v{DA+4*j+16}')
for j in range(4): dpp('v_add_f32', DA+4*j, DA+4*j+16, DA+4*j, 'row_ror:8')
for j in range(4): e(f'v_perm_b32 v{EX+j}, v{DA+4*j}, v15, s{S_PS+j}')
e('s_mov_b64 exec, 0x00ff00ff')
e(f'global_store_dwordx4 v14, v[{EX}:{EX+3}], {sp(WS)} sc1')
stamp(7)
e('s_mov_b32 exec_lo, -1')
e(f'global_store_dwordx4 v4, v[{AF}:{AF+3}], {sp(WS)} sc1')
if CP == 'C': e('s_barrier')
endpgm()
L.append(';;WARMFREE')

lab('L_p')
e(f's_cmp_ge_u32 s{S_SLOT}, 27'); e('s_cbranch_scc1 L_exit0')
e(f's_getreg_b32 s{S_T3}, hwreg(HW_REG_XCC_ID)')
slot9()
e('s_waitcnt lgkmcnt(0)')
e(f's_cmp_lg_u32 s{S_WAVE}, 6'); e('s_cbranch_scc1 L_p1')
c('bring this workgroup\'s three exchange slots (12 lines) into the L2')
e(f's_mul_i32 s{S_T0}, s{S_T}, 4608')
e(f's_lshl_b32 s{S_T1}, s{S_K}, 9')
e(f's_add_u32 s{S_T0}, s{S_T0}, s{S_T1}')
e(f's_add_u32 s{S_T0}, s{S_T0}, {EXL}')
e('v_lshrrev_b32 v1, 2, v0')
e(f's_movk_i32 s{S_T1}, 4608')
e(f'v_mul_u32_u24 v1, s{S_T1}, v1')
e('v_and_b32 v2, 3, v0')
e('v_lshlrev_b32 v2, 7, v2')
e(f'v_add3_u32 v1, v1, v2, s{S_T0}')
e('s_mov_b64 exec, 0xfff')
e(f'global_load_dword v3, v1, {sp(WS)} sc1')
e('s_endpgm')
lab('L_p1')
e(f's_load_dword s{S_TAG}, {sp(WS)}, 0')
e(f's_and_b32 s{S_T3}, s{S_T3}, 7')
e(f's_lshl_b32 s{S_T3}, s{S_T3}, 12')
e(f's_add_u32 s{S_T3}, s{S_T3}, {BC}')
e(f's_add_u32 s{S_T2}, s{S_T3}, 4096')
e(f's_and_b32 s{S_T1}, s{S_WAVE}, 1')
e(f's_lshl_b32 s{S_T1}, s{S_T1}, 6')
e(f'v_lshl_add_u32 v4, v0, 2, s{S_T1}')
e(f's_lshl_b32 s{S_K}, s{S_K}, 7')
e(f's_add_u32 s{S_K}, s{S_K}, s{S_T1}')
e('v_mov_b32 v7, 0')
e('s_mov_b64 exec, 0xffff')
e('s_waitcnt lgkmcnt(0)')
e(f's_add_u32 s{S_TAG}, s{S_TAG}, 1')
stamp(1)
if NOP: e(f's_sleep {NOP}')
lab('L_p_poll')
e(f's_load_dwordx2 {sp(S_A)}, {sp(WS)}, s{S_T3}')
e(f's_add_u32 s{S_T3}, s{S_T3}, 64')
e(f's_cmp_ge_u32 s{S_T3}, s{S_T2}')
e('s_cbranch_scc1 L_p_slow')
e('s_waitcnt lgkmcnt(0)')
e(f's_cmp_lg_u32 s{S_A+1}, s{S_TAG}')
e('s_cbranch_scc1 L_p_poll')
lab('L_p_got')
e(f's_and_b32 s{S_A}, s{S_A}, 0x7ff')
e(f's_mul_i32 s{S_T0}, s{S_A}, 1152')
e(f's_add_u32 s{S_T0}, s{S_T0}, s{S_K}')
e(f's_load_dwordx16 s[{S_XS}:{S_XS+15}], {sp(X)}, s{S_T0}')
stamp(2)
e(f'v_mov_b32 v6, s{S_A}')
e(f'ds_write_b32 v7, v6 offset:{LDS_WIN}')
e('s_waitcnt lgkmcnt(0)')
stamp(3)
for d in range(16): e(f'v_writelane_b32 v5, s{S_XS+d}, {d}')
e(f'ds_write_b32 v4, v5 offset:{LDS_X}')
e('s_waitcnt lgkmcnt(0)')
stamp(4)
e('s_barrier')
lab('L_end')
endpgm()
lab('L_p_slow')
e(f'v_mov_b32 v6, {WING_}')
e(f's_mov_b32 s{S_CNT}, {SPIN}')
lab('L_p_slowpoll')
e(f'global_load_dwordx2 v[8:9], v6, {sp(WS)} sc1')
e('s_waitcnt vmcnt(0) lgkmcnt(0)')
e(f'v_readfirstlane_b32 s{S_A}, v8')
e(f'v_readfirstlane_b32 s{S_A+1}, v9')
e(f's_sub_u32 s{S_CNT}, s{S_CNT}, 1')
e('s_cbranch_scc1 L_p_got')
e(f's_cmp_lg_u32 s{S_A+1}, s{S_TAG}')
e('s_cbranch_scc1 L_p_slowpoll')
e('s_branch L_p_got')
lab('L_seg1_end')
e('.p2align 12')

lab('L_r2')
e(f'v_mov_b32 v{ACC}, 0'); e(f'v_mov_b32 v{ACC+1}, 0')
e('v_sub_u32 v6, 0xffff, v1')
if NU == 2: e('v_subrev_u32 v7, 8, v6')
e(f's_lshl_b32 s{S_T0}, s{S_XCD}, 8')
e(f's_lshl_b32 s{S_T3}, s{S_SLOT}, 3')
e(f's_add_u32 s{S_T0}, s{S_T0}, s{S_T3}')
e(f's_add_u32 s{S_T0}, s{S_T0}, {K1L+2048}')
e(f'v_mov_b32 v3, s{S_T0}')
e(f's_mov_b32 s{S_T2}, 0xffff0000')
for cc in range(9):
    e(f's_waitcnt vmcnt({NU*(8-cc)})')
    for d in range(4):
        for i in range(NU):
            a = ACC + i if NU == 2 else ACC + (d & 1)
            e(f'v_dot2c_f32_bf16 v{a}, v{XR+36*i+4*cc+d}, v{WW+4*cc+d}')
stamp(2)
e('s_waitcnt lgkmcnt(0)')
e(f's_add_u32 s{S_TAG}, s{S_TAG}, 1')
e(f'v_mov_b32 v{WW+1}, s{S_TAG}')
K0, K1 = WW+2, WW+3
if NU == 1:
    e(f'v_add_f32 v{ACC}, v{ACC}, v{ACC+1}'); e('s_nop 1')
for m in ['quad_perm:[1,0,3,2]', 'quad_perm:[2,3,0,1]', 'row_half_mirror']:
    for i in range(NU): dpp('v_add_f32', ACC+i, ACC+i, ACC+i, m)
    e(f's_nop {2-NU}')
cm = ['vcc', sp(S_A)]
for i in range(NU): e(f'v_cmp_o_f32 {cm[i]}, v{ACC+i}, v{ACC+i}')
for i in range(NU): e(f'v_cvt_pk_bf16_f32 v{K0+i}, v{ACC+i}, v{ACC+i}')
for i in range(NU): e(f'v_ashrrev_i32 v{WW+4+i}, 31, v{K0+i}')
for i in range(NU): e(f'v_or_b32 v{WW+4+i}, 0x80000000, v{WW+4+i}')
for i in range(NU): e(f'v_xor_b32 v{K0+i}, v{K0+i}, v{WW+4+i}')
for i in range(NU): e(f'v_cndmask_b32 v{K0+i}, 0, v{K0+i}, {cm[i]}')
if NU == 2:
    for i in range(NU): e(f'v_and_or_b32 v{K0+i}, v{K0+i}, s{S_T2}, v{6+i}')
    e(f'v_max_u32 v{WW}, v{K0}, v{K1}')
else:
    e(f'v_and_or_b32 v{WW}, v{K0}, s{S_T2}, v6')
wave_max_u32(WW, ('row_shr:8',))
e('s_mov_b32 exec_lo, 0'); e('s_brev_b32 exec_hi, 1')
e(f'global_store_dwordx2 v3, v[{WW}:{WW+1}], {sp(WS)} offset:-2048')
e(f'global_store_dwordx2 v3, v[{WW}:{WW+1}], {sp(WS)} offset:{K1G-K1L-2048} sc1')
e('s_mov_b64 exec, -1')
stamp(3)
if STAMP:
    e('s_waitcnt vmcnt(0)'); stamp(7)
if NU == 2: e(f'v_add_f32 v{ACC}, v{ACC}, v{ACC+1}')
e(f'v_mov_b32 v{K1}, 0x207')
e(f'v_cmp_class_f32 vcc, v{ACC}, v{K1}')
e('s_cbranch_vccnz L_r_fix')
lab('L_r_nofix')
def copy_rows():
    for i in range(NU):
        e(f's_mov_b64 exec, {cm[i]}')
        if CP == 'E': e(f's_cbranch_execz L_cp{copy_rows.n}')
        for cc in range(9):
            e(f'global_store_dwordx4 v{4+i}, v[{XR+36*i+4*cc}:{XR+36*i+4*cc+3}], {sp(OUT)} offset:{128*cc}{ONT}')
        if CP == 'E': lab(f'L_cp{copy_rows.n}')
        copy_rows.n += 1
copy_rows.n = 0
if CP == 'E':
    e(f'v_readlane_b32 s{S_KEY}, v{WW}, 63')
    e(f's_andn2_b32 s{S_KEY}, 0x7ff, s{S_KEY}')
    e(f'v_subrev_u32 v2, s{S_KEY}, v1')
    for i in range(NU): e(f'v_cmp_ne_u32 {cm[i]}, {-8*i}, v2')
    copy_rows()
    e('s_mov_b64 exec, -1')
    for i in range(NU): e(f's_not_b64 {cm[i]}, {cm[i]}')
    e('s_barrier')
    e('v_mov_b32 v2, 0')
    e(f'ds_read_b32 v2, v2 offset:{LDS_WIN}')
    e('s_waitcnt lgkmcnt(0)')
    e(f'v_readfirstlane_b32 s{S_T0}, v2')
    stamp(4)
    e(f's_cmp_eq_u32 s{S_T0}, s{S_KEY}')
    e('s_cbranch_scc1 L_r_end')
    copy_rows()
    lab('L_r_end')
else:
    e('s_barrier')
    e('v_mov_b32 v2, 0')
    e(f'ds_read_b32 v2, v2 offset:{LDS_WIN}')
    e('s_waitcnt lgkmcnt(0)')
    e('v_sub_u32 v2, v2, v1')
    for i in range(NU): e(f'v_cmp_ne_u32 {cm[i]}, {8*i}, v2')
    if CP == 'C': e('s_barrier')
    stamp(4)
    copy_rows()
if STAMP:
    stamp(5); e('s_waitcnt vmcnt(0)'); stamp(6)
endpgm()

lab('L_spare')
e(f's_getreg_b32 s{S_T3}, hwreg(HW_REG_XCC_ID)')
e(f's_sub_u32 s{S_T}, s2, 216')
e(f's_and_b32 s{S_T3}, s{S_T3}, 7')
e(f's_lshl_b32 s{S_T3}, s{S_T3}, 12')
e(f's_add_u32 s{S_T3}, s{S_T3}, {BC}')
e(f'v_lshl_add_u32 v3, v0, 6, s{S_T3}')
e('v_lshlrev_b32 v4, 4, v0')
c('level-2 lines of this spare: K2 + (8*spare + g)*128')
e(f's_lshl_b32 s{S_T0}, s{S_T}, 10')
e(f's_add_u32 s{S_T0}, s{S_T0}, {K2}')
e(f'v_and_b32 v41, {NG-1}, v0')
e(f'v_lshl_add_u32 v41, v41, 7, s{S_T0}')
e('s_waitcnt lgkmcnt(0)')
e(f's_load_dword s{S_TAG}, {sp(WS)}, 0')
e(f'global_load_dwordx2 v[8:9], v3, {sp(WS)} sc1')
e(f'global_load_dwordx2 v[8:9], v41, {sp(WS)} sc1')
e(f's_lshl_b32 s{S_T0}, s{S_T}, 2')
e(f's_add_u32 s{S_T0}, s{S_T0}, s{S_WAVE}')
e(f's_lshl_b32 s{S_T0}, s{S_T0}, 4')
e(f's_add_u32 s{S_T0}, s{S_T0}, {RDY}')
e(f'v_mov_b32 v43, s{S_T0}')
e('s_waitcnt lgkmcnt(0)')
e(f's_add_u32 s{S_TAG}, s{S_TAG}, 1')
e(f'v_mov_b32 v7, s{S_TAG}')
tag_bytes()
stamp(1)
e(f's_lshl_b32 s{S_T0}, s{S_WAVE}, 6')
e(f's_add_u32 s{S_T0}, s{S_T0}, s{S_T}')
e(f's_cmp_ge_u32 s{S_T0}, {NG}')
e('s_cbranch_scc1 L_s_l2')
c('level 1: the 32 keys of this group')
e(f's_lshl_b32 s{S_T0}, s{S_T}, 8')
e(f's_add_u32 s{S_T0}, s{S_T0}, {K1L}')
e('v_and_b32 v40, 31, v0')
e(f'v_lshl_add_u32 v40, v40, 3, s{S_T0}')
e(f's_lshl_b32 s{S_T0}, s{S_T}, 7')
e(f's_add_u32 s{S_T0}, s{S_T0}, {K2}')
e(f'v_lshl_add_u32 v42, v0, 10, s{S_T0}')
e(f's_mov_b32 s{S_CNT}, 0')
lab('L_s_poll1')
e(f'global_load_dwordx2 v[8:9], v40, {sp(WS)} sc1')
e(f's_add_u32 s{S_CNT}, s{S_CNT}, 1')
e(f's_cmp_lg_u32 s{S_CNT}, {LOCN}')
e('s_cbranch_scc1 L_s_same1')
e(f'v_add_u32 v40, {K1G-K1L}, v40')
lab('L_s_same1')
e(f's_cmp_gt_u32 s{S_CNT}, {SPIN}')
e('s_cbranch_scc1 L_s_got1')
e('s_waitcnt vmcnt(0)')
e(f'v_cmp_ne_u32 vcc, s{S_TAG}, v9')
e('s_cbranch_vccnz L_s_poll1')
lab('L_s_got1')
e('s_waitcnt vmcnt(0)')
stamp(7)
for m in ('row_ror:1', 'row_ror:2', 'row_ror:4', 'row_ror:8'):
    dpp('v_max_u32', 8, 8, 8, m); e('s_nop 1')
e('v_mov_b32 v6, v8')
e('s_nop 1')
e('v_permlane16_swap_b32 v6, v8')
e('s_mov_b32 exec_hi, 0xff')
e('v_max_u32 v6, v6, v8')
e(f'global_store_dwordx2 v42, v[6:7], {sp(WS)} sc1')
e('s_mov_b32 exec_hi, -1')
lab('L_s_l2')
e(f's_mov_b32 s{S_CNT}, {SPIN}')
lab('L_s_poll')
e(f'global_load_dwordx2 v[8:9], v41, {sp(WS)} sc1')
e(f's_sub_u32 s{S_CNT}, s{S_CNT}, 1')
e('s_cbranch_scc1 L_s_got')
e('s_waitcnt vmcnt(0)')
e(f'v_cmp_ne_u32 vcc, s{S_TAG}, v9')
e('s_cbranch_vccnz L_s_poll')
lab('L_s_got')
e('s_waitcnt vmcnt(0)')
stamp(2)
for m in ('quad_perm:[1,0,3,2]', 'quad_perm:[2,3,0,1]', 'row_half_mirror')[:NG.bit_length()-1]:
    dpp('v_max_u32', 8, 8, 8, m); e('s_nop 1')
e('v_min_u32 v5, 8, v0')
e(f'v_readfirstlane_b32 s{S_KEY}, v8')
e(f's_andn2_b32 s{S_T0}, 0x7ff, s{S_KEY}')
e(f's_mul_i32 s{S_T1}, s{S_T0}, 1152')
e(f'v_mov_b32 v6, s{S_T0}')
e(f'v_lshl_add_u32 v5, v5, 7, s{S_T1}')
e(f'global_load_dword v39, v5, {sp(X)}')
e(f'global_store_dwordx2 v3, v[6:7], {sp(WS)}')
e(f'v_mov_b32 v5, {WING_}')
e('v_mov_b32 v13, 0')
e(f'ds_write_b32 v13, v6 offset:{LDS_WIN}')
stamp(3)
e('s_mov_b64 exec, 1')
e(f'global_store_dword v43, v7, {sp(WS)} sc1')
e(f's_cmp_lg_u32 s{S_T}, 39')
e('s_cbranch_scc1 L_s_nog')
e(f'global_store_dwordx2 v5, v[6:7], {sp(WS)} sc1')
lab('L_s_nog')
e('s_mov_b64 exec, -1')
L.append(';;WARMSPOT')
e('s_waitcnt lgkmcnt(0)')
e('s_barrier')
if CP == 'C': e('s_barrier')
e(f's_cmp_ge_u32 s{S_T}, 36')
e('s_cbranch_scc1 L_s_end')
e('v_lshrrev_b32 v5, 4, v0')
e('v_bfrev_b32 v5, v5')
e('v_lshrrev_b32 v5, 30, v5')
e('v_and_b32 v6, 3, v0')
e('v_lshl_add_u32 v5, v6, 2, v5')
e(f's_lshl_b32 s{S_T2}, s{S_T}, 5')
e(f's_add_u32 s{S_T1}, s{S_T1}, s{S_T2}')
e(f'v_lshl_add_u32 v5, v5, 1, s{S_T1}')
e(f'global_load_ushort v6, v5, {sp(X)}')
e(f's_and_b32 s{S_T1}, s{S_KEY}, 0xffff0000')
e(f's_ashr_i32 s{S_T2}, s{S_T1}, 31')
e(f's_not_b32 s{S_T2}, s{S_T2}')
e(f's_or_b32 s{S_T2}, s{S_T2}, 0x80000000')
e(f's_xor_b32 s{S_T1}, s{S_T1}, s{S_T2}')
e(f's_and_b32 s{S_T1}, s{S_T1}, 0xffff0000')
e(f'v_mov_b32 v12, s{S_T1}')
e('v_mul_f32 v12, 0xbfb8aa3b, v12')
e('v_exp_f32 v12, v12')
if FINL == 'A':
    e(f's_mul_i32 s{S_T0}, s{S_T}, 4608')
    e(f's_add_u32 s{S_T0}, s{S_T0}, {FIN+2048}')
    e(f'v_add_u32 v4, s{S_T0}, v4')
    fa = [(4, 1024*i-2048) for i in range(5)]
else:
    e('v_lshrrev_b32 v1, 2, v0')
    e(f's_movk_i32 s{S_T0}, 2304')
    e(f'v_mul_u32_u24 v1, s{S_T0}, v1')
    e('v_and_b32 v2, 48, v4')
    e(f's_lshl_b32 s{S_T0}, s{S_T}, 6')
    e(f's_add_u32 s{S_T0}, s{S_T0}, {FIN}')
    e(f'v_add3_u32 v40, v1, v2, s{S_T0}')
    for i in range(1, 5): e(f'v_add_u32 v{40+i}, {16*2304*i}, v40')
    fa = [(40+i, 0) for i in range(5)]
e('v_add_f32 v12, 1.0, v12')
e('v_rcp_f32 v12, v12')
e('s_nop 0')
bf16r(12, 12)
e(f's_or_b32 s{S_K}, s{S_T}, s{S_WAVE}')
e('s_cbranch_scc1 L_s_fin')
e('v_min_u32 v13, 39, v0')
e('v_lshlrev_b32 v13, 6, v13')
e(f'v_add_u32 v13, {RDY}, v13')
e(f's_mov_b32 s{S_CNT}, {SPIN}')
lab('L_s_rdy')
for i in range(NRW): e(f'global_load_dword v{16+i}, v13, {sp(WS)} offset:{16*i} sc1')
e(f's_sub_u32 s{S_CNT}, s{S_CNT}, 1')
e('s_cbranch_scc1 L_s_fin')
e('s_waitcnt vmcnt(0)')
for i in range(NRW):
    e(f'v_cmp_ne_u32 vcc, s{S_TAG}, v{16+i}')
    e('s_cbranch_vccnz L_s_rdy')
lab('L_s_fin')
L.append(';;WARMSPOT')
PR = 16
e(f's_mov_b32 s{S_CNT}, {SPIN}')
lab('L_f_poll')
five_loads(PR, fa)
e(f's_sub_u32 s{S_CNT}, s{S_CNT}, 1')
e('s_cbranch_scc1 L_f_got')
five_check(PR, 38)
e('s_cbranch_vccnz L_f_poll')
lab('L_f_got')
stamp(4)
e(f'v_permlane32_swap_b32 v{PR}, v{PR+1}')
e(f'v_permlane32_swap_b32 v{PR+2}, v{PR+3}')
e('v_lshlrev_b32 v6, 16, v6')
e(f'v_add_f32 v{PR}, v{PR}, v{PR+1}')
e(f'v_add_f32 v{PR+2}, v{PR+2}, v{PR+3}')
e('s_nop 1')
e(f'v_permlane16_swap_b32 v{PR}, v{PR+2}')
e('s_nop 0')
e(f'v_add_f32 v{PR}, v{PR}, v{PR+2}')
e('s_nop 1')
dpp('v_add_f32', PR, PR, PR, 'row_ror:4')
e('s_nop 1')
dpp('v_add_f32', PR, PR, PR, 'row_ror:8')
bf16r(PR, PR)
e(f'v_mul_f32 v{PR}, v{PR}, v12')
bf16r(PR, PR)
e(f'v_fma_f32 v{PR}, v6, 0, v{PR}')
e(f'v_add_f32 v{PR}, v6, v{PR}')
e(f'v_cvt_pk_bf16_f32 v{PR}, v{PR}, v{PR}')
e('s_mov_b32 exec_lo, 0x000f000f'); e('s_mov_b32 exec_hi, 0x000f000f')
e(f'global_store_short v5, v{PR}, {sp(OUT)}')
stamp(5)
e(f's_cmp_lg_u32 s{S_K}, 0')
e('s_cbranch_scc1 L_s_end')
e('s_mov_b64 exec, 1')
e('v_mov_b32 v13, 0')
e(f'global_store_dword v13, v7, {sp(WS)} sc1')
lab('L_s_end')
if STAMP:
    e('s_waitcnt vmcnt(0)'); stamp(6)
if DIAG:
    e(f's_cmp_lg_u32 s{S_T}, {int(DIAG)}'); e('s_cbranch_scc1 L_exit')
    e('s_memrealtime s[72:73]'); e('s_waitcnt lgkmcnt(0)')
    e('s_sub_u32 s74, s72, s76'); e('s_min_u32 s74, s74, 5000'); e('s_mul_i32 s74, s74, 10'); e('s_add_u32 s74, s74, s72')
    lab('L_dspin')
    e('s_memrealtime s[72:73]'); e('s_waitcnt lgkmcnt(0)')
    e('s_sub_u32 s75, s74, s72'); e('s_cmp_gt_i32 s75, 0'); e('s_cbranch_scc1 L_dspin')
endpgm()
lab('L_exit')
e('s_endpgm')

if STAMP:
    lab('L_flush')
    e('s_waitcnt vmcnt(0) lgkmcnt(0)')
    e('s_mov_b64 exec, 1')
    e(f's_lshl_b32 s{S_T0}, s2, 4'); e(f's_add_u32 s{S_T0}, s{S_T0}, s{S_WAVE}')
    e(f's_lshl_b32 s{S_T0}, s{S_T0}, 6'); e(f's_add_u32 s{S_T0}, s{S_T0}, 0x8000000')
    e(f'v_mov_b32 v2, s{S_T0}')
    for i in range(4):
        for k in range(4): e(f'v_mov_b32 v{4+k}, s{S_ST+4*i+k}')
        e(f'global_store_dwordx4 v2, v[4:7], {sp(WS)} offset:{16*i}'); e('s_nop 1')
    e('s_endpgm')

lab('L_r_fix')
c('rare path: x + x*0 turns an infinity into a NaN')
e(f's_mov_b32 s{S_SELHI}, 0x07060302')
for d in range(36*NU):
    r = XR + d
    e(f'v_lshlrev_b32 v{K0}, 16, v{r}')
    e(f'v_and_b32 v{K1}, s{S_T2}, v{r}')
    e(f'v_fma_f32 v{K0}, v{K0}, 0, v{K0}')
    e(f'v_fma_f32 v{K1}, v{K1}, 0, v{K1}')
    e(f'v_perm_b32 v{r}, v{K1}, v{K0}, s{S_SELHI}')
e('s_branch L_r_nofix')

hdr = f'''; MoD (mixture-of-depths, capacity 1) router + SwiGLU FFN on the routed token, one launch.
; @launch grid=(256,1,1) block=(448,1,1) lds={LDS_BYTES}
.amdgcn_target "amdgcn-amd-amdhsa--gfx950"
.text
.globl standalone__moe_arch_mod__prompt_kernel
.p2align 12
.fill {(4096-768)//4}, 4, 0xBF800000
.p2align 8
.type standalone__moe_arch_mod__prompt_kernel,@function
standalone__moe_arch_mod__prompt_kernel:'''
tail = '''.section .rodata,"a"
.p2align 6
.amdhsa_kernel standalone__moe_arch_mod__prompt_kernel
  .amdhsa_next_free_vgpr 184
  .amdhsa_next_free_sgpr 96
  .amdhsa_accum_offset 184
  .amdhsa_group_segment_fixed_size 0
  .amdhsa_kernarg_size 64
  .amdhsa_user_sgpr_count 2
  .amdhsa_user_sgpr_kernarg_segment_ptr 1
  .amdhsa_system_sgpr_workgroup_id_x 1
  .amdhsa_float_denorm_mode_32 3
.end_amdhsa_kernel
'''
def offsets(lines):
    out = []; k = 0
    for ln in lines:
        if ln.startswith(';;WARM'): out.append(f'MK{k}:'); k += 1
        else: out.append(ln)
    src = hdr.replace('.fill 832,', '.fill 1024,') + '\n' + '\n'.join(out) + '\nL_warm1:\nL_warm2:\nL_warm3:\n' + tail
    d = tempfile.mkdtemp()
    open(d + '/a.s', 'w').write(src)
    subprocess.run(['clang', '-x', 'assembler', '-target', 'amdgcn-amd-amdhsa', '-mcpu=gfx950', '-c', d + '/a.s', '-o', d + '/a.o'], check=True)
    t = subprocess.run(['llvm-objdump', '-t', d + '/a.o'], capture_output=True, text=True).stdout
    sy = {m.group(2): int(m.group(1), 16) for m in re.finditer(r'^([0-9a-f]{16}) .*\.text\s+[0-9a-f]+ (?:\.protected |\.hidden )?(\S+)$', t, re.M)}
    base = sy['standalone__moe_arch_mod__prompt_kernel']
    return {n: v - base for n, v in sy.items()}
offs = offsets(L)
marks = [(i, ln) for i, ln in enumerate(L) if ln.startswith(';;WARM')]
mo = [offs[f'MK{k}'] for k in range(len(marks))]
chosen = []
segs = [(0, offs['L_p']), (offs['L_p'], offs['L_p_slow']), (offs['L_r2'], offs['L_spare']), (offs['L_spare'], offs['L_s_end'])]
shift = 0
for (a, b) in segs:
    if a == offs['L_r2']: shift = 0
    covered = ((a + shift) // 64) * 64 + 1088
    while covered < b + shift + 8:
        cand = [k for k in range(len(marks)) if a <= mo[k] < b and mo[k] + shift + 4 < covered + 64 and (not chosen or k > chosen[-1])]
        assert cand, (covered, mo, segs)
        k = cand[-1]
        sp4 = marks[k][1].startswith(';;WARMSPOT')
        pos = mo[k] + shift + (4 if sp4 else 0)
        chosen.append(k); shift += 8 if sp4 else 4
        nc = (pos // 64) * 64 + 1088
        assert nc > covered, (nc, covered, mo)
        covered = nc
assert offs['L_seg1_end'] + 32 < 4096
names = {k: n + 1 for n, k in enumerate(chosen)}
nst = len(chosen)
outl = []; k = 0
for ln in L:
    if ln.startswith(';;WARM'):
        if k in names:
            n = names[k]
            tgt = f'L_warm{n+3}' if n + 3 <= nst else 'L_p'
            if ln.startswith(';;WARMSPOT'): outl.append(f'    s_branch L_skip{n}')
            outl.append(f'L_warm{n}:'); outl.append(f'    s_branch {tgt}')
            if ln.startswith(';;WARMSPOT'): outl.append(f'L_skip{n}:')
        k += 1
    elif ln == 'L_p:':
        for n in range(nst + 1, 4): outl.append(f'L_warm{n}:')
        outl.append(ln)
    else: outl.append(ln)
sys.stderr.write(f'chosen {[mo[k] for k in chosen]} ' + ' '.join(f'{n}={v}' for n, v in sorted(offs.items(), key=lambda x: x[1]) if n in ('L_w','L_w_poll','L_p','L_seg1_end','L_r2','L_spare','L_s_fin','L_s_end','L_exit')) + '\n')
print(hdr); print('\n'.join(outl)); print(tail)
```

```python
import sys, subprocess, re, tempfile
def opt(name, d):
    a = sys.argv
    return type(d)(a[a.index(name)+1]) if name in a else d
def mod(name, d):
    v = opt(name, d); return '' if v == '-' else ' ' + v.replace('+', ' ')
STAMP = '--stamp' in sys.argv
WING = opt('--wing', 8); WIND = opt('--wind', 10); WIN0 = opt('--win0', 6)
NT = mod('--nt', 'nt'); XNT = mod('--xnt', '-'); ONT = mod('--ont', '-')
CP = opt('--cp', 'D')
DIAG = opt('--diag', -1)
HOLD = opt('--hold', 1); WLAST = opt('--wlast', 0); LIGHT = opt('--light', 0)
WLDS = opt('--wlds', 1); TLB = opt('--tlb', 0); ACK = opt('--ack', 0)
K1SH = opt('--k1sh', 7)
SPIN = 100000
LOCN = opt('--locn', 60)

L = []
def e(s): L.append('    ' + s)
def lab(s): L.append(s + ':')
def c(s): L.append('    ; ' + s)
X, WR, WG, WU, WD, OUT, DBG, WS = 4, 6, 8, 10, 12, 14, 16, 18
def sp(n): return f's[{n}:{n+1}]'
S_WAVE, S_XCD, S_SLOT = 20, 21, 22
S_T0, S_T1, S_T2, S_T3 = 23, 24, 25, 26
S_SELLO, S_SELHI = 27, 28
S_CNT, S_TAG, S_T, S_K = 29, 30, 31, 32
S_XCC = 33
S_A, S_B = 34, 36
S_TB = 38; S_PS = 42
S_M = 46
S_XS = 48
S_ST = 80
K1L, K1G, WIN_G, ACCU, BC, K2, EXL, EXG = 0x20000, 0x30000, 0x3000, 0x4000, 0x8000, 0x10000, 0x100000, 0x180000
LDS_X, LDS_WIN, LDS_P = 0, 128, 256
LDS_W = 2048
LDS_BYTES = 3328

def stamp(i):
    if STAMP: e(f's_memrealtime s[{S_ST+2*i}:{S_ST+2*i+1}]')
def endpgm():
    e('s_branch L_flush' if STAMP else 's_endpgm')
def dpp(op, d, a, b, m, rm='0xf'):
    e(f'{op}_dpp v{d}, v{a}, v{b} {m} row_mask:{rm} bank_mask:0xf')
def mdpp(d, a, m, rm='0xf'):
    e(f'v_mov_b32_dpp v{d}, v{a} {m} row_mask:{rm} bank_mask:0xf')
def perms(raw, T, p):
    for j in range(8):
        sel = S_SELHI if (j & 1) else S_SELLO
        e(f'v_perm_b32 v{T+4*j+p}, v{raw+4*(2*p+1)+j//2}, v{raw+4*(2*p)+j//2}, s{sel}')
def bf16r(d, s):
    e(f'v_cvt_pk_bf16_f32 v{d}, v{s}, v{s}'); e(f'v_lshlrev_b32 v{d}, 16, v{d}')
def slot9():
    e(f's_mul_i32 s{S_T0}, s{S_SLOT}, 57')
    e(f's_lshr_b32 s{S_T0}, s{S_T0}, 9')
    e(f's_mul_i32 s{S_K}, s{S_T0}, 9')
    e(f's_sub_u32 s{S_K}, s{S_SLOT}, s{S_K}')
    e(f's_mul_i32 s{S_T}, s{S_XCD}, 3')
    e(f's_add_u32 s{S_T}, s{S_T}, s{S_T0}')
    e(f's_mul_i32 s{S_T}, s{S_T}, 3')
def getxcc(): e(f's_getreg_b32 s{S_XCC}, hwreg(HW_REG_XCC_ID, 0, 3)')

e('s_cmp_ge_u32 s2, 256')
e('s_cbranch_scc1 L_exit0')
e('s_load_dwordx16 s[4:19], s[0:1], 0')
stamp(0)
if DIAG >= 0: e('s_memrealtime s[76:77]')
e(f'v_readfirstlane_b32 s{S_WAVE}, v0')
e('v_and_b32 v0, 63, v0')
e(f's_and_b32 s{S_XCD}, s2, 7')
e(f's_lshr_b32 s{S_SLOT}, s2, 3')
e(f's_lshr_b32 s{S_WAVE}, s{S_WAVE}, 6')
if STAMP:
    for i in range(1, 8): e(f's_mov_b64 s[{S_ST+2*i}:{S_ST+2*i+1}], 0')
e(f's_cmp_lt_u32 s{S_WAVE}, 4'); e('s_cbranch_scc1 L_notp')
e('s_barrier')
e(f's_cmp_eq_u32 s{S_WAVE}, 4'); e('s_cbranch_scc1 L_warm1')
e(f's_cmp_eq_u32 s{S_WAVE}, 5'); e('s_cbranch_scc1 L_warm2')
e('s_branch L_warm3')
lab('L_spare0')
e(f's_cmp_lg_u32 s{S_WAVE}, 0'); e('s_cbranch_scc1 L_exit0')
c('spare: bring the hand-off lines into this L2 before anything else')
getxcc()
e(f's_sub_u32 s{S_T}, s2, 216')
e(f's_lshl_b32 s{S_T1}, s{S_XCD}, {6+K1SH}')
e(f's_add_u32 s{S_T1}, s{S_T1}, {K1L}')
e('v_min_u32 v40, 35, v0')
e(f'v_lshl_add_u32 v40, v40, {K1SH}, s{S_T1}')
e(f's_lshl_b32 s{S_T0}, s{S_T}, 10')
e(f's_add_u32 s{S_T0}, s{S_T0}, {K2}')
e('v_and_b32 v41, 7, v0')
e(f'v_lshl_add_u32 v41, v41, 7, s{S_T0}')
e(f's_lshl_b32 s{S_T3}, s{S_XCC}, 12')
e(f's_add_u32 s{S_T3}, s{S_T3}, {BC}')
e(f'v_lshl_add_u32 v3, v0, 6, s{S_T3}')
e('s_waitcnt lgkmcnt(0)')
e(f's_load_dword s{S_TAG}, {sp(WS)}, 0')
e(f's_cmp_lt_u32 s{S_T}, 32')
e('s_cbranch_scc1 L_s_noclr')
c('the last spare of each group clears 9 accumulator lines before it reports in')
e(f's_mul_i32 s{S_T0}, s{S_XCD}, {9*128}')
e(f's_addk_i32 s{S_T0}, {ACCU}')
e(f'v_lshl_add_u32 v1, v0, 4, s{S_T0}')
e('v_mov_b64 v[12:13], 0'); e('v_mov_b64 v[14:15], 0')
e(f'global_store_dwordx4 v1, v[12:15], {sp(WS)} sc1')
e(f'global_store_dwordx4 v1, v[12:15], {sp(WS)} offset:128 sc1')
lab('L_s_noclr')
e(f'global_load_dwordx2 v[8:9], v40, {sp(WS)} sc1')
e(f'global_load_dwordx2 v[8:9], v41, {sp(WS)} sc1')
e(f'global_load_dwordx2 v[8:9], v3, {sp(WS)} sc1')
e('s_barrier')
e('s_branch L_spare')
lab('L_exit0')
e('s_endpgm')
lab('L_notp')
e(f's_cmp_lg_u32 s{S_WAVE}, 3'); e('s_cbranch_scc1 L_w')

XR, WW, ACC = 8, 44, 80
c('router wave: rows 8*wg + (l>>3), bytes 128c + 16*(l&7)')
e(f's_lshl_b32 s{S_T1}, s2, 3')
e('v_lshrrev_b32 v1, 3, v0')
e(f'v_add_u32 v1, s{S_T1}, v1')
e('v_and_b32 v2, 7, v0')
e('v_lshlrev_b32 v2, 4, v2')
e(f's_movk_i32 s{S_T2}, 1152')
e(f'v_mad_u32_u24 v4, v1, s{S_T2}, v2')
if WLDS:
    e('v_lshlrev_b32 v5, 4, v0')
    e(f's_movk_i32 m0, {LDS_W}')
e('s_waitcnt lgkmcnt(0)')
def wl():
    if WLDS:
        e(f'global_load_lds_dwordx4 v5, {sp(WR)}')
        e('s_mov_b64 exec, 0xff')
        e(f'global_load_lds_dwordx4 v5, {sp(WR)} offset:1024')
        e('s_mov_b64 exec, -1')
        return
    for cc in range(9): e(f'global_load_dwordx4 v[{WW+4*cc}:{WW+4*cc+3}], v2, {sp(WR)} offset:{128*cc}')
if not WLAST: wl()
for cc in range(9): e(f'global_load_dwordx4 v[{XR+4*cc}:{XR+4*cc+3}], v4, {sp(X)} offset:{128*cc}{XNT}')
if WLAST: wl()
e(f's_load_dword s{S_TAG}, {sp(WS)}, 0')
e('s_barrier')
stamp(1)
e('s_branch L_r2')

lab('L_w')
e(f's_cmp_ge_u32 s{S_SLOT}, 27'); e('s_cbranch_scc1 L_spare0')
RAW, TX, DA, AF = 16, 112, 144, 176
slot9()
e(f's_add_u32 s{S_T}, s{S_T}, s{S_WAVE}')
c('G: row = 64k + 32u + 8*(l>>4) + e ; col bytes = 128c + 16*(l&7) ; matrix = (l>>3)&1')
e('v_lshrrev_b32 v8, 4, v0')
e(f's_lshl_b32 s{S_T0}, s{S_K}, 3')
e(f'v_add_u32 v1, s{S_T0}, v8')
e(f's_mov_b32 s{S_T1}, {8*9216}')
e(f'v_mul_lo_u32 v1, v1, s{S_T1}')
e('v_and_b32 v9, 7, v0')
e('v_lshlrev_b32 v9, 4, v9')
e(f's_lshl_b32 s{S_T2}, s{S_T}, 7')
e(f'v_add3_u32 v1, v1, v9, s{S_T2}')
e('v_and_b32 v10, 8, v0')
e('v_cmp_ne_u32 vcc, 0, v10')
e(f's_mov_b32 s{S_A}, 9216'); e(f's_mov_b32 s{S_A+1}, 0')
e(f's_mov_b32 s{S_B}, {25*9216}'); e(f's_mov_b32 s{S_B+1}, 0')
e('s_waitcnt lgkmcnt(0)')
e(f'v_mov_b32 v2, s{WG}'); e(f'v_mov_b32 v3, s{WG+1}')
e(f'v_mov_b32 v4, s{WU}'); e(f'v_mov_b32 v5, s{WU+1}')
e('v_cndmask_b32 v2, v2, v4, vcc'); e('v_cndmask_b32 v3, v3, v5, vcc')
e('v_add_co_u32 v2, vcc, v2, v1')
e(f's_load_dword s{S_TAG}, {sp(WS)}, 0')
e('s_barrier')
e('v_addc_co_u32 v3, vcc, 0, v3, vcc')
DOFF = [-2880, -1728, 1728, 2880]
def wload(n):
    if n < 16:
        e(f'global_load_dwordx4 v[{RAW+4*n}:{RAW+4*n+3}], v[2:3], off{NT}')
        if n < 15: e(f'v_lshl_add_u64 v[2:3], v[2:3], 0, {sp(S_B if n == 7 else S_A)}')
    else:
        r = n - 16
        e(f'global_load_dwordx4 v[{RAW+4*n}:{RAW+4*n+3}], v{6+r//4}, {sp(WD)} offset:{DOFF[r%4]}{NT}')
TG = [TX, RAW]; TD = RAW + 32
def gperm(pair): perms(RAW + 32*(pair//4), TG[pair//4], pair % 4)
for n in range(WIN0): wload(n)
c('D: row = 64c + 32*(kg&1) + 16*m + 2*(kg>>1) + {0,1,4,5,8,9,12,13} ; col bytes = 128k + 16q')
e('v_and_b32 v6, 24, v0')
e('v_lshlrev_b32 v6, 1, v6')
e('v_lshrrev_b32 v7, 5, v0')
e('v_lshl_add_u32 v6, v7, 1, v6')
e(f's_lshl_b32 s{S_T0}, s{S_T}, 6')
e(f'v_add_u32 v6, s{S_T0}, v6')
e(f's_movk_i32 s{S_T1}, 1152')
e(f'v_mul_lo_u32 v6, v6, s{S_T1}')
e(f's_lshl_b32 s{S_T3}, s{S_K}, 7')
e(f's_add_u32 s{S_T3}, s{S_T3}, 2880')
e(f'v_add3_u32 v6, v6, v9, s{S_T3}')
e('v_add_u32 v7, 9216, v6')
e(f's_mov_b32 s{S_SELLO}, 0x05040100')
e(f's_mov_b32 s{S_SELHI}, 0x07060302')
c('A-fragment LDS address, exchange addresses, partial LDS address')
e('v_lshlrev_b32 v11, 4, v8')
e(f's_mul_i32 s{S_T0}, s{S_T}, 4608')
e(f's_add_u32 s{S_T0}, s{S_T0}, {EXL+2048}')
e(f'v_lshl_add_u32 v13, v0, 4, s{S_T0}')
e(f's_lshl_b32 s{S_T1}, s{S_K}, 9')
e(f's_add_u32 s{S_T0}, s{S_T0}, s{S_T1}')
e(f's_sub_u32 s{S_T0}, s{S_T0}, 2048')
e('v_and_b32 v12, 4, v0'); e('v_lshlrev_b32 v12, 6, v12')
e('v_lshl_add_u32 v12, v10, 4, v12')
e('v_and_b32 v14, 3, v0'); e('v_lshl_add_u32 v12, v14, 5, v12')
e(f'v_add3_u32 v12, v12, v11, s{S_T0}')
e(f'v_cmp_eq_u32 {sp(S_M)}, 0, v10')
e(f's_lshl_b32 s{S_T0}, s{S_WAVE}, 9')
e('v_lshlrev_b32 v14, 5, v10')
e('v_lshl_add_u32 v14, v9, 1, v14')
e(f'v_add_u32 v14, s{S_T0}, v14')
getxcc()
for i in range(4): e(f's_mov_b32 s{S_PS+i}, {0x07060500+i:#x}')
L.append(';;WARMSPOT')
e('s_waitcnt lgkmcnt(0)')
e(f's_add_u32 s{S_TAG}, s{S_TAG}, 1')
e(f's_lshl_b32 s{S_T0}, s{S_XCC}, 24')
e(f's_xor_b32 s{S_TAG}, s{S_TAG}, s{S_T0}')
for i in range(4): e(f's_bfe_u32 s{S_TB+i}, s{S_TAG}, {(8<<16)|(8*i)}')
e(f'v_mov_b32 v15, s{S_TAG}')
if HOLD: e('s_barrier')
stamp(1)
done_pairs = 0; got = 0
for n in range(WIN0, 24):
    w = WING if n < 16 else WIND
    need = n - w + 1
    if need > got:
        e(f's_waitcnt vmcnt({w-1})'); got = need
    wload(n)
    while done_pairs < 8 and 2*done_pairs + 2 <= got:
        gperm(done_pairs); done_pairs += 1
    L.append(';;WARMSPOT')
while done_pairs < 4:
    e(f's_waitcnt vmcnt({24 - (2*done_pairs+2)})'); gperm(done_pairs); done_pairs += 1
stamp(2)
e('s_barrier')
e(f'ds_read_b128 v[{AF}:{AF+3}], v11 offset:{LDS_X}')
e(f'ds_read_b128 v[{AF+4}:{AF+7}], v11 offset:{LDS_X+64}')
e('s_waitcnt lgkmcnt(0)' if STAMP else 's_waitcnt lgkmcnt(1)')
stamp(3)
JO = (0, 4, 1, 5, 2, 6, 3, 7)
for j in JO:
    e(f'v_mfma_f32_16x16x32_bf16 v[{DA+4*j}:{DA+4*j+3}], v[{AF}:{AF+3}], v[{TG[0]+4*j}:{TG[0]+4*j+3}], 0')
while done_pairs < 8:
    e(f's_waitcnt vmcnt({24 - (2*done_pairs+2)})'); gperm(done_pairs); done_pairs += 1
e('s_waitcnt lgkmcnt(0)')
for j in JO:
    e(f'v_mfma_f32_16x16x32_bf16 v[{DA+4*j}:{DA+4*j+3}], v[{AF+4}:{AF+7}], v[{TG[1]+4*j}:{TG[1]+4*j+3}], v[{DA+4*j}:{DA+4*j+3}]')
EX = TX
e('s_nop 1')
for j in range(4):
    mdpp(DA+4*j, DA+4*j+16, 'quad_perm:[0,1,2,3]', '0x2')
    e(f'v_perm_b32 v{AF+j}, v{DA+4*j}, v15, s{S_PS+j}')
e('s_mov_b32 exec_hi, 0')
e(f'global_store_dwordx4 v12, v[{AF}:{AF+3}], {sp(WS)}')
e('s_mov_b32 exec_hi, -1')
stamp(4)
L.append(';;WARMSPOT')
for p in range(3):
    e(f's_waitcnt vmcnt({7-2*p})'); perms(RAW+64, TD, p)
def five_loads():
    for i in range(4):
        e(f'global_load_dwordx4 v[{EX+4*i}:{EX+4*i+3}], v13, {sp(WS)} offset:{1024*i-2048} sc1')
    e('s_mov_b32 exec_hi, 0')
    e(f'global_load_dwordx4 v[{EX+16}:{EX+19}], v13, {sp(WS)} offset:2048 sc1')
    e('s_mov_b32 exec_hi, -1')
five_loads()
e('s_waitcnt vmcnt(6)'); perms(RAW+64, TD, 3)
stamp(5)
e(f's_mov_b32 s{S_CNT}, 0')
e('s_branch L_w_chk')
L.append(';;WARMFREE')
lab('L_w_poll')
e(f's_add_u32 s{S_CNT}, s{S_CNT}, 1')
e(f's_cmp_ge_u32 s{S_CNT}, {LOCN}')
e('s_cbranch_scc1 L_w_far')
lab('L_w_same')
five_loads()
lab('L_w_chk')
M = EX + 20
for i in range(5):
    e(f's_waitcnt vmcnt({4-i})')
    if i == 4: e('s_mov_b32 exec_hi, 0')
    for d in range(4): e(f'v_xor_b32 v{EX+4*i+d}, s{S_TB+d}, v{EX+4*i+d}')
    if i == 0: e(f'v_or_b32 v{M}, v{EX}, v{EX+1}')
    else: e(f'v_or3_b32 v{M}, v{M}, v{EX+4*i}, v{EX+4*i+1}')
    e(f'v_or3_b32 v{M}, v{M}, v{EX+4*i+2}, v{EX+4*i+3}')
    if i > 0:
        e(f'v_pk_add_f32 v[{EX}:{EX+1}], v[{EX}:{EX+1}], v[{EX+4*i}:{EX+4*i+1}]')
        e(f'v_pk_add_f32 v[{EX+2}:{EX+3}], v[{EX+2}:{EX+3}], v[{EX+4*i+2}:{EX+4*i+3}]')
e('s_mov_b32 exec_hi, -1')
e(f'v_and_b32 v{M}, 0xff, v{M}')
e(f'v_cmp_ne_u32 vcc, 0, v{M}')
e('s_cbranch_vccnz L_w_poll')
lab('L_w_go')
stamp(6)
a0, a1, t0, t1 = EX, EX+1, EX+4, EX+5
e(f'v_permlane32_swap_b32 v{EX}, v{EX+2}')
e(f'v_permlane32_swap_b32 v{EX+1}, v{EX+3}')
e(f'v_pk_add_f32 v[{EX}:{EX+1}], v[{EX}:{EX+1}], v[{EX+2}:{EX+3}]')
e(f'v_cvt_pk_bf16_f32 v{EX+2}, v{a0}, v{a1}')
e(f'v_lshlrev_b32 v{a0}, 16, v{EX+2}')
e(f'v_and_b32 v{a1}, 0xffff0000, v{EX+2}')
e(f'v_mul_f32 v{t0}, 0xbfb8aa3b, v{a0}')
e(f'v_mul_f32 v{t1}, 0xbfb8aa3b, v{a1}')
e(f'v_exp_f32 v{t0}, v{t0}')
e(f'v_exp_f32 v{t1}, v{t1}')
e('s_nop 0')
e(f'v_pk_add_f32 v[{t0}:{t1}], v[{t0}:{t1}], 1.0 op_sel_hi:[1,0]')
e(f'v_rcp_f32 v{t0}, v{t0}')
e(f'v_rcp_f32 v{t1}, v{t1}')
e('s_nop 0')
e(f'v_pk_mul_f32 v[{t0}:{t1}], v[{a0}:{a1}], v[{t0}:{t1}]')
e(f'v_cvt_pk_bf16_f32 v{t0}, v{t0}, v{t1}')
e(f'v_cndmask_b32 v{t0}, v{EX+2}, v{t0}, {sp(S_M)}')
e(f'v_lshlrev_b32 v{a0}, 16, v{t0}')
e(f'v_and_b32 v{a1}, 0xffff0000, v{t0}')
e('s_nop 0')
dpp('v_mul_f32', a0, a0, a0, 'row_ror:8')
dpp('v_mul_f32', a1, a1, a1, 'row_ror:8')
e(f'v_cvt_pk_bf16_f32 v{a0}, v{a0}, v{a1}')
e('s_nop 1')
for p in range(4): mdpp(AF+4+p, a0, f'quad_perm:[{p},{p},{p},{p}]')
e('s_nop 1')
for j in range(8):
    e(f'v_mfma_f32_16x16x32_bf16 v[{DA+4*j}:{DA+4*j+3}], v[{AF+4}:{AF+7}], v[{TD+4*j}:{TD+4*j+3}], 0')
e('s_mov_b32 exec_lo, 0xff0000ff')
e('s_mov_b32 exec_hi, 0')
for jj in range(4):
    if jj > 0: e('s_nop 0')
    e(f'ds_write2_b32 v14, v{DA+8*jj}, v{DA+8*jj+4} offset0:{LDS_P//4+2*jj} offset1:{LDS_P//4+2*jj+1}')
e('s_waitcnt lgkmcnt(0)')
e('s_barrier')
stamp(7)
endpgm()
L.append(';;WARMFREE')

lab('L_p')
e(f's_cmp_ge_u32 s{S_SLOT}, 27'); e('s_cbranch_scc1 L_exit0')
getxcc()
slot9()
e('s_waitcnt lgkmcnt(0)')
e(f's_cmp_lg_u32 s{S_WAVE}, 6'); e('s_cbranch_scc1 L_p1')
c("bring this workgroup's three exchange slots (12 lines) into the L2")
e(f's_mul_i32 s{S_T0}, s{S_T}, 4608')
e(f's_lshl_b32 s{S_T1}, s{S_K}, 9')
e(f's_add_u32 s{S_T0}, s{S_T0}, s{S_T1}')
e(f's_add_u32 s{S_T0}, s{S_T0}, {EXL}')
e('v_lshrrev_b32 v1, 2, v0')
e(f's_movk_i32 s{S_T1}, 4608')
e(f'v_mul_u32_u24 v1, s{S_T1}, v1')
e('v_and_b32 v2, 3, v0')
e('v_lshlrev_b32 v2, 7, v2')
e(f'v_add3_u32 v1, v1, v2, s{S_T0}')
if TLB:
    e(f's_mul_i32 s{S_T1}, s{S_T}, {64*1152}')
    e(f's_lshl_b32 s{S_T2}, s{S_K}, 7')
    e(f's_add_u32 s{S_T1}, s{S_T1}, s{S_T2}')
    e(f's_movk_i32 s{S_T2}, {16*1152}')
    e(f'v_mul_u32_u24 v4, s{S_T2}, v0')
    e(f'v_add_u32 v4, s{S_T1}, v4')
e('s_mov_b64 exec, 0xfff')
if TLB == 1: e(f'global_load_dword v5, v4, {sp(WD)}')
if HOLD: e('s_barrier')
if TLB == 2: e(f'global_load_dword v5, v4, {sp(WD)}')
e(f'global_load_dword v3, v1, {sp(WS)} sc1')
e('s_endpgm')
L.append(';;WARMFREE')
lab('L_p1')
e(f's_load_dword s{S_TAG}, {sp(WS)}, 0')
if HOLD: e('s_barrier')
e(f's_lshl_b32 s{S_T3}, s{S_XCC}, 12')
e(f's_add_u32 s{S_T3}, s{S_T3}, {BC}')
e(f's_add_u32 s{S_T2}, s{S_T3}, 4096')
e(f's_and_b32 s{S_T1}, s{S_WAVE}, 1')
e(f's_lshl_b32 s{S_T1}, s{S_T1}, 6')
e(f'v_lshl_add_u32 v4, v0, 2, s{S_T1}')
e(f's_lshl_b32 s{S_K}, s{S_K}, 7')
e(f's_add_u32 s{S_K}, s{S_K}, s{S_T1}')
e('v_and_b32 v10, 60, v0')
e(f'v_add_u32 v11, s{S_T1}, v10')
e('v_and_b32 v12, 1, v0')
e(f'v_cmp_eq_u32 {sp(S_M)}, 1, v12')
e('v_lshlrev_b32 v12, 2, v12')
e('v_lshl_add_u32 v12, v11, 1, v12')
e('v_lshrrev_b32 v13, 4, v0')
e('v_and_b32 v14, 15, v0')
e('v_lshlrev_b32 v14, 2, v14')
e('v_lshl_add_u32 v13, v13, 7, v14')
e(f's_lshl_b32 s{S_T0}, s{S_K}, 3')
e(f's_add_u32 s{S_T0}, s{S_T0}, {ACCU}')
e(f'v_add_u32 v13, s{S_T0}, v13')
e('v_mov_b32 v7, 0')
e('s_mov_b64 exec, 0xffff')
L.append(';;WARMSPOT')
e('s_waitcnt lgkmcnt(0)')
e(f's_add_u32 s{S_TAG}, s{S_TAG}, 1')
stamp(1)
lab('L_p_poll')
e(f's_load_dwordx2 {sp(S_A)}, {sp(WS)}, s{S_T3}')
e(f's_add_u32 s{S_T3}, s{S_T3}, 64')
e(f's_cmp_ge_u32 s{S_T3}, s{S_T2}')
e('s_cbranch_scc1 L_p_slow')
e('s_waitcnt lgkmcnt(0)')
e(f's_cmp_lg_u32 s{S_A+1}, s{S_TAG}')
e('s_cbranch_scc1 L_p_poll')
lab('L_p_got')
e(f's_andn2_b32 s{S_T1}, 0x7ff, s{S_A}')
e(f's_mul_i32 s{S_T0}, s{S_T1}, 1152')
e(f's_add_u32 s{S_T0}, s{S_T0}, s{S_K}')
e(f's_load_dwordx16 s[{S_XS}:{S_XS+15}], {sp(X)}, s{S_T0}')
stamp(2)
e(f'v_mov_b32 v6, s{S_T1}')
e(f'ds_write_b32 v7, v6 offset:{LDS_WIN}')
e('s_waitcnt lgkmcnt(0)')
stamp(3)
for d in range(16): e(f'v_writelane_b32 v5, s{S_XS+d}, {d}')
e(f'ds_write_b32 v4, v5 offset:{LDS_X}')
e('s_waitcnt lgkmcnt(0)')
e('s_barrier')
L.append(';;WARMSPOT')
e('s_mov_b64 exec, -1')
e(f'ds_read_b32 v5, v11 offset:{LDS_X}')
e(f'v_add_u32 v10, s{S_T0}, v10')
c('r_sel = bf16(sigmoid(r))')
e(f's_ashr_i32 s{S_T2}, s{S_A}, 31')
e(f's_not_b32 s{S_T2}, s{S_T2}')
e(f's_or_b32 s{S_T2}, s{S_T2}, 0x80000000')
e(f's_xor_b32 s{S_T1}, s{S_A}, s{S_T2}')
e(f's_and_b32 s{S_T1}, s{S_T1}, 0xffff0000')
e(f'v_mov_b32 v8, s{S_T1}')
e('v_mul_f32 v8, 0xbfb8aa3b, v8')
e('v_exp_f32 v8, v8')
e(f's_mov_b32 s{S_B}, 0x11111111'); e(f's_mov_b32 s{S_B+1}, 0x11111111')
e('v_add_f32 v8, 1.0, v8')
e('v_rcp_f32 v8, v8')
e(f's_lshl_b64 {sp(S_A)}, {sp(S_B)}, 2')
bf16r(8, 8)
e('s_waitcnt lgkmcnt(0)')
e('v_lshlrev_b32 v6, 16, v5')
e('v_and_b32 v5, 0xffff0000, v5')
e(f'v_cndmask_b32 v5, v6, v5, {sp(S_M)}')
e('v_fma_f32 v5, v5, 0, v5')
e('v_mov_b32 v9, 0x41b80000')
e(f'v_mov_b32 v15, s{S_TAG}')
e('s_mov_b32 exec_lo, 0x77777777'); e('s_mov_b32 exec_hi, 0x77777777')
stamp(4)
e('s_barrier')
for i in range(3):
    e(f'ds_read2st64_b32 v[{16+2*i}:{17+2*i}], v12 offset0:{LDS_P//256+2*i} offset1:{LDS_P//256+2*i+1}')
e('s_waitcnt lgkmcnt(1)' if not STAMP else 's_waitcnt lgkmcnt(0)')
e('v_pk_add_f32 v[16:17], v[16:17], v[18:19]')
e('s_waitcnt lgkmcnt(0)')
e('v_pk_add_f32 v[16:17], v[16:17], v[20:21]')
e('v_add_f32 v16, v16, v17')
e(f'v_cndmask_b32 v16, v16, 1.0, {sp(S_A)}')
e(f'global_atomic_add_f32 v17, v13, v16, {sp(WS)} sc0')
stamp(5)
e('s_waitcnt vmcnt(0)')
stamp(6)
mdpp(18, 17, 'quad_perm:[2,2,2,2]')
e('v_add_f32 v16, v16, v17')
e('v_cmp_eq_f32 vcc, v9, v18')
bf16r(16, 16)
e(f's_and_b64 vcc, vcc, {sp(S_B)}')
e('s_cbranch_scc0 L_end')
e('v_mul_f32 v16, v16, v8')
bf16r(16, 16)
e('v_add_f32 v16, v5, v16')
e('s_nop 1')
mdpp(17, 16, 'quad_perm:[1,1,1,1]')
e('v_cvt_pk_bf16_f32 v16, v16, v17')
e('s_mov_b64 exec, vcc')
e(f'global_store_dword v10, v16, {sp(OUT)}')
if ACK: e('s_waitcnt vmcnt(0)')
stamp(7)
c('the last adder of the first granule moves the epoch on')
e(f's_cmp_lg_u32 s{S_K}, 0'); e('s_cbranch_scc1 L_end')
e('s_and_b64 exec, vcc, 1'); e('s_cbranch_scc0 L_end')
e(f'global_store_dword v7, v15, {sp(WS)} sc1')
lab('L_end')
if DIAG >= 0:
    e(f's_cmp_lg_u32 s2, {DIAG}'); e('s_cbranch_scc1 L_exit0')
    e('s_memrealtime s[72:73]'); e('s_waitcnt lgkmcnt(0)')
    e('s_sub_u32 s74, s72, s76'); e('s_min_u32 s74, s74, 5000'); e('s_mul_i32 s74, s74, 10'); e('s_add_u32 s74, s74, s72')
    lab('L_dspin')
    e('s_memrealtime s[72:73]'); e('s_waitcnt lgkmcnt(0)')
    e('s_sub_u32 s75, s74, s72'); e('s_cmp_gt_i32 s75, 0'); e('s_cbranch_scc1 L_dspin')
endpgm()
lab('L_seg1_end')
e('.p2align 12')

lab('L_r2')
for i in range(4): e(f'v_mov_b32 v{ACC+i}, 0')
e('v_sub_u32 v6, 0xffff, v1')
e(f's_lshl_b32 s{S_T0}, s{S_XCD}, 6')
e(f's_add_u32 s{S_T0}, s{S_T0}, s{S_SLOT}')
e(f's_lshl_b32 s{S_T0}, s{S_T0}, {K1SH}')
e(f's_add_u32 s{S_T0}, s{S_T0}, {K1L}')
e(f'v_mov_b32 v3, s{S_T0}')
e(f'v_add_u32 v7, {K1G-K1L}, v3')
e(f's_mov_b32 s{S_T2}, 0xffff0000')
KY = 84
if WLDS:
    e('s_waitcnt vmcnt(9)')
    for cc in range(9): e(f'ds_read_b128 v[{WW+4*cc}:{WW+4*cc+3}], v2 offset:{LDS_W+128*cc}')
e('s_waitcnt lgkmcnt(0)')
e(f's_add_u32 s{S_TAG}, s{S_TAG}, 1')
e(f'v_mov_b32 v{KY+1}, s{S_TAG}')
for cc in range(9):
    e(f's_waitcnt vmcnt({8-cc})')
    for d in range(4): e(f'v_dot2c_f32_bf16 v{ACC+d}, v{XR+4*cc+d}, v{WW+4*cc+d}')
stamp(2)
e('s_nop 2')
e(f'v_pk_add_f32 v[{ACC}:{ACC+1}], v[{ACC}:{ACC+1}], v[{ACC+2}:{ACC+3}]')
e(f'v_add_f32 v{ACC}, v{ACC}, v{ACC+1}')
for m in ['quad_perm:[1,0,3,2]', 'quad_perm:[2,3,0,1]', 'row_half_mirror']:
    e('s_nop 1'); dpp('v_add_f32', ACC, ACC, ACC, m)
K0, K1 = KY+2, KY+3
e(f'v_cmp_o_f32 vcc, v{ACC}, v{ACC}')
e(f'v_cvt_pk_bf16_f32 v{K0}, v{ACC}, v{ACC}')
e(f'v_ashrrev_i32 v{K1}, 31, v{K0}')
e(f'v_or_b32 v{K1}, 0x80000000, v{K1}')
e(f'v_xor_b32 v{K0}, v{K0}, v{K1}')
e(f'v_cndmask_b32 v{K0}, 0, v{K0}, vcc')
e(f'v_and_or_b32 v{KY}, v{K0}, s{S_T2}, v6')
e('s_nop 1'); dpp('v_max_u32', KY, KY, KY, 'row_shr:8')
e('s_nop 1'); dpp('v_max_u32', KY, KY, KY, 'row_bcast:15', '0xa')
e('s_nop 1'); dpp('v_max_u32', KY, KY, KY, 'row_bcast:31', '0xc')
e('s_mov_b32 exec_lo, 0'); e('s_brev_b32 exec_hi, 1')
e(f'global_store_dwordx2 v3, v[{KY}:{KY+1}], {sp(WS)}')
if HOLD: e('s_barrier')
e(f'global_store_dwordx2 v7, v[{KY}:{KY+1}], {sp(WS)} sc1')
e('s_mov_b64 exec, -1')
stamp(3)
e(f'v_mov_b32 v{K1}, 0x207')
e(f'v_cmp_class_f32 vcc, v{ACC}, v{K1}')
e('s_cbranch_vccnz L_r_fix')
lab('L_r_nofix')
def copy_rows():
    for cc in range(9):
        e(f'global_store_dwordx4 v4, v[{XR+4*cc}:{XR+4*cc+3}], {sp(OUT)} offset:{128*cc}{ONT}')
if CP == 'E':
    e(f'v_readlane_b32 s{S_T1}, v{KY}, 63')
    e(f's_andn2_b32 s{S_T1}, 0x7ff, s{S_T1}')
    e(f'v_cmp_ne_u32 vcc, s{S_T1}, v1')
    e('s_mov_b64 exec, vcc')
    copy_rows()
    e('s_not_b64 exec, vcc')
e('s_barrier')
e('v_mov_b32 v2, 0')
e(f'ds_read_b32 v2, v2 offset:{LDS_WIN}')
e('s_waitcnt lgkmcnt(0)')
e('v_cmp_ne_u32 vcc, v2, v1')
if CP == 'D': e('s_barrier')
stamp(4)
e('s_and_b64 exec, exec, vcc')
if CP == 'E': e('s_cbranch_scc0 L_r_end')
copy_rows()
lab('L_r_end')
if CP != 'D': e('s_barrier')
if STAMP:
    stamp(5); e('s_waitcnt vmcnt(0)'); stamp(6)
endpgm()

lab('L_spare')
e(f's_add_u32 s{S_T0}, s{S_SLOT}, 4')
e(f's_lshl_b32 s{S_T0}, s{S_T0}, {K1SH}')
e(f's_add_u32 s{S_T0}, s{S_T0}, s{S_T1}')
e(f'v_mov_b32 v43, s{S_T0}')
e(f'v_add_u32 v44, {K1G-K1L}, v43')
e('v_mov_b32 v6, 0')
e('s_waitcnt lgkmcnt(0)')
e(f's_add_u32 s{S_TAG}, s{S_TAG}, 1')
e(f'v_mov_b32 v7, s{S_TAG}')
e(f's_cmp_lt_u32 s{S_T}, 8')
e('s_cbranch_scc1 L_s_l1')
c('neutral key: this wave has read the epoch (and its clears have landed)')
e('s_mov_b64 exec, 1')
e(f's_cmp_lt_u32 s{S_T}, 32')
e('s_cbranch_scc1 L_s_now')
e('s_waitcnt vmcnt(0)')
lab('L_s_now')
e(f'global_store_dwordx2 v43, v[6:7], {sp(WS)}')
e(f'global_store_dwordx2 v44, v[6:7], {sp(WS)} sc1')
e('s_mov_b64 exec, -1')
stamp(1)
if HOLD: e('s_barrier')
e('s_branch L_s_l2')
lab('L_s_l1')
if HOLD: e('s_barrier')
e(f's_lshl_b32 s{S_T0}, s{S_T}, 7')
e(f's_add_u32 s{S_T0}, s{S_T0}, {K2}')
e(f'v_lshl_add_u32 v42, v0, 10, s{S_T0}')
e(f's_mov_b32 s{S_CNT}, 0')
lab('L_s_poll1')
e(f'global_load_dwordx2 v[8:9], v40, {sp(WS)} sc1')
e(f's_add_u32 s{S_CNT}, s{S_CNT}, 1')
e(f's_cmp_lg_u32 s{S_CNT}, {LOCN}')
e('s_cbranch_scc1 L_s_same1')
e(f'v_add_u32 v40, {K1G-K1L}, v40')
lab('L_s_same1')
e(f's_cmp_gt_u32 s{S_CNT}, {SPIN}')
e('s_cbranch_scc1 L_s_got1')
e('s_waitcnt vmcnt(0)')
e(f'v_cmp_ne_u32 vcc, s{S_TAG}, v9')
e('s_cbranch_vccnz L_s_poll1')
lab('L_s_got1')
stamp(7)
for m in ('row_shr:1', 'row_shr:2', 'row_shr:4', 'row_shr:8'):
    dpp('v_max_u32', 8, 8, 8, m); e('s_nop 1')
dpp('v_max_u32', 8, 8, 8, 'row_bcast:15', '0xa')
e('s_mov_b32 exec_hi, 0xff')
e(f'v_readlane_b32 s{S_T0}, v8, 31')
e('s_nop 1')
e(f'v_mov_b32 v6, s{S_T0}')
e(f'global_store_dwordx2 v42, v[6:7], {sp(WS)} sc1')
e('s_mov_b32 exec_hi, -1')
lab('L_s_l2')
e(f's_mov_b32 s{S_CNT}, {SPIN}')
e('v_min_u32 v5, 8, v0')
e('v_lshlrev_b32 v5, 7, v5')
e(f's_movk_i32 s{S_T1}, 1152')
e(f's_movk_i32 s{S_T2}, 0x7ff')
lab('L_s_poll')
e(f'global_load_dwordx2 v[8:9], v41, {sp(WS)} sc1')
e(f's_sub_u32 s{S_CNT}, s{S_CNT}, 1')
e('s_cbranch_scc1 L_s_got')
e('s_waitcnt vmcnt(0)')
e(f'v_cmp_ne_u32 vcc, s{S_TAG}, v9')
e('s_cbranch_vccnz L_s_poll')
lab('L_s_got')
stamp(2)
dpp('v_max_u32', 8, 8, 8, 'quad_perm:[1,0,3,2]'); e('s_nop 1')
dpp('v_max_u32', 8, 8, 8, 'quad_perm:[2,3,0,1]'); e('s_nop 1')
dpp('v_max_u32', 6, 8, 8, 'row_half_mirror')
e(f'global_store_dwordx2 v3, v[6:7], {sp(WS)}')
e(f'v_bfi_b32 v10, v6, 0, s{S_T2}')
e(f'v_mad_u32_u24 v5, v10, s{S_T1}, v5')
e(f'global_load_dword v39, v5, {sp(X)}')
e('v_mov_b32 v13, 0')
e(f'ds_write_b32 v13, v10 offset:{LDS_WIN}')
stamp(3)
e(f's_cmp_lg_u32 s{S_T}, 39')
e('s_cbranch_scc1 L_s_nog')
e(f'v_mov_b32 v5, {WIN_G}')
e('s_mov_b64 exec, 1')
e(f'global_store_dwordx2 v5, v[6:7], {sp(WS)} sc1')
lab('L_s_nog')
e('s_waitcnt lgkmcnt(0)')
e('s_barrier')
e('s_barrier')
lab('L_s_end')
endpgm()

lab('L_w_far')
c('partners may sit on another die: publish a device-wide copy, then alternate between the two copies')
e(f's_cmp_gt_u32 s{S_CNT}, {SPIN}')
e('s_cbranch_scc1 L_w_go')
e(f'v_xor_b32 v13, {EXG^EXL}, v13')
e(f's_xor_b32 s{S_TB+3}, s{S_TB+3}, s{S_XCC}')
e(f's_cmp_lg_u32 s{S_CNT}, {LOCN}')
e('s_cbranch_scc1 L_w_same')
e(f'v_xor_b32 v12, {EXG^EXL}, v12')
e(f'v_xor_b32 v{AF+3}, s{S_XCC}, v{AF+3}')
e('s_mov_b32 exec_hi, 0')
e(f'global_store_dwordx4 v12, v[{AF}:{AF+3}], {sp(WS)} sc1')
e('s_mov_b32 exec_hi, -1')
e('s_branch L_w_same')
lab('L_p_slow')
e(f'v_mov_b32 v6, {WIN_G}')
e(f's_mov_b32 s{S_CNT}, {SPIN}')
lab('L_p_slowpoll')
e(f'global_load_dwordx2 v[8:9], v6, {sp(WS)} sc1')
e('s_waitcnt vmcnt(0) lgkmcnt(0)')
e(f'v_readfirstlane_b32 s{S_A}, v8')
e(f'v_readfirstlane_b32 s{S_A+1}, v9')
e(f's_sub_u32 s{S_CNT}, s{S_CNT}, 1')
e('s_cbranch_scc1 L_p_got')
e(f's_cmp_lg_u32 s{S_A+1}, s{S_TAG}')
e('s_cbranch_scc1 L_p_slowpoll')
e('s_branch L_p_got')
if STAMP:
    lab('L_flush')
    e('s_waitcnt vmcnt(0) lgkmcnt(0)')
    e('s_mov_b64 exec, 1')
    e('s_sleep 40')
    e(f's_lshl_b32 s{S_T0}, s2, 4'); e(f's_add_u32 s{S_T0}, s{S_T0}, s{S_WAVE}')
    e(f's_lshl_b32 s{S_T0}, s{S_T0}, 6'); e(f's_add_u32 s{S_T0}, s{S_T0}, 0x8000000')
    e(f'v_mov_b32 v2, s{S_T0}')
    for i in range(4):
        for k in range(4): e(f'v_mov_b32 v{4+k}, s{S_ST+4*i+k}')
        e(f'global_store_dwordx4 v2, v[4:7], {sp(WS)} offset:{16*i}'); e('s_nop 1')
    e('s_endpgm')
lab('L_r_fix')
c('x + x*0 turns an infinity into a NaN')
e(f's_mov_b32 s{S_SELHI}, 0x07060302')
for d in range(36):
    r = XR + d
    e(f'v_lshlrev_b32 v{K0}, 16, v{r}')
    e(f'v_and_b32 v{K1}, s{S_T2}, v{r}')
    e(f'v_fma_f32 v{K0}, v{K0}, 0, v{K0}')
    e(f'v_fma_f32 v{K1}, v{K1}, 0, v{K1}')
    e(f'v_perm_b32 v{r}, v{K1}, v{K0}, s{S_SELHI}')
e('s_branch L_r_nofix')

hdr = f'''; MoD (mixture-of-depths, capacity 1) router + SwiGLU FFN on the routed token, one launch.
; @launch grid=(256,1,1) block=(448,1,1) lds={LDS_BYTES}
.amdgcn_target "amdgcn-amd-amdhsa--gfx950"
.text
.globl standalone__moe_arch_mod__prompt_kernel
.p2align 12
.fill {(4096-768)//4}, 4, 0xBF800000
.p2align 8
.type standalone__moe_arch_mod__prompt_kernel,@function
standalone__moe_arch_mod__prompt_kernel:'''
tail = '''.section .rodata,"a"
.p2align 6
.amdhsa_kernel standalone__moe_arch_mod__prompt_kernel
  .amdhsa_next_free_vgpr 184
  .amdhsa_next_free_sgpr 96
  .amdhsa_accum_offset 184
  .amdhsa_group_segment_fixed_size 0
  .amdhsa_kernarg_size 64
  .amdhsa_user_sgpr_count 2
  .amdhsa_user_sgpr_kernarg_segment_ptr 1
  .amdhsa_system_sgpr_workgroup_id_x 1
  .amdhsa_float_denorm_mode_32 3
.end_amdhsa_kernel
'''
def offsets(lines):
    out = []; k = 0
    for ln in lines:
        if ln.startswith(';;WARM'): out.append(f'MK{k}:'); k += 1
        else: out.append(ln)
    src = hdr.replace('.fill 832,', '.fill 1024,') + '\n' + '\n'.join(out) + '\nL_warm1:\nL_warm2:\nL_warm3:\n' + tail
    d = tempfile.mkdtemp()
    open(d + '/a.s', 'w').write(src)
    subprocess.run(['clang', '-x', 'assembler', '-target', 'amdgcn-amd-amdhsa', '-mcpu=gfx950', '-c', d + '/a.s', '-o', d + '/a.o'], check=True)
    t = subprocess.run(['llvm-objdump', '-t', d + '/a.o'], capture_output=True, text=True).stdout
    sy = {m.group(2): int(m.group(1), 16) for m in re.finditer(r'^([0-9a-f]{16}) .*\.text\s+[0-9a-f]+ (?:\.protected |\.hidden )?(\S+)$', t, re.M)}
    base = sy['standalone__moe_arch_mod__prompt_kernel']
    return {n: v - base for n, v in sy.items()}
offs = offsets(L)
marks = [(i, ln) for i, ln in enumerate(L) if ln.startswith(';;WARM')]
mo = [offs[f'MK{k}'] for k in range(len(marks))]
chosen = []
segs = [(0, offs['L_end'])]
shift = 0
for (a, b) in segs:
    if a == offs['L_r2']: shift = 0
    covered = ((a + shift) // 64) * 64 + 1088
    while covered < b + shift + 8:
        cand = [k for k in range(len(marks)) if a <= mo[k] < b and mo[k] + shift + 4 < covered + 64 and (not chosen or k > chosen[-1])]
        assert cand, (covered, mo, segs)
        k = cand[-1]
        sp4 = marks[k][1].startswith(';;WARMSPOT')
        pos = mo[k] + shift + (4 if sp4 else 0)
        chosen.append(k); shift += 8 if sp4 else 4
        nc = (pos // 64) * 64 + 1088
        assert nc > covered, (nc, covered, mo)
        covered = nc
assert offs['L_seg1_end'] + 32 < 4096
names = {k: n + 1 for n, k in enumerate(chosen)}
nst = len(chosen)
outl = []; k = 0
for ln in L:
    if ln.startswith(';;WARM'):
        if k in names:
            n = names[k]
            tgt = f'L_warm{n+3}' if n + 3 <= nst else 'L_p'
            if ln.startswith(';;WARMSPOT'): outl.append(f'    s_branch L_skip{n}')
            outl.append(f'L_warm{n}:'); outl.append(f'    s_branch {tgt}')
            if ln.startswith(';;WARMSPOT'): outl.append(f'L_skip{n}:')
        k += 1
    elif ln == 'L_p:':
        for n in range(nst + 1, 4): outl.append(f'L_warm{n}:')
        outl.append(ln)
    else: outl.append(ln)
sys.stderr.write(f'chosen {[mo[k] for k in chosen]} ' + ' '.join(f'{n}={v}' for n, v in sorted(offs.items(), key=lambda x: x[1]) if n in ('L_w','L_w_poll','L_p','L_end','L_seg1_end','L_r2','L_spare','L_s_end')) + '\n')
print(hdr); print('\n'.join(outl)); print(tail)
```

```python
import sys, subprocess, re, tempfile
def opt(name, d):
    a = sys.argv
    return type(d)(a[a.index(name)+1]) if name in a else d
def mod(name, d):
    v = opt(name, d); return '' if v == '-' else ' ' + v.replace('+', ' ')
STAMP = '--stamp' in sys.argv
MINI = '--mini' in sys.argv
WING = opt('--wing', 8); WIND = opt('--wind', 10); WIN0 = opt('--win0', 6)
NT = mod('--nt', 'nt'); XNT = mod('--xnt', '-'); ONT = mod('--ont', '-')
CP = opt('--cp', 'D')
DIAG = opt('--diag', -1)
HOLD = opt('--hold', 1); WLAST = opt('--wlast', 0); LIGHT = opt('--light', 0)
WLDS = opt('--wlds', 1); TLB = opt('--tlb', 0); ACK = opt('--ack', 0)
K1SH = opt('--k1sh', 7)
SKEW = opt('--skew', -1)
SPIN = 100000
LOCN = opt('--locn', 60)

L = []
def e(s): L.append('    ' + s)
def lab(s): L.append(s + ':')
def c(s): L.append('    ; ' + s)
X, WR, WG, WU, WD, OUT, DBG, WS = 4, 6, 8, 10, 12, 14, 16, 18
def sp(n): return f's[{n}:{n+1}]'
S_WAVE, S_XCD, S_SLOT = 20, 21, 22
S_T0, S_T1, S_T2, S_T3 = 23, 24, 25, 26
S_SELLO, S_SELHI = 27, 28
S_CNT, S_TAG, S_T, S_K = 29, 30, 31, 32
S_XCC = 33
S_A, S_B = 34, 36
S_TB = 38; S_PS = 42
S_M = 46
S_XS = 48
S_ST = 80
K1L, K1G, WIN_G, ACCU, BC, K2, EXL, EXG = 0x20000, 0x30000, 0x3000, 0x4000, 0x8000, 0x10000, 0x100000, 0x180000
LDS_X, LDS_WIN, LDS_P = 0, 128, 256
LDS_W = 2048
LDS_BYTES = 3328

def stamp(i):
    if STAMP: e(f's_memrealtime s[{S_ST+2*i}:{S_ST+2*i+1}]')
def endpgm():
    e('s_branch L_flush' if STAMP else 's_endpgm')
def dpp(op, d, a, b, m, rm='0xf'):
    e(f'{op}_dpp v{d}, v{a}, v{b} {m} row_mask:{rm} bank_mask:0xf')
def mdpp(d, a, m, rm='0xf'):
    e(f'v_mov_b32_dpp v{d}, v{a} {m} row_mask:{rm} bank_mask:0xf')
def perms(raw, T, p):
    for j in range(8):
        sel = S_SELHI if (j & 1) else S_SELLO
        e(f'v_perm_b32 v{T+4*j+p}, v{raw+4*(2*p+1)+j//2}, v{raw+4*(2*p)+j//2}, s{sel}')
def bf16r(d, s):
    e(f'v_cvt_pk_bf16_f32 v{d}, v{s}, v{s}'); e(f'v_lshlrev_b32 v{d}, 16, v{d}')
def slot9():
    e(f's_mul_i32 s{S_T0}, s{S_SLOT}, 57')
    e(f's_lshr_b32 s{S_T0}, s{S_T0}, 9')
    e(f's_mul_i32 s{S_K}, s{S_T0}, 9')
    e(f's_sub_u32 s{S_K}, s{S_SLOT}, s{S_K}')
    e(f's_mul_i32 s{S_T}, s{S_XCD}, 3')
    e(f's_add_u32 s{S_T}, s{S_T}, s{S_T0}')
    e(f's_mul_i32 s{S_T}, s{S_T}, 3')
def getxcc(): e(f's_getreg_b32 s{S_XCC}, hwreg(HW_REG_XCC_ID, 0, 3)')

e('s_cmp_ge_u32 s2, 256')
e('s_cbranch_scc1 L_exit0')
e('s_load_dwordx16 s[4:19], s[0:1], 0')
stamp(0)
if MINI: e('s_memrealtime s[80:81]')
if DIAG >= 0 or SKEW >= 0: e('s_memrealtime s[76:77]')
e(f'v_readfirstlane_b32 s{S_WAVE}, v0')
e('v_and_b32 v0, 63, v0')
e(f's_and_b32 s{S_XCD}, s2, 7')
e(f's_lshr_b32 s{S_SLOT}, s2, 3')
e(f's_lshr_b32 s{S_WAVE}, s{S_WAVE}, 6')
if STAMP:
    for i in range(1, 8): e(f's_mov_b64 s[{S_ST+2*i}:{S_ST+2*i+1}], 0')
e(f's_cmp_lt_u32 s{S_WAVE}, 4'); e('s_cbranch_scc1 L_notp')
e('s_barrier')
e(f's_cmp_eq_u32 s{S_WAVE}, 4'); e('s_cbranch_scc1 L_warm1')
e(f's_cmp_eq_u32 s{S_WAVE}, 5'); e('s_cbranch_scc1 L_warm2')
e('s_branch L_warm3')
lab('L_spare0')
e(f's_cmp_lg_u32 s{S_WAVE}, 0'); e('s_cbranch_scc1 L_exit0')
c('spare: bring the hand-off lines into this L2 before anything else')
getxcc()
e(f's_sub_u32 s{S_T}, s2, 216')
e(f's_lshl_b32 s{S_T1}, s{S_XCD}, {6+K1SH}')
e(f's_add_u32 s{S_T1}, s{S_T1}, {K1L}')
e('v_min_u32 v40, 35, v0')
e(f'v_lshl_add_u32 v40, v40, {K1SH}, s{S_T1}')
e(f's_lshl_b32 s{S_T0}, s{S_T}, 10')
e(f's_add_u32 s{S_T0}, s{S_T0}, {K2}')
e('v_and_b32 v41, 7, v0')
e(f'v_lshl_add_u32 v41, v41, 7, s{S_T0}')
e(f's_lshl_b32 s{S_T3}, s{S_XCC}, 12')
e(f's_add_u32 s{S_T3}, s{S_T3}, {BC}')
e(f'v_lshl_add_u32 v3, v0, 6, s{S_T3}')
e('s_waitcnt lgkmcnt(0)')
e(f's_load_dword s{S_TAG}, {sp(WS)}, 0')
e(f's_cmp_lt_u32 s{S_T}, 32')
e('s_cbranch_scc1 L_s_noclr')
c('the last spare of each group clears 9 accumulator lines before it reports in')
e(f's_mul_i32 s{S_T0}, s{S_XCD}, {9*128}')
e(f's_addk_i32 s{S_T0}, {ACCU}')
e(f'v_lshl_add_u32 v1, v0, 4, s{S_T0}')
e('v_mov_b64 v[12:13], 0'); e('v_mov_b64 v[14:15], 0')
e(f'global_store_dwordx4 v1, v[12:15], {sp(WS)} sc1')
e(f'global_store_dwordx4 v1, v[12:15], {sp(WS)} offset:128 sc1')
lab('L_s_noclr')
e(f'global_load_dwordx2 v[8:9], v40, {sp(WS)} sc1')
e(f'global_load_dwordx2 v[8:9], v41, {sp(WS)} sc1')
e(f'global_load_dwordx2 v[8:9], v3, {sp(WS)} sc1')
e('s_barrier')
e('s_branch L_spare')
lab('L_exit0')
e('s_endpgm')
lab('L_notp')
e(f's_cmp_lg_u32 s{S_WAVE}, 3'); e('s_cbranch_scc1 L_w')

XR, WW, ACC = 8, 44, 80
c('router wave: rows 8*wg + (l>>3), bytes 128c + 16*(l&7)')
e(f's_lshl_b32 s{S_T1}, s2, 3')
e('v_lshrrev_b32 v1, 3, v0')
e(f'v_add_u32 v1, s{S_T1}, v1')
e('v_and_b32 v2, 7, v0')
e('v_lshlrev_b32 v2, 4, v2')
e(f's_movk_i32 s{S_T2}, 1152')
e(f'v_mad_u32_u24 v4, v1, s{S_T2}, v2')
if WLDS:
    e('v_lshlrev_b32 v5, 4, v0')
    e(f's_movk_i32 m0, {LDS_W}')
e('s_waitcnt lgkmcnt(0)')
def wl():
    if WLDS:
        e(f'global_load_lds_dwordx4 v5, {sp(WR)}')
        e('s_mov_b64 exec, 0xff')
        e(f'global_load_lds_dwordx4 v5, {sp(WR)} offset:1024')
        e('s_mov_b64 exec, -1')
        return
    for cc in range(9): e(f'global_load_dwordx4 v[{WW+4*cc}:{WW+4*cc+3}], v2, {sp(WR)} offset:{128*cc}')
if not WLAST: wl()
for cc in range(9): e(f'global_load_dwordx4 v[{XR+4*cc}:{XR+4*cc+3}], v4, {sp(X)} offset:{128*cc}{XNT}')
if WLAST: wl()
e(f's_load_dword s{S_TAG}, {sp(WS)}, 0')
e('s_barrier')
stamp(1)
e('s_branch L_r2')

lab('L_w')
e(f's_cmp_ge_u32 s{S_SLOT}, 27'); e('s_cbranch_scc1 L_spare0')
RAW, TX, DA, AF = 16, 112, 144, 176
slot9()
e(f's_add_u32 s{S_T}, s{S_T}, s{S_WAVE}')
c('G: row = 64k + 32u + 8*(l>>4) + e ; col bytes = 128c + 16*(l&7) ; matrix = (l>>3)&1')
e('v_lshrrev_b32 v8, 4, v0')
e(f's_lshl_b32 s{S_T0}, s{S_K}, 3')
e(f'v_add_u32 v1, s{S_T0}, v8')
e(f's_mov_b32 s{S_T1}, {8*9216}')
e(f'v_mul_lo_u32 v1, v1, s{S_T1}')
e('v_and_b32 v9, 7, v0')
e('v_lshlrev_b32 v9, 4, v9')
e(f's_lshl_b32 s{S_T2}, s{S_T}, 7')
e(f'v_add3_u32 v1, v1, v9, s{S_T2}')
e('v_and_b32 v10, 8, v0')
e('v_cmp_ne_u32 vcc, 0, v10')
e(f's_mov_b32 s{S_A}, 9216'); e(f's_mov_b32 s{S_A+1}, 0')
e(f's_mov_b32 s{S_B}, {25*9216}'); e(f's_mov_b32 s{S_B+1}, 0')
e('s_waitcnt lgkmcnt(0)')
e(f'v_mov_b32 v2, s{WG}'); e(f'v_mov_b32 v3, s{WG+1}')
e(f'v_mov_b32 v4, s{WU}'); e(f'v_mov_b32 v5, s{WU+1}')
e('v_cndmask_b32 v2, v2, v4, vcc'); e('v_cndmask_b32 v3, v3, v5, vcc')
e('v_add_co_u32 v2, vcc, v2, v1')
e(f's_load_dword s{S_TAG}, {sp(WS)}, 0')
e('s_barrier')
e('v_addc_co_u32 v3, vcc, 0, v3, vcc')
DOFF = [-2880, -1728, 1728, 2880]
def wload(n):
    if n < 16:
        e(f'global_load_dwordx4 v[{RAW+4*n}:{RAW+4*n+3}], v[2:3], off{NT}')
        if n < 15: e(f'v_lshl_add_u64 v[2:3], v[2:3], 0, {sp(S_B if n == 7 else S_A)}')
    else:
        r = n - 16
        e(f'global_load_dwordx4 v[{RAW+4*n}:{RAW+4*n+3}], v{6+r//4}, {sp(WD)} offset:{DOFF[r%4]}{NT}')
TG = [TX, RAW]; TD = RAW + 32
def gperm(pair): perms(RAW + 32*(pair//4), TG[pair//4], pair % 4)
for n in range(WIN0): wload(n)
c('D: row = 64c + 32*(kg&1) + 16*m + 2*(kg>>1) + {0,1,4,5,8,9,12,13} ; col bytes = 128k + 16q')
e('v_and_b32 v6, 24, v0')
e('v_lshlrev_b32 v6, 1, v6')
e('v_lshrrev_b32 v7, 5, v0')
e('v_lshl_add_u32 v6, v7, 1, v6')
e(f's_lshl_b32 s{S_T0}, s{S_T}, 6')
e(f'v_add_u32 v6, s{S_T0}, v6')
e(f's_movk_i32 s{S_T1}, 1152')
e(f'v_mul_lo_u32 v6, v6, s{S_T1}')
e(f's_lshl_b32 s{S_T3}, s{S_K}, 7')
e(f's_add_u32 s{S_T3}, s{S_T3}, 2880')
e(f'v_add3_u32 v6, v6, v9, s{S_T3}')
e('v_add_u32 v7, 9216, v6')
e(f's_mov_b32 s{S_SELLO}, 0x05040100')
e(f's_mov_b32 s{S_SELHI}, 0x07060302')
c('A-fragment LDS address, exchange addresses, partial LDS address')
e('v_lshlrev_b32 v11, 4, v8')
e(f's_mul_i32 s{S_T0}, s{S_T}, 4608')
e(f's_add_u32 s{S_T0}, s{S_T0}, {EXL+2048}')
e(f'v_lshl_add_u32 v13, v0, 4, s{S_T0}')
e(f's_lshl_b32 s{S_T1}, s{S_K}, 9')
e(f's_add_u32 s{S_T0}, s{S_T0}, s{S_T1}')
e(f's_sub_u32 s{S_T0}, s{S_T0}, 2048')
e('v_and_b32 v12, 4, v0'); e('v_lshlrev_b32 v12, 6, v12')
e('v_lshl_add_u32 v12, v10, 4, v12')
e('v_and_b32 v14, 3, v0'); e('v_lshl_add_u32 v12, v14, 5, v12')
e(f'v_add3_u32 v12, v12, v11, s{S_T0}')
e(f'v_cmp_eq_u32 {sp(S_M)}, 0, v10')
e(f's_lshl_b32 s{S_T0}, s{S_WAVE}, 9')
e('v_lshlrev_b32 v14, 5, v10')
e('v_lshl_add_u32 v14, v9, 1, v14')
e(f'v_add_u32 v14, s{S_T0}, v14')
getxcc()
for i in range(4): e(f's_mov_b32 s{S_PS+i}, {0x07060500+i:#x}')
L.append(';;WARMSPOT')
e('s_waitcnt lgkmcnt(0)')
e(f's_add_u32 s{S_TAG}, s{S_TAG}, 1')
e(f's_lshl_b32 s{S_T0}, s{S_XCC}, 24')
e(f's_xor_b32 s{S_TAG}, s{S_TAG}, s{S_T0}')
for i in range(4): e(f's_bfe_u32 s{S_TB+i}, s{S_TAG}, {(8<<16)|(8*i)}')
e(f'v_mov_b32 v15, s{S_TAG}')
if HOLD: e('s_barrier')
stamp(1)
done_pairs = 0; got = 0
for n in range(WIN0, 24):
    w = WING if n < 16 else WIND
    need = n - w + 1
    if need > got:
        e(f's_waitcnt vmcnt({w-1})'); got = need
    wload(n)
    while done_pairs < 8 and 2*done_pairs + 2 <= got:
        gperm(done_pairs); done_pairs += 1
    L.append(';;WARMSPOT')
while done_pairs < 4:
    e(f's_waitcnt vmcnt({24 - (2*done_pairs+2)})'); gperm(done_pairs); done_pairs += 1
stamp(2)
e('s_barrier')
e(f'ds_read_b128 v[{AF}:{AF+3}], v11 offset:{LDS_X}')
e(f'ds_read_b128 v[{AF+4}:{AF+7}], v11 offset:{LDS_X+64}')
e('s_waitcnt lgkmcnt(0)' if STAMP else 's_waitcnt lgkmcnt(1)')
stamp(3)
JO = (0, 4, 1, 5, 2, 6, 3, 7)
for j in JO:
    e(f'v_mfma_f32_16x16x32_bf16 v[{DA+4*j}:{DA+4*j+3}], v[{AF}:{AF+3}], v[{TG[0]+4*j}:{TG[0]+4*j+3}], 0')
while done_pairs < 8:
    e(f's_waitcnt vmcnt({24 - (2*done_pairs+2)})'); gperm(done_pairs); done_pairs += 1
e('s_waitcnt lgkmcnt(0)')
for j in JO:
    e(f'v_mfma_f32_16x16x32_bf16 v[{DA+4*j}:{DA+4*j+3}], v[{AF+4}:{AF+7}], v[{TG[1]+4*j}:{TG[1]+4*j+3}], v[{DA+4*j}:{DA+4*j+3}]')
EX = TX
e('s_nop 1')
for j in range(4):
    mdpp(DA+4*j, DA+4*j+16, 'quad_perm:[0,1,2,3]', '0x2')
    e(f'v_perm_b32 v{AF+j}, v{DA+4*j}, v15, s{S_PS+j}')
e('s_mov_b32 exec_hi, 0')
e(f'global_store_dwordx4 v12, v[{AF}:{AF+3}], {sp(WS)}')
e('s_mov_b32 exec_hi, -1')
stamp(4)
L.append(';;WARMSPOT')
for p in range(3):
    e(f's_waitcnt vmcnt({7-2*p})'); perms(RAW+64, TD, p)
def five_loads():
    for i in range(4):
        e(f'global_load_dwordx4 v[{EX+4*i}:{EX+4*i+3}], v13, {sp(WS)} offset:{1024*i-2048} sc1')
    e('s_mov_b32 exec_hi, 0')
    e(f'global_load_dwordx4 v[{EX+16}:{EX+19}], v13, {sp(WS)} offset:2048 sc1')
    e('s_mov_b32 exec_hi, -1')
five_loads()
e('s_waitcnt vmcnt(6)'); perms(RAW+64, TD, 3)
stamp(5)
e(f's_mov_b32 s{S_CNT}, 0')
e('s_branch L_w_chk')
L.append(';;WARMFREE')
lab('L_w_poll')
e(f's_add_u32 s{S_CNT}, s{S_CNT}, 1')
e(f's_cmp_ge_u32 s{S_CNT}, {LOCN}')
e('s_cbranch_scc1 L_w_far')
lab('L_w_same')
five_loads()
lab('L_w_chk')
M = EX + 20
for i in range(5):
    e(f's_waitcnt vmcnt({4-i})')
    if i == 4: e('s_mov_b32 exec_hi, 0')
    for d in range(4): e(f'v_xor_b32 v{EX+4*i+d}, s{S_TB+d}, v{EX+4*i+d}')
    if i == 0: e(f'v_or_b32 v{M}, v{EX}, v{EX+1}')
    else: e(f'v_or3_b32 v{M}, v{M}, v{EX+4*i}, v{EX+4*i+1}')
    e(f'v_or3_b32 v{M}, v{M}, v{EX+4*i+2}, v{EX+4*i+3}')
    if i > 0:
        e(f'v_pk_add_f32 v[{EX}:{EX+1}], v[{EX}:{EX+1}], v[{EX+4*i}:{EX+4*i+1}]')
        e(f'v_pk_add_f32 v[{EX+2}:{EX+3}], v[{EX+2}:{EX+3}], v[{EX+4*i+2}:{EX+4*i+3}]')
e('s_mov_b32 exec_hi, -1')
e(f'v_and_b32 v{M}, 0xff, v{M}')
e(f'v_cmp_ne_u32 vcc, 0, v{M}')
e('s_cbranch_vccnz L_w_poll')
lab('L_w_go')
stamp(6)
a0, a1, t0, t1 = EX, EX+1, EX+4, EX+5
e(f'v_permlane32_swap_b32 v{EX}, v{EX+2}')
e(f'v_permlane32_swap_b32 v{EX+1}, v{EX+3}')
e(f'v_pk_add_f32 v[{EX}:{EX+1}], v[{EX}:{EX+1}], v[{EX+2}:{EX+3}]')
e(f'v_cvt_pk_bf16_f32 v{EX+2}, v{a0}, v{a1}')
e(f'v_lshlrev_b32 v{a0}, 16, v{EX+2}')
e(f'v_and_b32 v{a1}, 0xffff0000, v{EX+2}')
e(f'v_mul_f32 v{t0}, 0xbfb8aa3b, v{a0}')
e(f'v_mul_f32 v{t1}, 0xbfb8aa3b, v{a1}')
e(f'v_exp_f32 v{t0}, v{t0}')
e(f'v_exp_f32 v{t1}, v{t1}')
e('s_nop 0')
e(f'v_pk_add_f32 v[{t0}:{t1}], v[{t0}:{t1}], 1.0 op_sel_hi:[1,0]')
e(f'v_rcp_f32 v{t0}, v{t0}')
e(f'v_rcp_f32 v{t1}, v{t1}')
e('s_nop 0')
e(f'v_pk_mul_f32 v[{t0}:{t1}], v[{a0}:{a1}], v[{t0}:{t1}]')
e(f'v_cvt_pk_bf16_f32 v{t0}, v{t0}, v{t1}')
e(f'v_cndmask_b32 v{t0}, v{EX+2}, v{t0}, {sp(S_M)}')
e(f'v_lshlrev_b32 v{a0}, 16, v{t0}')
e(f'v_and_b32 v{a1}, 0xffff0000, v{t0}')
e('s_nop 0')
dpp('v_mul_f32', a0, a0, a0, 'row_ror:8')
dpp('v_mul_f32', a1, a1, a1, 'row_ror:8')
e(f'v_cvt_pk_bf16_f32 v{a0}, v{a0}, v{a1}')
e('s_nop 1')
for p in range(4): mdpp(AF+4+p, a0, f'quad_perm:[{p},{p},{p},{p}]')
e('s_nop 1')
for j in range(8):
    e(f'v_mfma_f32_16x16x32_bf16 v[{DA+4*j}:{DA+4*j+3}], v[{AF+4}:{AF+7}], v[{TD+4*j}:{TD+4*j+3}], 0')
e('s_mov_b32 exec_lo, 0xff0000ff')
e('s_mov_b32 exec_hi, 0')
for jj in range(4):
    if jj > 0: e('s_nop 0')
    e(f'ds_write2_b32 v14, v{DA+8*jj}, v{DA+8*jj+4} offset0:{LDS_P//4+2*jj} offset1:{LDS_P//4+2*jj+1}')
e('s_waitcnt lgkmcnt(0)')
e('s_barrier')
stamp(7)
endpgm()
L.append(';;WARMFREE')

lab('L_p')
e(f's_cmp_ge_u32 s{S_SLOT}, 27'); e('s_cbranch_scc1 L_exit0')
getxcc()
slot9()
e('s_waitcnt lgkmcnt(0)')
e(f's_cmp_lg_u32 s{S_WAVE}, 6'); e('s_cbranch_scc1 L_p1')
c("bring this workgroup's three exchange slots (12 lines) into the L2")
e(f's_mul_i32 s{S_T0}, s{S_T}, 4608')
e(f's_lshl_b32 s{S_T1}, s{S_K}, 9')
e(f's_add_u32 s{S_T0}, s{S_T0}, s{S_T1}')
e(f's_add_u32 s{S_T0}, s{S_T0}, {EXL}')
e('v_lshrrev_b32 v1, 2, v0')
e(f's_movk_i32 s{S_T1}, 4608')
e(f'v_mul_u32_u24 v1, s{S_T1}, v1')
e('v_and_b32 v2, 3, v0')
e('v_lshlrev_b32 v2, 7, v2')
e(f'v_add3_u32 v1, v1, v2, s{S_T0}')
if TLB:
    e(f's_mul_i32 s{S_T1}, s{S_T}, {64*1152}')
    e(f's_lshl_b32 s{S_T2}, s{S_K}, 7')
    e(f's_add_u32 s{S_T1}, s{S_T1}, s{S_T2}')
    e(f's_movk_i32 s{S_T2}, {16*1152}')
    e(f'v_mul_u32_u24 v4, s{S_T2}, v0')
    e(f'v_add_u32 v4, s{S_T1}, v4')
e('s_mov_b64 exec, 0xfff')
if TLB == 1: e(f'global_load_dword v5, v4, {sp(WD)}')
if HOLD: e('s_barrier')
if TLB == 2: e(f'global_load_dword v5, v4, {sp(WD)}')
e(f'global_load_dword v3, v1, {sp(WS)} sc1')
e('s_endpgm')
L.append(';;WARMFREE')
lab('L_p1')
e(f's_load_dword s{S_TAG}, {sp(WS)}, 0')
if HOLD: e('s_barrier')
e(f's_lshl_b32 s{S_T3}, s{S_XCC}, 12')
e(f's_add_u32 s{S_T3}, s{S_T3}, {BC}')
e(f's_add_u32 s{S_T2}, s{S_T3}, 4096')
e(f's_and_b32 s{S_T1}, s{S_WAVE}, 1')
e(f's_lshl_b32 s{S_T1}, s{S_T1}, 6')
e(f'v_lshl_add_u32 v4, v0, 2, s{S_T1}')
e(f's_lshl_b32 s{S_K}, s{S_K}, 7')
e(f's_add_u32 s{S_K}, s{S_K}, s{S_T1}')
e('v_and_b32 v10, 60, v0')
e(f'v_add_u32 v11, s{S_T1}, v10')
e('v_and_b32 v12, 1, v0')
e(f'v_cmp_eq_u32 {sp(S_M)}, 1, v12')
e('v_lshlrev_b32 v12, 2, v12')
e('v_lshl_add_u32 v12, v11, 1, v12')
e('v_lshrrev_b32 v13, 4, v0')
e('v_and_b32 v14, 15, v0')
e('v_lshlrev_b32 v14, 2, v14')
e('v_lshl_add_u32 v13, v13, 7, v14')
e(f's_lshl_b32 s{S_T0}, s{S_K}, 3')
e(f's_add_u32 s{S_T0}, s{S_T0}, {ACCU}')
e(f'v_add_u32 v13, s{S_T0}, v13')
e('v_mov_b32 v7, 0')
e('s_mov_b64 exec, 0xffff')
L.append(';;WARMSPOT')
e('s_waitcnt lgkmcnt(0)')
e(f's_add_u32 s{S_TAG}, s{S_TAG}, 1')
stamp(1)
if SKEW >= 0:
    e('s_cmp_ge_u32 s2, 8'); e('s_cbranch_scc1 L_p_poll')
    e('s_lshl_b32 s72, s2, 2'); e('s_add_u32 s72, s72, 0x300000'); e('v_mov_b32 v20, s72'); e('v_mov_b32 v21, s76')
    e(f'global_store_dword v20, v21, {sp(WS)} sc1')
lab('L_p_poll')
e(f's_load_dwordx2 {sp(S_A)}, {sp(WS)}, s{S_T3}')
e(f's_add_u32 s{S_T3}, s{S_T3}, 64')
e(f's_cmp_ge_u32 s{S_T3}, s{S_T2}')
e('s_cbranch_scc1 L_p_slow')
e('s_waitcnt lgkmcnt(0)')
e(f's_cmp_lg_u32 s{S_A+1}, s{S_TAG}')
e('s_cbranch_scc1 L_p_poll')
lab('L_p_got')
e(f's_andn2_b32 s{S_T1}, 0x7ff, s{S_A}')
e(f's_mul_i32 s{S_T0}, s{S_T1}, 1152')
e(f's_add_u32 s{S_T0}, s{S_T0}, s{S_K}')
e(f's_load_dwordx16 s[{S_XS}:{S_XS+15}], {sp(X)}, s{S_T0}')
stamp(2)
e(f'v_mov_b32 v6, s{S_T1}')
e(f'ds_write_b32 v7, v6 offset:{LDS_WIN}')
e('s_waitcnt lgkmcnt(0)')
stamp(3)
for d in range(16): e(f'v_writelane_b32 v5, s{S_XS+d}, {d}')
e(f'ds_write_b32 v4, v5 offset:{LDS_X}')
e('s_waitcnt lgkmcnt(0)')
e('s_barrier')
L.append(';;WARMSPOT')
e('s_mov_b64 exec, -1')
e(f'ds_read_b32 v5, v11 offset:{LDS_X}')
e(f'v_add_u32 v10, s{S_T0}, v10')
c('r_sel = bf16(sigmoid(r))')
e(f's_ashr_i32 s{S_T2}, s{S_A}, 31')
e(f's_not_b32 s{S_T2}, s{S_T2}')
e(f's_or_b32 s{S_T2}, s{S_T2}, 0x80000000')
e(f's_xor_b32 s{S_T1}, s{S_A}, s{S_T2}')
e(f's_and_b32 s{S_T1}, s{S_T1}, 0xffff0000')
e(f'v_mov_b32 v8, s{S_T1}')
e('v_mul_f32 v8, 0xbfb8aa3b, v8')
e('v_exp_f32 v8, v8')
e(f's_mov_b32 s{S_B}, 0x11111111'); e(f's_mov_b32 s{S_B+1}, 0x11111111')
e('v_add_f32 v8, 1.0, v8')
e('v_rcp_f32 v8, v8')
e(f's_lshl_b64 {sp(S_A)}, {sp(S_B)}, 2')
bf16r(8, 8)
e('s_waitcnt lgkmcnt(0)')
e('v_lshlrev_b32 v6, 16, v5')
e('v_and_b32 v5, 0xffff0000, v5')
e(f'v_cndmask_b32 v5, v6, v5, {sp(S_M)}')
e('v_fma_f32 v5, v5, 0, v5')
e('v_mov_b32 v9, 0x41b80000')
e(f'v_mov_b32 v15, s{S_TAG}')
e('s_mov_b32 exec_lo, 0x77777777'); e('s_mov_b32 exec_hi, 0x77777777')
stamp(4)
e('s_barrier')
for i in range(3):
    e(f'ds_read2st64_b32 v[{16+2*i}:{17+2*i}], v12 offset0:{LDS_P//256+2*i} offset1:{LDS_P//256+2*i+1}')
e('s_waitcnt lgkmcnt(1)' if not STAMP else 's_waitcnt lgkmcnt(0)')
e('v_pk_add_f32 v[16:17], v[16:17], v[18:19]')
e('s_waitcnt lgkmcnt(0)')
e('v_pk_add_f32 v[16:17], v[16:17], v[20:21]')
e('v_add_f32 v16, v16, v17')
e(f'v_cndmask_b32 v16, v16, 1.0, {sp(S_A)}')
e(f'global_atomic_add_f32 v17, v13, v16, {sp(WS)} sc0')
stamp(5)
e('s_waitcnt vmcnt(0)')
stamp(6)
mdpp(18, 17, 'quad_perm:[2,2,2,2]')
e('v_add_f32 v16, v16, v17')
e('v_cmp_eq_f32 vcc, v9, v18')
bf16r(16, 16)
e(f's_and_b64 vcc, vcc, {sp(S_B)}')
e('s_cbranch_scc0 L_end')
e('v_mul_f32 v16, v16, v8')
bf16r(16, 16)
e('v_add_f32 v16, v5, v16')
e('s_nop 1')
mdpp(17, 16, 'quad_perm:[1,1,1,1]')
e('v_cvt_pk_bf16_f32 v16, v16, v17')
e('s_mov_b64 exec, vcc')
e(f'global_store_dword v10, v16, {sp(OUT)}')
if ACK: e('s_waitcnt vmcnt(0)')
stamp(7)
c('the last adder of the first granule moves the epoch on')
e(f's_cmp_lg_u32 s{S_K}, 0'); e('s_cbranch_scc1 L_end')
e('s_and_b64 exec, vcc, 1'); e('s_cbranch_scc0 L_end')
e(f'global_store_dword v7, v15, {sp(WS)} sc1')
lab('L_end')
if MINI:
    e('s_memrealtime s[82:83]'); e('s_mov_b64 exec, 1')
    e(f's_lshl_b32 s{S_T0}, s2, 4'); e(f's_add_u32 s{S_T0}, s{S_T0}, s{S_WAVE}')
    e(f's_lshl_b32 s{S_T0}, s{S_T0}, 6'); e(f's_add_u32 s{S_T0}, s{S_T0}, 0x8000000')
    e(f'v_mov_b32 v2, s{S_T0}'); e('s_waitcnt lgkmcnt(0)')
    for k in range(4): e(f'v_mov_b32 v{20+k}, s{80+k}')
    e(f'global_store_dwordx4 v2, v[20:23], {sp(WS)}')
if SKEW >= 0:
    e('s_cmp_lg_u32 s2, 9'); e('s_cbranch_scc1 L_exit0')
    e('s_mov_b32 s72, 0x300000'); e(f's_load_dwordx8 s[64:71], {sp(WS)}, s72'); e('s_waitcnt lgkmcnt(0)')
    e('s_mov_b32 s74, s64')
    for i in range(1, 8): e(f's_min_u32 s74, s74, s{64+i}')
    e(f's_sub_u32 s74, s{64+SKEW}, s74'); e('s_min_u32 s74, s74, 500'); e('s_mul_i32 s74, s74, 20')
    e('s_memrealtime s[72:73]'); e('s_waitcnt lgkmcnt(0)'); e('s_add_u32 s74, s74, s72')
    lab('L_dspin')
    e('s_memrealtime s[72:73]'); e('s_waitcnt lgkmcnt(0)')
    e('s_sub_u32 s75, s74, s72'); e('s_cmp_gt_i32 s75, 0'); e('s_cbranch_scc1 L_dspin')
if DIAG >= 0:
    e(f's_cmp_lg_u32 s2, {DIAG}'); e('s_cbranch_scc1 L_exit0')
    e('s_memrealtime s[72:73]'); e('s_waitcnt lgkmcnt(0)')
    e('s_sub_u32 s74, s72, s76'); e('s_min_u32 s74, s74, 5000'); e('s_mul_i32 s74, s74, 10'); e('s_add_u32 s74, s74, s72')
    lab('L_dspin')
    e('s_memrealtime s[72:73]'); e('s_waitcnt lgkmcnt(0)')
    e('s_sub_u32 s75, s74, s72'); e('s_cmp_gt_i32 s75, 0'); e('s_cbranch_scc1 L_dspin')
endpgm()
lab('L_seg1_end')
e('.p2align 12')

lab('L_r2')
for i in range(4): e(f'v_mov_b32 v{ACC+i}, 0')
e('v_sub_u32 v6, 0xffff, v1')
e(f's_lshl_b32 s{S_T0}, s{S_XCD}, 6')
e(f's_add_u32 s{S_T0}, s{S_T0}, s{S_SLOT}')
e(f's_lshl_b32 s{S_T0}, s{S_T0}, {K1SH}')
e(f's_add_u32 s{S_T0}, s{S_T0}, {K1L}')
e(f'v_mov_b32 v3, s{S_T0}')
e(f'v_add_u32 v7, {K1G-K1L}, v3')
e(f's_mov_b32 s{S_T2}, 0xffff0000')
KY = 84
if WLDS:
    e('s_waitcnt vmcnt(9)')
    for cc in range(9): e(f'ds_read_b128 v[{WW+4*cc}:{WW+4*cc+3}], v2 offset:{LDS_W+128*cc}')
e('s_waitcnt lgkmcnt(0)')
e(f's_add_u32 s{S_TAG}, s{S_TAG}, 1')
e(f'v_mov_b32 v{KY+1}, s{S_TAG}')
for cc in range(9):
    e(f's_waitcnt vmcnt({8-cc})')
    for d in range(4): e(f'v_dot2c_f32_bf16 v{ACC+d}, v{XR+4*cc+d}, v{WW+4*cc+d}')
stamp(2)
e('s_nop 2')
e(f'v_pk_add_f32 v[{ACC}:{ACC+1}], v[{ACC}:{ACC+1}], v[{ACC+2}:{ACC+3}]')
e(f'v_add_f32 v{ACC}, v{ACC}, v{ACC+1}')
for m in ['quad_perm:[1,0,3,2]', 'quad_perm:[2,3,0,1]', 'row_half_mirror']:
    e('s_nop 1'); dpp('v_add_f32', ACC, ACC, ACC, m)
K0, K1 = KY+2, KY+3
e(f'v_cmp_o_f32 vcc, v{ACC}, v{ACC}')
e(f'v_cvt_pk_bf16_f32 v{K0}, v{ACC}, v{ACC}')
e(f'v_ashrrev_i32 v{K1}, 31, v{K0}')
e(f'v_or_b32 v{K1}, 0x80000000, v{K1}')
e(f'v_xor_b32 v{K0}, v{K0}, v{K1}')
e(f'v_cndmask_b32 v{K0}, 0, v{K0}, vcc')
e(f'v_and_or_b32 v{KY}, v{K0}, s{S_T2}, v6')
e('s_nop 1'); dpp('v_max_u32', KY, KY, KY, 'row_shr:8')
e('s_nop 1'); dpp('v_max_u32', KY, KY, KY, 'row_bcast:15', '0xa')
e('s_nop 1'); dpp('v_max_u32', KY, KY, KY, 'row_bcast:31', '0xc')
e('s_mov_b32 exec_lo, 0'); e('s_brev_b32 exec_hi, 1')
e(f'global_store_dwordx2 v3, v[{KY}:{KY+1}], {sp(WS)}')
if HOLD: e('s_barrier')
e(f'global_store_dwordx2 v7, v[{KY}:{KY+1}], {sp(WS)} sc1')
e('s_mov_b64 exec, -1')
stamp(3)
e(f'v_mov_b32 v{K1}, 0x207')
e(f'v_cmp_class_f32 vcc, v{ACC}, v{K1}')
e('s_cbranch_vccnz L_r_fix')
lab('L_r_nofix')
def copy_rows():
    for cc in range(9):
        e(f'global_store_dwordx4 v4, v[{XR+4*cc}:{XR+4*cc+3}], {sp(OUT)} offset:{128*cc}{ONT}')
if CP == 'E':
    e(f'v_readlane_b32 s{S_T1}, v{KY}, 63')
    e(f's_andn2_b32 s{S_T1}, 0x7ff, s{S_T1}')
    e(f'v_cmp_ne_u32 vcc, s{S_T1}, v1')
    e('s_mov_b64 exec, vcc')
    copy_rows()
    e('s_not_b64 exec, vcc')
e('s_barrier')
e('v_mov_b32 v2, 0')
e(f'ds_read_b32 v2, v2 offset:{LDS_WIN}')
e('s_waitcnt lgkmcnt(0)')
e('v_cmp_ne_u32 vcc, v2, v1')
if CP == 'D': e('s_barrier')
stamp(4)
e('s_and_b64 exec, exec, vcc')
if CP == 'E': e('s_cbranch_scc0 L_r_end')
copy_rows()
lab('L_r_end')
if CP != 'D': e('s_barrier')
if STAMP:
    stamp(5); e('s_waitcnt vmcnt(0)'); stamp(6)
endpgm()

lab('L_spare')
e(f's_add_u32 s{S_T0}, s{S_SLOT}, 4')
e(f's_lshl_b32 s{S_T0}, s{S_T0}, {K1SH}')
e(f's_add_u32 s{S_T0}, s{S_T0}, s{S_T1}')
e(f'v_mov_b32 v43, s{S_T0}')
e(f'v_add_u32 v44, {K1G-K1L}, v43')
e('v_mov_b32 v6, 0')
e('s_waitcnt lgkmcnt(0)')
e(f's_add_u32 s{S_TAG}, s{S_TAG}, 1')
e(f'v_mov_b32 v7, s{S_TAG}')
e(f's_cmp_lt_u32 s{S_T}, 8')
e('s_cbranch_scc1 L_s_l1')
c('neutral key: this wave has read the epoch (and its clears have landed)')
e('s_mov_b64 exec, 1')
e(f's_cmp_lt_u32 s{S_T}, 32')
e('s_cbranch_scc1 L_s_now')
e('s_waitcnt vmcnt(0)')
lab('L_s_now')
e(f'global_store_dwordx2 v43, v[6:7], {sp(WS)}')
e(f'global_store_dwordx2 v44, v[6:7], {sp(WS)} sc1')
e('s_mov_b64 exec, -1')
stamp(1)
if HOLD: e('s_barrier')
e('s_branch L_s_l2')
lab('L_s_l1')
if HOLD: e('s_barrier')
e(f's_lshl_b32 s{S_T0}, s{S_T}, 7')
e(f's_add_u32 s{S_T0}, s{S_T0}, {K2}')
e(f'v_lshl_add_u32 v42, v0, 10, s{S_T0}')
e(f's_mov_b32 s{S_CNT}, 0')
lab('L_s_poll1')
e(f'global_load_dwordx2 v[8:9], v40, {sp(WS)} sc1')
e(f's_add_u32 s{S_CNT}, s{S_CNT}, 1')
e(f's_cmp_lg_u32 s{S_CNT}, {LOCN}')
e('s_cbranch_scc1 L_s_same1')
e(f'v_add_u32 v40, {K1G-K1L}, v40')
lab('L_s_same1')
e(f's_cmp_gt_u32 s{S_CNT}, {SPIN}')
e('s_cbranch_scc1 L_s_got1')
e('s_waitcnt vmcnt(0)')
e(f'v_cmp_ne_u32 vcc, s{S_TAG}, v9')
e('s_cbranch_vccnz L_s_poll1')
lab('L_s_got1')
stamp(7)
for m in ('row_shr:1', 'row_shr:2', 'row_shr:4', 'row_shr:8'):
    dpp('v_max_u32', 8, 8, 8, m); e('s_nop 1')
dpp('v_max_u32', 8, 8, 8, 'row_bcast:15', '0xa')
e('s_mov_b32 exec_hi, 0xff')
e(f'v_readlane_b32 s{S_T0}, v8, 31')
e('s_nop 1')
e(f'v_mov_b32 v6, s{S_T0}')
e(f'global_store_dwordx2 v42, v[6:7], {sp(WS)} sc1')
e('s_mov_b32 exec_hi, -1')
lab('L_s_l2')
e(f's_mov_b32 s{S_CNT}, {SPIN}')
e('v_min_u32 v5, 8, v0')
e('v_lshlrev_b32 v5, 7, v5')
e(f's_movk_i32 s{S_T1}, 1152')
e(f's_movk_i32 s{S_T2}, 0x7ff')
lab('L_s_poll')
e(f'global_load_dwordx2 v[8:9], v41, {sp(WS)} sc1')
e(f's_sub_u32 s{S_CNT}, s{S_CNT}, 1')
e('s_cbranch_scc1 L_s_got')
e('s_waitcnt vmcnt(0)')
e(f'v_cmp_ne_u32 vcc, s{S_TAG}, v9')
e('s_cbranch_vccnz L_s_poll')
lab('L_s_got')
stamp(2)
dpp('v_max_u32', 8, 8, 8, 'quad_perm:[1,0,3,2]'); e('s_nop 1')
dpp('v_max_u32', 8, 8, 8, 'quad_perm:[2,3,0,1]'); e('s_nop 1')
dpp('v_max_u32', 6, 8, 8, 'row_half_mirror')
e(f'global_store_dwordx2 v3, v[6:7], {sp(WS)}')
e(f'v_bfi_b32 v10, v6, 0, s{S_T2}')
e(f'v_mad_u32_u24 v5, v10, s{S_T1}, v5')
e(f'global_load_dword v39, v5, {sp(X)}')
e('v_mov_b32 v13, 0')
e(f'ds_write_b32 v13, v10 offset:{LDS_WIN}')
stamp(3)
e(f's_cmp_lg_u32 s{S_T}, 39')
e('s_cbranch_scc1 L_s_nog')
e(f'v_mov_b32 v5, {WIN_G}')
e('s_mov_b64 exec, 1')
e(f'global_store_dwordx2 v5, v[6:7], {sp(WS)} sc1')
lab('L_s_nog')
e('s_waitcnt lgkmcnt(0)')
e('s_barrier')
e('s_barrier')
lab('L_s_end')
endpgm()

lab('L_w_far')
c('partners may sit on another die: publish a device-wide copy, then alternate between the two copies')
e(f's_cmp_gt_u32 s{S_CNT}, {SPIN}')
e('s_cbranch_scc1 L_w_go')
e(f'v_xor_b32 v13, {EXG^EXL}, v13')
e(f's_xor_b32 s{S_TB+3}, s{S_TB+3}, s{S_XCC}')
e(f's_cmp_lg_u32 s{S_CNT}, {LOCN}')
e('s_cbranch_scc1 L_w_same')
e(f'v_xor_b32 v12, {EXG^EXL}, v12')
e(f'v_xor_b32 v{AF+3}, s{S_XCC}, v{AF+3}')
e('s_mov_b32 exec_hi, 0')
e(f'global_store_dwordx4 v12, v[{AF}:{AF+3}], {sp(WS)} sc1')
e('s_mov_b32 exec_hi, -1')
e('s_branch L_w_same')
lab('L_p_slow')
e(f'v_mov_b32 v6, {WIN_G}')
e(f's_mov_b32 s{S_CNT}, {SPIN}')
lab('L_p_slowpoll')
e(f'global_load_dwordx2 v[8:9], v6, {sp(WS)} sc1')
e('s_waitcnt vmcnt(0) lgkmcnt(0)')
e(f'v_readfirstlane_b32 s{S_A}, v8')
e(f'v_readfirstlane_b32 s{S_A+1}, v9')
e(f's_sub_u32 s{S_CNT}, s{S_CNT}, 1')
e('s_cbranch_scc1 L_p_got')
e(f's_cmp_lg_u32 s{S_A+1}, s{S_TAG}')
e('s_cbranch_scc1 L_p_slowpoll')
e('s_branch L_p_got')
if STAMP:
    lab('L_flush')
    e('s_waitcnt vmcnt(0) lgkmcnt(0)')
    e('s_mov_b64 exec, 1')
    e('s_sleep 40')
    e(f's_lshl_b32 s{S_T0}, s2, 4'); e(f's_add_u32 s{S_T0}, s{S_T0}, s{S_WAVE}')
    e(f's_lshl_b32 s{S_T0}, s{S_T0}, 6'); e(f's_add_u32 s{S_T0}, s{S_T0}, 0x8000000')
    e(f'v_mov_b32 v2, s{S_T0}')
    for i in range(4):
        for k in range(4): e(f'v_mov_b32 v{4+k}, s{S_ST+4*i+k}')
        e(f'global_store_dwordx4 v2, v[4:7], {sp(WS)} offset:{16*i}'); e('s_nop 1')
    e('s_endpgm')
lab('L_r_fix')
c('x + x*0 turns an infinity into a NaN')
e(f's_mov_b32 s{S_SELHI}, 0x07060302')
for d in range(36):
    r = XR + d
    e(f'v_lshlrev_b32 v{K0}, 16, v{r}')
    e(f'v_and_b32 v{K1}, s{S_T2}, v{r}')
    e(f'v_fma_f32 v{K0}, v{K0}, 0, v{K0}')
    e(f'v_fma_f32 v{K1}, v{K1}, 0, v{K1}')
    e(f'v_perm_b32 v{r}, v{K1}, v{K0}, s{S_SELHI}')
e('s_branch L_r_nofix')

hdr = f'''; MoD (mixture-of-depths, capacity 1) router + SwiGLU FFN on the routed token, one launch.
; @launch grid=(256,1,1) block=(448,1,1) lds={LDS_BYTES}
.amdgcn_target "amdgcn-amd-amdhsa--gfx950"
.text
.globl standalone__moe_arch_mod__prompt_kernel
.p2align 12
.fill {(4096-768)//4}, 4, 0xBF800000
.p2align 8
.type standalone__moe_arch_mod__prompt_kernel,@function
standalone__moe_arch_mod__prompt_kernel:'''
tail = '''.section .rodata,"a"
.p2align 6
.amdhsa_kernel standalone__moe_arch_mod__prompt_kernel
  .amdhsa_next_free_vgpr 184
  .amdhsa_next_free_sgpr 96
  .amdhsa_accum_offset 184
  .amdhsa_group_segment_fixed_size 0
  .amdhsa_kernarg_size 64
  .amdhsa_user_sgpr_count 2
  .amdhsa_user_sgpr_kernarg_segment_ptr 1
  .amdhsa_system_sgpr_workgroup_id_x 1
  .amdhsa_float_denorm_mode_32 3
.end_amdhsa_kernel
'''
def offsets(lines):
    out = []; k = 0
    for ln in lines:
        if ln.startswith(';;WARM'): out.append(f'MK{k}:'); k += 1
        else: out.append(ln)
    src = hdr.replace('.fill 832,', '.fill 1024,') + '\n' + '\n'.join(out) + '\nL_warm1:\nL_warm2:\nL_warm3:\n' + tail
    d = tempfile.mkdtemp()
    open(d + '/a.s', 'w').write(src)
    subprocess.run(['clang', '-x', 'assembler', '-target', 'amdgcn-amd-amdhsa', '-mcpu=gfx950', '-c', d + '/a.s', '-o', d + '/a.o'], check=True)
    t = subprocess.run(['llvm-objdump', '-t', d + '/a.o'], capture_output=True, text=True).stdout
    sy = {m.group(2): int(m.group(1), 16) for m in re.finditer(r'^([0-9a-f]{16}) .*\.text\s+[0-9a-f]+ (?:\.protected |\.hidden )?(\S+)$', t, re.M)}
    base = sy['standalone__moe_arch_mod__prompt_kernel']
    return {n: v - base for n, v in sy.items()}
offs = offsets(L)
marks = [(i, ln) for i, ln in enumerate(L) if ln.startswith(';;WARM')]
mo = [offs[f'MK{k}'] for k in range(len(marks))]
chosen = []
segs = [(0, offs['L_end'])]
shift = 0
for (a, b) in segs:
    if a == offs['L_r2']: shift = 0
    covered = ((a + shift) // 64) * 64 + 1088
    while covered < b + shift + 8:
        cand = [k for k in range(len(marks)) if a <= mo[k] < b and mo[k] + shift + 4 < covered + 64 and (not chosen or k > chosen[-1])]
        assert cand, (covered, mo, segs)
        k = cand[-1]
        sp4 = marks[k][1].startswith(';;WARMSPOT')
        pos = mo[k] + shift + (4 if sp4 else 0)
        chosen.append(k); shift += 8 if sp4 else 4
        nc = (pos // 64) * 64 + 1088
        assert nc > covered, (nc, covered, mo)
        covered = nc
assert offs['L_seg1_end'] + 32 < 4096
names = {k: n + 1 for n, k in enumerate(chosen)}
nst = len(chosen)
outl = []; k = 0
for ln in L:
    if ln.startswith(';;WARM'):
        if k in names:
            n = names[k]
            tgt = f'L_warm{n+3}' if n + 3 <= nst else 'L_p'
            if ln.startswith(';;WARMSPOT'): outl.append(f'    s_branch L_skip{n}')
            outl.append(f'L_warm{n}:'); outl.append(f'    s_branch {tgt}')
            if ln.startswith(';;WARMSPOT'): outl.append(f'L_skip{n}:')
        k += 1
    elif ln == 'L_p:':
        for n in range(nst + 1, 4): outl.append(f'L_warm{n}:')
        outl.append(ln)
    else: outl.append(ln)
sys.stderr.write(f'chosen {[mo[k] for k in chosen]} ' + ' '.join(f'{n}={v}' for n, v in sorted(offs.items(), key=lambda x: x[1]) if n in ('L_w','L_w_poll','L_p','L_end','L_seg1_end','L_r2','L_spare','L_s_end')) + '\n')
print(hdr); print('\n'.join(outl)); print(tail)
```

```python
import sys, subprocess, re, tempfile
def opt(name, d):
    a = sys.argv
    return type(d)(a[a.index(name)+1]) if name in a else d
def mod(name, d):
    v = opt(name, d); return '' if v == '-' else ' ' + v.replace('+', ' ')
STAMP = '--stamp' in sys.argv
MINI = '--mini' in sys.argv
WING = opt('--wing', 8); WIND = opt('--wind', 9); WIN0 = opt('--win0', 6)
NT = mod('--nt', 'nt'); XNT = mod('--xnt', '-'); ONT = mod('--ont', 'sc1')
CP = opt('--cp', 'D')
DIAG = opt('--diag', -1)
HOLD = opt('--hold', 1); WLAST = opt('--wlast', 0); LIGHT = opt('--light', 0)
WLDS = opt('--wlds', 1); TLB = opt('--tlb', 0); ACK = opt('--ack', 0)
K1SH = opt('--k1sh', 7)
SKEW = opt('--skew', -1)
X0 = opt('--x0', 1); APOLL = opt('--apoll', 4); ASL = opt('--asl', 1); SPEC = opt('--spec', 0)
B0 = opt('--b0', 0)
NOP = opt('--nop', 0); NOPT = opt('--nopt', 0); WST = opt('--wst', 0)
RST = opt('--rst', 0); LATE = opt('--late', 1); SPX = opt('--spx', 0)
NRD = opt('--nrd', 4); NBC = opt('--nbc', 64)
SPL = opt('--spl', 1)
ND1 = opt('--nd1', 8)
NOCOPY = opt('--nocopy', 0); EXM = mod('--exm', '-'); FOM = mod('--fom', '-')
EPM = mod('--epm', '-')
NOEP = opt('--noep', 0); NOFIN = opt('--nofin', 0); EARLYST = opt('--est', 0)
SPIN = 100000
LOCN = opt('--locn', 60)

NDEST = 8 * (NRD + SPEC)
L = []
def e(s): L.append('    ' + s)
def lab(s): L.append(s + ':')
def c(s): L.append('    ; ' + s)
X, WR, WG, WU, WD, OUT, DBG, WS = 4, 6, 8, 10, 12, 14, 16, 18
def sp(n): return f's[{n}:{n+1}]'
S_WAVE, S_XCD, S_SLOT = 20, 21, 22
S_T0, S_T1, S_T2, S_T3 = 23, 24, 25, 26
S_SELLO, S_SELHI = 27, 28
S_CNT, S_TAG, S_T, S_K = 29, 30, 31, 32
S_XCC = 33
S_A, S_B = 34, 36
S_TB = 38; S_PS = 42
S_M = 46
S_XS = 48
S_ST = 80
K1L, K1G, WIN_G, ACCU, BC, K2, EXL, EXG = 0x20000, 0x30000, 0x3000, 0x4000, 0x8000, 0x10000, 0x100000, 0x180000
LDS_X, LDS_WIN, LDS_P = 0, 128, 256
LDS_W = 2048
LDS_BYTES = 3328

def stamp(i):
    if STAMP: e(f's_memrealtime s[{S_ST+2*i}:{S_ST+2*i+1}]')
def endpgm():
    e('s_branch L_flush' if STAMP else 's_endpgm')
def dpp(op, d, a, b, m, rm='0xf'):
    e(f'{op}_dpp v{d}, v{a}, v{b} {m} row_mask:{rm} bank_mask:0xf')
def mdpp(d, a, m, rm='0xf'):
    e(f'v_mov_b32_dpp v{d}, v{a} {m} row_mask:{rm} bank_mask:0xf')
def perms(raw, T, p):
    for j in range(8):
        sel = S_SELHI if (j & 1) else S_SELLO
        e(f'v_perm_b32 v{T+4*j+p}, v{raw+4*(2*p+1)+j//2}, v{raw+4*(2*p)+j//2}, s{sel}')
def bf16r(d, s):
    e(f'v_cvt_pk_bf16_f32 v{d}, v{s}, v{s}'); e(f'v_lshlrev_b32 v{d}, 16, v{d}')
def slot9():
    e(f's_mul_i32 s{S_T0}, s{S_SLOT}, 57')
    e(f's_lshr_b32 s{S_T0}, s{S_T0}, 9')
    e(f's_mul_i32 s{S_K}, s{S_T0}, 9')
    e(f's_sub_u32 s{S_K}, s{S_SLOT}, s{S_K}')
    e(f's_mul_i32 s{S_T}, s{S_XCD}, 3')
    e(f's_add_u32 s{S_T}, s{S_T}, s{S_T0}')
    e(f's_mul_i32 s{S_T}, s{S_T}, 3')
b1n = [0]
def bar1():
    if not HOLD: return
    if X0:
        b1n[0] += 1
        e(f's_cmp_eq_u32 s{S_XCD}, 0'); e(f's_cbranch_scc1 L_nob{b1n[0]}')
        e('s_barrier')
        lab(f'L_nob{b1n[0]}')
    else: e('s_barrier')
def getxcc(): e(f's_getreg_b32 s{S_XCC}, hwreg(HW_REG_XCC_ID, 0, 3)')

if MINI and EARLYST: e('s_memrealtime s[80:81]')
e('s_cmp_ge_u32 s2, 256')
e('s_cbranch_scc1 L_exit0')
e('s_load_dwordx16 s[4:19], s[0:1], 0')
stamp(0)
if MINI and not EARLYST: e('s_memrealtime s[80:81]')
if DIAG >= 0 or SKEW >= 0: e('s_memrealtime s[76:77]')
e(f'v_readfirstlane_b32 s{S_WAVE}, v0')
e('v_and_b32 v0, 63, v0')
e(f's_and_b32 s{S_XCD}, s2, 7')
e(f's_lshr_b32 s{S_SLOT}, s2, 3')
e(f's_lshr_b32 s{S_WAVE}, s{S_WAVE}, 6')
if STAMP:
    for i in range(1, 8): e(f's_mov_b64 s[{S_ST+2*i}:{S_ST+2*i+1}], 0')
e(f's_cmp_lt_u32 s{S_WAVE}, 4'); e('s_cbranch_scc1 L_notp')
if B0: e('s_barrier')
e(f's_cmp_eq_u32 s{S_WAVE}, 4'); e('s_cbranch_scc1 L_warm1')
e(f's_cmp_eq_u32 s{S_WAVE}, 5'); e('s_cbranch_scc1 L_warm2')
e(f's_cmp_eq_u32 s{S_WAVE}, 6'); e('s_cbranch_scc1 L_warm3')
e('s_branch L_warm_r')
lab('L_spare0')
if X0:
    e(f's_cmp_eq_u32 s{S_WAVE}, 1'); e('s_cbranch_scc1 L_rx')
e(f's_cmp_lg_u32 s{S_WAVE}, 0'); e('s_cbranch_scc1 L_warm_s')
e(f's_lshl_b32 s{S_T1}, s{S_XCD}, {6+K1SH}')
e(f's_add_u32 s{S_T1}, s{S_T1}, {K1L}')
if X0:
    e(f's_cmp_eq_u32 s{S_XCD}, 0')
    e(f's_cselect_b32 s{S_T2}, 27, 0'); e(f's_cselect_b32 s{S_T3}, 31, 35')
    e(f'v_max_u32 v40, s{S_T2}, v0'); e(f'v_min_u32 v40, s{S_T3}, v40')
else: e('v_min_u32 v40, 31, v0')
e(f'v_lshl_add_u32 v40, v40, {K1SH}, s{S_T1}')
e('s_waitcnt lgkmcnt(0)')
e(f's_load_dword s{S_TAG}, {sp(WS)}, 0')
e(f's_cmp_lg_u32 s{S_SLOT}, 27'); e('s_cbranch_scc1 L_spare')
c('the first spare of each group brings the key lines into this L2')
e(f'global_load_dwordx2 v[8:9], v40, {sp(WS)} sc1')
e('s_branch L_spare')
lab('L_exit0')
e('s_endpgm')
lab('L_notp')
e(f's_cmp_lg_u32 s{S_WAVE}, 3'); e('s_cbranch_scc1 L_w')

XR, WW, ACC = 8, 44, 80
c('router wave: rows 8*wg + (l>>3), bytes 128c + 16*(l&7)')
e(f's_lshl_b32 s{S_T1}, s2, 3')
if X0:
    e(f's_cmp_lg_u32 s{S_XCD}, 0'); e('s_cbranch_scc1 L_r1')
    e(f's_cmp_ge_u32 s{S_SLOT}, 27'); e('s_cbranch_scc1 L_r1')
    e('s_endpgm')
    lab('L_rx')
    c('extra router wave: takes the rows of workgroup 8e, e = min(7*(31-slot) + xcd-1, 26)')
    e(f's_cmp_eq_u32 s{S_SLOT}, 27'); e('s_cbranch_scc1 L_exit0')
    e(f's_cmp_eq_u32 s{S_XCD}, 0'); e('s_cbranch_scc1 L_exit0')
    e(f's_mul_i32 s{S_T1}, s{S_SLOT}, -7')
    e(f's_add_u32 s{S_T1}, s{S_T1}, s{S_XCD}')
    e(f's_addk_i32 s{S_T1}, {7*31-1}')
    e(f's_min_u32 s{S_T1}, s{S_T1}, 26')
    e(f's_lshl_b32 s{S_T1}, s{S_T1}, 6')
    e(f's_addk_i32 s{S_SLOT}, 4')
    lab('L_r1')
e('s_setprio 3')
e('v_lshrrev_b32 v1, 3, v0')
e(f'v_add_u32 v1, s{S_T1}, v1')
e('v_and_b32 v2, 7, v0')
e('v_lshlrev_b32 v2, 4, v2')
e(f's_movk_i32 s{S_T2}, 1152')
e(f'v_mad_u32_u24 v4, v1, s{S_T2}, v2')
if WLDS:
    e('v_lshlrev_b32 v5, 4, v0')
    e(f's_movk_i32 m0, {LDS_W}')
e('s_waitcnt lgkmcnt(0)')
def wl():
    if WLDS:
        e(f'global_load_lds_dwordx4 v5, {sp(WR)}')
        e('s_mov_b64 exec, 0xff')
        e(f'global_load_lds_dwordx4 v5, {sp(WR)} offset:1024')
        e('s_mov_b64 exec, -1')
        return
    for cc in range(9): e(f'global_load_dwordx4 v[{WW+4*cc}:{WW+4*cc+3}], v2, {sp(WR)} offset:{128*cc}')
if not WLAST: wl()
for cc in range(9): e(f'global_load_dwordx4 v[{XR+4*cc}:{XR+4*cc+3}], v4, {sp(X)} offset:{128*cc}{XNT}')
if WLAST: wl()
e(f's_load_dword s{S_TAG}, {sp(WS)}, 0')
if B0: e('s_barrier')
stamp(1)
e('s_branch L_r2')

lab('L_w')
e(f's_cmp_ge_u32 s{S_SLOT}, 27'); e('s_cbranch_scc1 L_spare0')
RAW, TX, DA, AF = 16, 112, 144, 176
slot9()
e(f's_add_u32 s{S_T}, s{S_T}, s{S_WAVE}')
c('G: row = 64k + 32u + 8*(l>>4) + e ; col bytes = 128c + 16*(l&7) ; matrix = (l>>3)&1')
e('v_lshrrev_b32 v8, 4, v0')
e(f's_lshl_b32 s{S_T0}, s{S_K}, 3')
e(f'v_add_u32 v1, s{S_T0}, v8')
e(f's_mov_b32 s{S_T1}, {8*9216}')
e(f'v_mul_lo_u32 v1, v1, s{S_T1}')
e('v_and_b32 v9, 7, v0')
e('v_lshlrev_b32 v9, 4, v9')
e(f's_lshl_b32 s{S_T2}, s{S_T}, 7')
e(f'v_add3_u32 v1, v1, v9, s{S_T2}')
e('v_and_b32 v10, 8, v0')
e('v_cmp_ne_u32 vcc, 0, v10')
e(f's_mov_b32 s{S_A}, 9216'); e(f's_mov_b32 s{S_A+1}, 0')
e(f's_mov_b32 s{S_B}, {25*9216}'); e(f's_mov_b32 s{S_B+1}, 0')
e('s_waitcnt lgkmcnt(0)')
e(f'v_mov_b32 v2, s{WG}'); e(f'v_mov_b32 v3, s{WG+1}')
e(f'v_mov_b32 v4, s{WU}'); e(f'v_mov_b32 v5, s{WU+1}')
e('v_cndmask_b32 v2, v2, v4, vcc'); e('v_cndmask_b32 v3, v3, v5, vcc')
e('v_add_co_u32 v2, vcc, v2, v1')
e(f's_load_dword s{S_TAG}, {sp(WS)}, 0')
if not B0: e('s_nop 0')
if B0: e('s_barrier')
e('v_addc_co_u32 v3, vcc, 0, v3, vcc')
DOFF = [-2880, -1728, 1728, 2880]
def wload(n):
    if n < 16:
        e(f'global_load_dwordx4 v[{RAW+4*n}:{RAW+4*n+3}], v[2:3], off{NT}')
        if n < 15: e(f'v_lshl_add_u64 v[2:3], v[2:3], 0, {sp(S_B if n == 7 else S_A)}')
    else:
        r = n - 16
        e(f'global_load_dwordx4 v[{RAW+4*n}:{RAW+4*n+3}], v{6+r//4}, {sp(WD)} offset:{DOFF[r%4]}{NT}')
TG = [TX, RAW]; TD = RAW + 32
def gperm(pair): perms(RAW + 32*(pair//4), TG[pair//4], pair % 4)
if not LATE:
    for n in range(WIN0): wload(n)
c('D: row = 64c + 32*(kg&1) + 16*m + 2*(kg>>1) + {0,1,4,5,8,9,12,13} ; col bytes = 128k + 16q')
e('v_and_b32 v6, 24, v0')
e('v_lshlrev_b32 v6, 1, v6')
e('v_lshrrev_b32 v7, 5, v0')
e('v_lshl_add_u32 v6, v7, 1, v6')
e(f's_lshl_b32 s{S_T0}, s{S_T}, 6')
e(f'v_add_u32 v6, s{S_T0}, v6')
e(f's_movk_i32 s{S_T1}, 1152')
e(f'v_mul_lo_u32 v6, v6, s{S_T1}')
e(f's_lshl_b32 s{S_T3}, s{S_K}, 7')
e(f's_add_u32 s{S_T3}, s{S_T3}, 2880')
e(f'v_add3_u32 v6, v6, v9, s{S_T3}')
e('v_add_u32 v7, 9216, v6')
e(f's_mov_b32 s{S_SELLO}, 0x05040100')
e(f's_mov_b32 s{S_SELHI}, 0x07060302')
c('A-fragment LDS address, exchange addresses, partial LDS address')
e('v_lshlrev_b32 v11, 4, v8')
e(f's_mul_i32 s{S_T0}, s{S_T}, 4608')
e(f's_add_u32 s{S_T0}, s{S_T0}, {EXL+2048}')
e(f'v_lshl_add_u32 v13, v0, 4, s{S_T0}')
e(f's_lshl_b32 s{S_T1}, s{S_K}, 9')
e(f's_add_u32 s{S_T0}, s{S_T0}, s{S_T1}')
e(f's_sub_u32 s{S_T0}, s{S_T0}, 2048')
e('v_and_b32 v12, 4, v0'); e('v_lshlrev_b32 v12, 6, v12')
e('v_lshl_add_u32 v12, v10, 4, v12')
e('v_and_b32 v14, 3, v0'); e('v_lshl_add_u32 v12, v14, 5, v12')
e(f'v_add3_u32 v12, v12, v11, s{S_T0}')
e(f'v_cmp_eq_u32 {sp(S_M)}, 0, v10')
e(f's_lshl_b32 s{S_T0}, s{S_WAVE}, 9')
e('v_lshlrev_b32 v14, 5, v10')
e('v_lshl_add_u32 v14, v9, 1, v14')
e(f'v_add_u32 v14, s{S_T0}, v14')
getxcc()
for i in range(4): e(f's_mov_b32 s{S_PS+i}, {0x07060500+i:#x}')
if LATE:
    for n in range(WIN0): wload(n)
L.append(';;WARMSPOT')
bar1()
stamp(1)
done_pairs = 0; got = 0
NI = 16 + ND1
for n in range(WIN0, NI):
    w = WING if n < 16 else WIND
    need = n - w + 1
    if need > got:
        e(f's_waitcnt vmcnt({w-1})'); got = need
    wload(n)
    while done_pairs < 8 and 2*done_pairs + 2 <= got:
        gperm(done_pairs); done_pairs += 1
    if n == WING + 2:
        e('s_waitcnt lgkmcnt(0)')
        e(f's_add_u32 s{S_TAG}, s{S_TAG}, 1')
        e(f's_lshl_b32 s{S_T0}, s{S_XCC}, 24')
        e(f's_xor_b32 s{S_TAG}, s{S_TAG}, s{S_T0}')
        for i in range(4): e(f's_bfe_u32 s{S_TB+i}, s{S_TAG}, {(8<<16)|(8*i)}')
        e(f'v_mov_b32 v15, s{S_TAG}')
    L.append(';;WARMSPOT')
while done_pairs < (4 if ND1 == 8 else 7):
    e(f's_waitcnt vmcnt({NI - (2*done_pairs+2)})'); gperm(done_pairs); done_pairs += 1
if WST:
    e('s_waitcnt vmcnt(8)'); stamp(1); e('s_waitcnt vmcnt(0)')
stamp(2)
e('s_barrier')
e(f'ds_read_b128 v[{AF}:{AF+3}], v11 offset:{LDS_X}')
e(f'ds_read_b128 v[{AF+4}:{AF+7}], v11 offset:{LDS_X+64}')
for n in range(NI, 24): wload(n)
e('s_waitcnt lgkmcnt(0)' if STAMP else 's_waitcnt lgkmcnt(1)')
stamp(3)
JO = (0, 4, 1, 5, 2, 6, 3, 7)
for j in JO:
    e(f'v_mfma_f32_16x16x32_bf16 v[{DA+4*j}:{DA+4*j+3}], v[{AF}:{AF+3}], v[{TG[0]+4*j}:{TG[0]+4*j+3}], 0')
while done_pairs < 8:
    e(f's_waitcnt vmcnt({24 - (2*done_pairs+2)})'); gperm(done_pairs); done_pairs += 1
e('s_waitcnt lgkmcnt(0)')
for j in JO:
    e(f'v_mfma_f32_16x16x32_bf16 v[{DA+4*j}:{DA+4*j+3}], v[{AF+4}:{AF+7}], v[{TG[1]+4*j}:{TG[1]+4*j+3}], v[{DA+4*j}:{DA+4*j+3}]')
EX = TX
e('s_nop 1')
for j in range(4):
    mdpp(DA+4*j, DA+4*j+16, 'quad_perm:[0,1,2,3]', '0x2')
    e(f'v_perm_b32 v{AF+j}, v{DA+4*j}, v15, s{S_PS+j}')
e('s_mov_b32 exec_hi, 0')
e(f'global_store_dwordx4 v12, v[{AF}:{AF+3}], {sp(WS)}{EXM}')
e('s_mov_b32 exec_hi, -1')
stamp(4)
L.append(';;WARMSPOT')
for p in range(3):
    e(f's_waitcnt vmcnt({7-2*p})'); perms(RAW+64, TD, p)
def five_loads():
    for i in range(4):
        e(f'global_load_dwordx4 v[{EX+4*i}:{EX+4*i+3}], v13, {sp(WS)} offset:{1024*i-2048} sc1')
    e('s_mov_b32 exec_hi, 0')
    e(f'global_load_dwordx4 v[{EX+16}:{EX+19}], v13, {sp(WS)} offset:2048 sc1')
    e('s_mov_b32 exec_hi, -1')
five_loads()
e('s_waitcnt vmcnt(6)'); perms(RAW+64, TD, 3)
stamp(5)
e(f's_mov_b32 s{S_CNT}, 0')
e('s_branch L_w_chk')
L.append(';;WARMFREE')
lab('L_w_poll')
e(f's_add_u32 s{S_CNT}, s{S_CNT}, 1')
e(f's_cmp_ge_u32 s{S_CNT}, {LOCN}')
e('s_cbranch_scc1 L_w_far')
lab('L_w_same')
five_loads()
lab('L_w_chk')
M = EX + 20
for i in range(5):
    e(f's_waitcnt vmcnt({4-i})')
    if i == 4: e('s_mov_b32 exec_hi, 0')
    for d in range(4): e(f'v_xor_b32 v{EX+4*i+d}, s{S_TB+d}, v{EX+4*i+d}')
    if i == 0: e(f'v_or_b32 v{M}, v{EX}, v{EX+1}')
    else: e(f'v_or3_b32 v{M}, v{M}, v{EX+4*i}, v{EX+4*i+1}')
    e(f'v_or3_b32 v{M}, v{M}, v{EX+4*i+2}, v{EX+4*i+3}')
    if i > 0:
        e(f'v_pk_add_f32 v[{EX}:{EX+1}], v[{EX}:{EX+1}], v[{EX+4*i}:{EX+4*i+1}]')
        e(f'v_pk_add_f32 v[{EX+2}:{EX+3}], v[{EX+2}:{EX+3}], v[{EX+4*i+2}:{EX+4*i+3}]')
e('s_mov_b32 exec_hi, -1')
e(f'v_and_b32 v{M}, 0xff, v{M}')
e(f'v_cmp_ne_u32 vcc, 0, v{M}')
e('s_cbranch_vccnz L_w_poll')
lab('L_w_go')
stamp(6)
a0, a1, t0, t1 = EX, EX+1, EX+4, EX+5
e(f'v_permlane32_swap_b32 v{EX}, v{EX+2}')
e(f'v_permlane32_swap_b32 v{EX+1}, v{EX+3}')
e(f'v_pk_add_f32 v[{EX}:{EX+1}], v[{EX}:{EX+1}], v[{EX+2}:{EX+3}]')
e(f'v_cvt_pk_bf16_f32 v{EX+2}, v{a0}, v{a1}')
e(f'v_lshlrev_b32 v{a0}, 16, v{EX+2}')
e(f'v_and_b32 v{a1}, 0xffff0000, v{EX+2}')
e(f'v_mul_f32 v{t0}, 0xbfb8aa3b, v{a0}')
e(f'v_mul_f32 v{t1}, 0xbfb8aa3b, v{a1}')
e(f'v_exp_f32 v{t0}, v{t0}')
e(f'v_exp_f32 v{t1}, v{t1}')
e('s_nop 0')
e(f'v_pk_add_f32 v[{t0}:{t1}], v[{t0}:{t1}], 1.0 op_sel_hi:[1,0]')
e(f'v_rcp_f32 v{t0}, v{t0}')
e(f'v_rcp_f32 v{t1}, v{t1}')
e('s_nop 0')
e(f'v_pk_mul_f32 v[{t0}:{t1}], v[{a0}:{a1}], v[{t0}:{t1}]')
e(f'v_cvt_pk_bf16_f32 v{t0}, v{t0}, v{t1}')
e(f'v_cndmask_b32 v{t0}, v{EX+2}, v{t0}, {sp(S_M)}')
e(f'v_lshlrev_b32 v{a0}, 16, v{t0}')
e(f'v_and_b32 v{a1}, 0xffff0000, v{t0}')
e('s_nop 0')
dpp('v_mul_f32', a0, a0, a0, 'row_ror:8')
dpp('v_mul_f32', a1, a1, a1, 'row_ror:8')
e(f'v_cvt_pk_bf16_f32 v{a0}, v{a0}, v{a1}')
e('s_nop 1')
for p in range(4): mdpp(AF+4+p, a0, f'quad_perm:[{p},{p},{p},{p}]')
e('s_nop 1')
for j in range(8):
    e(f'v_mfma_f32_16x16x32_bf16 v[{DA+4*j}:{DA+4*j+3}], v[{AF+4}:{AF+7}], v[{TD+4*j}:{TD+4*j+3}], 0')
e('s_mov_b32 exec_lo, 0xff0000ff')
e('s_mov_b32 exec_hi, 0')
for jj in range(4):
    if jj > 0: e('s_nop 0')
    e(f'ds_write2_b32 v14, v{DA+8*jj}, v{DA+8*jj+4} offset0:{LDS_P//4+2*jj} offset1:{LDS_P//4+2*jj+1}')
e('s_waitcnt lgkmcnt(0)')
e('s_barrier')
stamp(7)
endpgm()
L.append(';;WARMFREE')

lab('L_p')
e(f's_cmp_ge_u32 s{S_SLOT}, 27'); e('s_cbranch_scc1 L_exit0')
getxcc()
slot9()
e('s_waitcnt lgkmcnt(0)')
e(f's_cmp_lg_u32 s{S_WAVE}, 6'); e('s_cbranch_scc1 L_p1')
c("bring this workgroup's three exchange slots (12 lines) into the L2")
e(f's_mul_i32 s{S_T0}, s{S_T}, 4608')
e(f's_lshl_b32 s{S_T1}, s{S_K}, 9')
e(f's_add_u32 s{S_T0}, s{S_T0}, s{S_T1}')
e(f's_add_u32 s{S_T0}, s{S_T0}, {EXL}')
e('v_lshrrev_b32 v1, 2, v0')
e(f's_movk_i32 s{S_T1}, 4608')
e(f'v_mul_u32_u24 v1, s{S_T1}, v1')
e('v_and_b32 v2, 3, v0')
e('v_lshlrev_b32 v2, 7, v2')
e(f'v_add3_u32 v1, v1, v2, s{S_T0}')
if TLB:
    e(f's_mul_i32 s{S_T1}, s{S_T}, {64*1152}')
    e(f's_lshl_b32 s{S_T2}, s{S_K}, 7')
    e(f's_add_u32 s{S_T1}, s{S_T1}, s{S_T2}')
    e(f's_movk_i32 s{S_T2}, {16*1152}')
    e(f'v_mul_u32_u24 v4, s{S_T2}, v0')
    e(f'v_add_u32 v4, s{S_T1}, v4')
e('s_mov_b64 exec, 0xfff')
if TLB == 1: e(f'global_load_dword v5, v4, {sp(WD)}')
bar1()
if TLB == 2: e(f'global_load_dword v5, v4, {sp(WD)}')
if not NOPT: e(f'global_load_dword v3, v1, {sp(WS)} sc1')
e('s_endpgm')
L.append(';;WARMFREE')
lab('L_p1')
e(f's_load_dword s{S_TAG}, {sp(WS)}, 0')
bar1()
e(f's_lshl_b32 s{S_T3}, s{S_XCC}, 12')
e(f's_add_u32 s{S_T3}, s{S_T3}, {BC}')
e(f's_add_u32 s{S_T2}, s{S_T3}, {64*NBC}')
e(f's_and_b32 s{S_T1}, s{S_WAVE}, 1')
e(f's_lshl_b32 s{S_T1}, s{S_T1}, 6')
e(f'v_lshl_add_u32 v4, v0, 2, s{S_T1}')
e(f's_lshl_b32 s{S_K}, s{S_K}, 7')
e(f's_add_u32 s{S_K}, s{S_K}, s{S_T1}')
e('v_and_b32 v10, 60, v0')
e(f'v_add_u32 v11, s{S_T1}, v10')
e('v_and_b32 v12, 1, v0')
e(f'v_cmp_eq_u32 {sp(S_M)}, 1, v12')
e('v_lshlrev_b32 v12, 2, v12')
e('v_lshl_add_u32 v12, v11, 1, v12')
e('v_lshrrev_b32 v13, 4, v0')
e('v_and_b32 v14, 15, v0')
e('v_lshlrev_b32 v14, 2, v14')
e('v_lshl_add_u32 v13, v13, 7, v14')
e(f's_lshl_b32 s{S_T0}, s{S_K}, 3')
e(f's_add_u32 s{S_T0}, s{S_T0}, {ACCU}')
e(f'v_add_u32 v13, s{S_T0}, v13')
e('v_mov_b32 v7, 0')
e('s_mov_b64 exec, 0xffff')
L.append(';;WARMSPOT')
e('s_waitcnt lgkmcnt(0)')
e(f's_add_u32 s{S_TAG}, s{S_TAG}, 1')
stamp(1)
if NOP: e(f's_sleep {NOP}')
if SKEW >= 0:
    e('s_cmp_ge_u32 s2, 8'); e('s_cbranch_scc1 L_p_poll')
    e('s_lshl_b32 s72, s2, 2'); e('s_add_u32 s72, s72, 0x300000'); e('v_mov_b32 v20, s72'); e('v_mov_b32 v21, s76')
    e(f'global_store_dword v20, v21, {sp(WS)} sc1')
lab('L_p_poll')
e(f's_load_dwordx2 {sp(S_A)}, {sp(WS)}, s{S_T3}')
e(f's_add_u32 s{S_T3}, s{S_T3}, 64')
e(f's_cmp_ge_u32 s{S_T3}, s{S_T2}')
e('s_cbranch_scc1 L_p_slow')
e('s_waitcnt lgkmcnt(0)')
e(f's_cmp_lg_u32 s{S_A+1}, s{S_TAG}')
e('s_cbranch_scc1 L_p_poll')
lab('L_p_got')
e(f's_andn2_b32 s{S_T1}, 0x7ff, s{S_A}')
e(f's_mul_i32 s{S_T0}, s{S_T1}, 1152')
e(f's_add_u32 s{S_T0}, s{S_T0}, s{S_K}')
e(f's_load_dwordx16 s[{S_XS}:{S_XS+15}], {sp(X)}, s{S_T0}')
stamp(2)
e(f'v_mov_b32 v6, s{S_T1}')
e(f'ds_write_b32 v7, v6 offset:{LDS_WIN}')
e('s_waitcnt lgkmcnt(0)')
stamp(3)
for d in range(16): e(f'v_writelane_b32 v5, s{S_XS+d}, {d}')
e(f'ds_write_b32 v4, v5 offset:{LDS_X}')
e('s_waitcnt lgkmcnt(0)')
e('s_barrier')
L.append(';;WARMSPOT')
e('s_mov_b64 exec, -1')
e(f'ds_read_b32 v5, v11 offset:{LDS_X}')
e(f'v_add_u32 v10, s{S_T0}, v10')
c('r_sel = bf16(sigmoid(r))')
e(f's_ashr_i32 s{S_T2}, s{S_A}, 31')
e(f's_not_b32 s{S_T2}, s{S_T2}')
e(f's_or_b32 s{S_T2}, s{S_T2}, 0x80000000')
e(f's_xor_b32 s{S_T1}, s{S_A}, s{S_T2}')
e(f's_and_b32 s{S_T1}, s{S_T1}, 0xffff0000')
e(f'v_mov_b32 v8, s{S_T1}')
e('v_mul_f32 v8, 0xbfb8aa3b, v8')
e('v_exp_f32 v8, v8')
e(f's_mov_b32 s{S_B}, 0x11111111'); e(f's_mov_b32 s{S_B+1}, 0x11111111')
e('v_add_f32 v8, 1.0, v8')
e('v_rcp_f32 v8, v8')
e(f's_lshl_b64 {sp(S_A)}, {sp(S_B)}, 2')
bf16r(8, 8)
e('s_waitcnt lgkmcnt(0)')
e('v_lshlrev_b32 v6, 16, v5')
e('v_and_b32 v5, 0xffff0000, v5')
e(f'v_cndmask_b32 v5, v6, v5, {sp(S_M)}')
e('v_fma_f32 v5, v5, 0, v5')
e('v_mov_b32 v9, 0x41b80000')
e(f'v_mov_b32 v15, s{S_TAG}')
e('s_mov_b32 exec_lo, 0x77777777'); e('s_mov_b32 exec_hi, 0x77777777')
stamp(4)
e('s_barrier')
for i in range(3):
    e(f'ds_read2st64_b32 v[{16+2*i}:{17+2*i}], v12 offset0:{LDS_P//256+2*i} offset1:{LDS_P//256+2*i+1}')
e('s_waitcnt lgkmcnt(1)' if not STAMP else 's_waitcnt lgkmcnt(0)')
e('v_pk_add_f32 v[16:17], v[16:17], v[18:19]')
e('s_waitcnt lgkmcnt(0)')
e('v_pk_add_f32 v[16:17], v[16:17], v[20:21]')
e('v_add_f32 v16, v16, v17')
e(f'v_cndmask_b32 v16, v16, 1.0, {sp(S_A)}')
e(f'global_atomic_add_f32 v17, v13, v16, {sp(WS)} sc0 sc1')
stamp(5)
e('s_waitcnt vmcnt(0)')
stamp(6)
mdpp(18, 17, 'quad_perm:[2,2,2,2]')
e('v_add_f32 v16, v16, v17')
e('v_cmp_eq_f32 vcc, v9, v18')
bf16r(16, 16)
e(f's_and_b64 vcc, vcc, {sp(S_B)}')
e('s_cbranch_scc0 L_end')
e('v_mul_f32 v16, v16, v8')
bf16r(16, 16)
e('v_add_f32 v16, v5, v16')
e('s_nop 1')
mdpp(17, 16, 'quad_perm:[1,1,1,1]')
e('v_cvt_pk_bf16_f32 v16, v16, v17')
e('s_mov_b64 exec, vcc')
if not NOFIN: e(f'global_store_dword v10, v16, {sp(OUT)}{FOM}')
if ACK: e('s_waitcnt vmcnt(0)')
stamp(7)
c('the last adder of the first granule moves the epoch on')
e(f's_cmp_lg_u32 s{S_K}, 0'); e('s_cbranch_scc1 L_end')
e('s_and_b64 exec, vcc, 1'); e('s_cbranch_scc0 L_end')
if not NOEP: e(f'global_store_dword v7, v15, {sp(WS)}{EPM}')
lab('L_end')
if MINI:
    e('s_memrealtime s[82:83]'); e('s_mov_b64 exec, 1')
    e(f's_lshl_b32 s{S_T0}, s2, 4'); e(f's_add_u32 s{S_T0}, s{S_T0}, s{S_WAVE}')
    e(f's_lshl_b32 s{S_T0}, s{S_T0}, 6'); e(f's_add_u32 s{S_T0}, s{S_T0}, 0x8000000')
    e(f'v_mov_b32 v2, s{S_T0}'); e('s_waitcnt lgkmcnt(0)')
    for k in range(4): e(f'v_mov_b32 v{20+k}, s{80+k}')
    e(f'global_store_dwordx4 v2, v[20:23], {sp(WS)}')
if SKEW >= 0:
    e('s_cmp_lg_u32 s2, 9'); e('s_cbranch_scc1 L_exit0')
    e('s_mov_b32 s72, 0x300000'); e(f's_load_dwordx8 s[64:71], {sp(WS)}, s72'); e('s_waitcnt lgkmcnt(0)')
    e('s_mov_b32 s74, s64')
    for i in range(1, 8): e(f's_min_u32 s74, s74, s{64+i}')
    e(f's_sub_u32 s74, s{64+SKEW}, s74'); e('s_min_u32 s74, s74, 500'); e('s_mul_i32 s74, s74, 20')
    e('s_memrealtime s[72:73]'); e('s_waitcnt lgkmcnt(0)'); e('s_add_u32 s74, s74, s72')
    lab('L_dspin')
    e('s_memrealtime s[72:73]'); e('s_waitcnt lgkmcnt(0)')
    e('s_sub_u32 s75, s74, s72'); e('s_cmp_gt_i32 s75, 0'); e('s_cbranch_scc1 L_dspin')
if DIAG >= 0:
    e(f's_cmp_lg_u32 s2, {DIAG}'); e('s_cbranch_scc1 L_exit0')
    e('s_memrealtime s[72:73]'); e('s_waitcnt lgkmcnt(0)')
    e('s_sub_u32 s74, s72, s76'); e('s_min_u32 s74, s74, 5000'); e('s_mul_i32 s74, s74, 10'); e('s_add_u32 s74, s74, s72')
    lab('L_dspin')
    e('s_memrealtime s[72:73]'); e('s_waitcnt lgkmcnt(0)')
    e('s_sub_u32 s75, s74, s72'); e('s_cmp_gt_i32 s75, 0'); e('s_cbranch_scc1 L_dspin')
endpgm()
lab('L_seg1_end')
e('.p2align 12')

lab('L_warm_s')
e('s_endpgm')
lab('L_spare')
getxcc()
e(f's_sub_u32 s{S_T}, s2, 224')
e(f's_lshl_b32 s{S_T3}, s{S_XCC}, 12')
e(f's_add_u32 s{S_T3}, s{S_T3}, {BC}')
e(f'v_lshl_add_u32 v3, v0, 6, s{S_T3}')
e(f's_cmp_lg_u32 s{S_SLOT}, 27'); e('s_cbranch_scc1 L_s_noclr')
c('clear 9 accumulator lines, bring the broadcast lines into this L2')
e(f's_mul_i32 s{S_T0}, s{S_XCD}, {9*128}')
e(f's_addk_i32 s{S_T0}, {ACCU}')
e(f'v_lshl_add_u32 v1, v0, 4, s{S_T0}')
e('v_mov_b64 v[12:13], 0'); e('v_mov_b64 v[14:15], 0')
e(f'global_store_dwordx4 v1, v[12:15], {sp(WS)} sc1')
e(f'global_store_dwordx4 v1, v[12:15], {sp(WS)} offset:128 sc1')
if NBC < 64: e('s_mov_b32 exec_hi, 0')
e(f'global_load_dwordx2 v[8:9], v3, {sp(WS)} sc1')
if NBC < 64: e('s_mov_b32 exec_hi, -1')
lab('L_s_noclr')
e(f's_lshl_b32 s{S_T0}, s{S_T}, 10')
e(f's_add_u32 s{S_T0}, s{S_T0}, {K2}')
e('v_and_b32 v41, 7, v0')
e(f'v_lshl_add_u32 v41, v41, {3 if APOLL else 7}, s{S_T0}')
if not APOLL:
    e(f's_cmp_ge_u32 s{S_T}, {NDEST}'); e('s_cbranch_scc1 L_s_nopt')
    e(f'global_load_dwordx2 v[8:9], v41, {sp(WS)} sc1')
    lab('L_s_nopt')
e(f's_lshl_b32 s{S_T0}, s{S_XCD}, {3 if APOLL else 7}')
e(f's_add_u32 s{S_T0}, s{S_T0}, {K2}')
e(f'v_lshl_add_u32 v42, v0, 10, s{S_T0}')
e(f's_movk_i32 s{S_T1}, 1152')
e(f's_movk_i32 s{S_T2}, 0x7ff')
e('v_mov_b32 v13, 0')
e('s_waitcnt lgkmcnt(0)')
e(f's_add_u32 s{S_TAG}, s{S_TAG}, 1')
e(f'v_mov_b32 v7, s{S_TAG}')
stamp(1)
e('s_barrier')
e(f's_cmp_lt_u32 s{S_T}, {NDEST}'); e('s_cbranch_scc1 L_s_l2')
e(f's_cmp_lg_u32 s{S_SLOT}, 27'); e('s_cbranch_scc1 L_s_wait')
e(f's_mov_b32 s{S_CNT}, 0')
lab('L_s_poll1')
e(f'global_load_dwordx2 v[8:9], v40, {sp(WS)} sc1')
e(f's_add_u32 s{S_CNT}, s{S_CNT}, 1')
e(f's_cmp_lg_u32 s{S_CNT}, {LOCN}')
e('s_cbranch_scc1 L_s_same1')
e(f'v_add_u32 v40, {K1G-K1L}, v40')
lab('L_s_same1')
e(f's_cmp_gt_u32 s{S_CNT}, {SPIN}')
e('s_cbranch_scc1 L_s_got1')
e('s_waitcnt vmcnt(0)')
e(f'v_cmp_ne_u32 vcc, s{S_TAG}, v9')
e('s_cbranch_vccnz L_s_poll1')
lab('L_s_got1')
stamp(7)
for m in ('row_shr:1', 'row_shr:2', 'row_shr:4', 'row_shr:8'):
    dpp('v_max_u32', 8, 8, 8, m); e('s_nop 1')
dpp('v_max_u32', 8, 8, 8, 'row_bcast:15', '0xa')
if X0:
    e('s_nop 1'); dpp('v_max_u32', 8, 8, 8, 'row_bcast:31', '0xc')
e(f's_mov_b64 exec, {(1<<NDEST)-1:#x}' if NDEST < 32 else 's_mov_b32 exec_hi, 0')
e(f'v_readlane_b32 s{S_T0}, v8, {63 if X0 else 31}')
e('s_nop 1')
e(f'v_mov_b32 v6, s{S_T0}')
e(f'global_store_dwordx2 v42, v[6:7], {sp(WS)} sc1')
if STAMP:
    stamp(5); e('s_waitcnt vmcnt(0)'); stamp(4)
lab('L_s_wait')
c('not a reader: take the winner from the local broadcast or the device-wide copy')
e('s_mov_b64 exec, 3')
e(f's_movk_i32 s{S_T0}, {WIN_G}'); e(f'v_writelane_b32 v3, s{S_T0}, 1')
e(f's_mov_b32 s{S_CNT}, {SPIN}')
lab('L_s_wpoll')
e(f'global_load_dwordx2 v[8:9], v3, {sp(WS)} sc1')
e(f's_sub_u32 s{S_CNT}, s{S_CNT}, 1')
e('s_cbranch_scc1 L_s_nog')
e('s_sleep 2')
e('s_waitcnt vmcnt(0)')
e(f'v_cmp_eq_u32 vcc, s{S_TAG}, v9')
e(f'v_bfi_b32 v14, v8, 0, s{S_T2}')
e('s_cbranch_vccz L_s_wpoll')
e('s_mov_b64 exec, vcc')
e('s_branch L_s_nog')
lab('L_s_l2')
e(f's_mov_b32 s{S_CNT}, {SPIN}')
e('v_min_u32 v5, 8, v0')
e('v_lshlrev_b32 v5, 7, v5')
if SPEC:
    e(f's_cmp_ge_u32 s{S_T}, {8*NRD}'); e('s_cbranch_scc1 L_s_spec')
if APOLL:
    e('v_mov_b64 v[10:11], 0')
    for i in range(APOLL): e(f'v_not_b32 v{17+2*i}, v7')
    e('s_mov_b64 exec, 0xff')
    lab('L_s_poll')
    for i in range(APOLL):
        o = (i + 1) % APOLL
        e(f'global_atomic_add_x2 v[{16+2*i}:{17+2*i}], v41, v[10:11], {sp(WS)} sc0 sc1')
        if ASL: e(f's_sleep {ASL}')
        e(f's_waitcnt vmcnt({APOLL-1})')
        e(f'v_cmp_ne_u32 vcc, s{S_TAG}, v{17+2*o}')
        dpp('v_max_u32', 8, 16+2*o, 16+2*o, 'quad_perm:[1,0,3,2]')
        e('s_cbranch_vccz L_s_got')
    e(f's_sub_u32 s{S_CNT}, s{S_CNT}, 1')
    e('s_cbranch_scc0 L_s_poll')
    lab('L_s_got')
    stamp(2)
    e('s_nop 0')
    dpp('v_max_u32', 8, 8, 8, 'quad_perm:[2,3,0,1]'); e('s_nop 1')
    dpp('v_max_u32', 8, 8, 8, 'row_half_mirror')
    e('s_mov_b64 exec, -1')
    e(f'v_readfirstlane_b32 s{S_T0}, v8')
    e('s_nop 1')
    e(f'v_mov_b32 v6, s{S_T0}')
else:
    lab('L_s_poll')
    if STAMP:
        e(f's_mov_b64 s[{S_ST+12}:{S_ST+13}], s[{S_ST+10}:{S_ST+11}]'); stamp(5); e('s_waitcnt lgkmcnt(0)')
    e(f'global_load_dwordx2 v[8:9], v41, {sp(WS)} sc1')
    e(f's_sub_u32 s{S_CNT}, s{S_CNT}, 1')
    e('s_cbranch_scc1 L_s_got')
    e('s_waitcnt vmcnt(0)')
    e(f'v_cmp_ne_u32 vcc, s{S_TAG}, v9')
    dpp('v_max_u32', 8, 8, 8, 'quad_perm:[1,0,3,2]')
    e('s_cbranch_vccnz L_s_poll')
    lab('L_s_got')
    stamp(2)
    e('s_nop 0')
    dpp('v_max_u32', 8, 8, 8, 'quad_perm:[2,3,0,1]'); e('s_nop 1')
    dpp('v_max_u32', 6, 8, 8, 'row_half_mirror')
if NBC < 64: e('s_mov_b32 exec_hi, 0')
e(f'global_store_dwordx2 v3, v[6:7], {sp(WS)}')
e(f'v_bfi_b32 v14, v6, 0, s{S_T2}')
e(f'v_mad_u32_u24 v5, v14, s{S_T1}, v5')
e(f'global_load_dword v39, v5, {sp(X)}')
stamp(3)
e(f's_cmp_lg_u32 s{S_T}, 7')
e('s_cbranch_scc1 L_s_nog')
e(f'v_mov_b32 v5, {WIN_G}')
e('s_mov_b64 exec, 1')
e(f'global_store_dwordx2 v5, v[6:7], {sp(WS)} sc1')
lab('L_s_nog')
e(f'ds_write_b32 v13, v14 offset:{LDS_WIN}')
e('s_waitcnt lgkmcnt(0)')
e('s_barrier')
e('s_barrier')
lab('L_s_end')
endpgm()

if SPEC:
    lab('L_s_spec')
    c("this spare pulls every candidate row into the L2 as its key arrives")
    e('v_lshrrev_b32 v12, 3, v0'); e('v_lshlrev_b32 v12, 7, v12')
    lab('L_s_spoll')
    e(f'global_load_dwordx2 v[8:9], v41, {sp(WS)} sc1')
    e(f's_sub_u32 s{S_CNT}, s{S_CNT}, 1')
    e('s_cbranch_scc1 L_s_got')
    e('s_waitcnt vmcnt(0)')
    e(f'v_cmp_eq_u32 vcc, s{S_TAG}, v9')
    e(f'v_bfi_b32 v10, v8, 0, s{S_T2}')
    e(f'v_mad_u32_u24 v11, v10, s{S_T1}, v12')
    e('s_and_b64 exec, vcc, -1')
    e('s_cbranch_scc0 L_s_snone')
    e(f'global_load_dword v38, v11, {sp(X)}')
    e(f'global_load_dword v38, v11, {sp(X)} offset:128')
    lab('L_s_snone')
    e('s_mov_b64 exec, -1')
    dpp('v_max_u32', 8, 8, 8, 'quad_perm:[1,0,3,2]')
    e('s_cmp_eq_u64 vcc, -1')
    e('s_cbranch_scc0 L_s_spoll')
    e('s_branch L_s_got')
e('.p2align 6')
lab('L_warm_r')
e('s_endpgm')
lab('L_r2')
for i in range(4): e(f'v_mov_b32 v{ACC+i}, 0')
e('v_sub_u32 v6, 0xffff, v1')
e(f's_lshl_b32 s{S_T0}, s{S_XCD}, 6')
e(f's_add_u32 s{S_T0}, s{S_T0}, s{S_SLOT}')
e(f's_lshl_b32 s{S_T0}, s{S_T0}, {K1SH}')
e(f's_add_u32 s{S_T0}, s{S_T0}, {K1L}')
e(f'v_mov_b32 v3, s{S_T0}')
e(f'v_add_u32 v7, {K1G-K1L}, v3')
e(f's_mov_b32 s{S_T2}, 0xffff0000')
KY = 84
if WLDS:
    if RST: e('s_waitcnt lgkmcnt(0)'); stamp(7)
    e('s_waitcnt vmcnt(9)')
    if RST: stamp(5)
    for cc in range(9): e(f'ds_read_b128 v[{WW+4*cc}:{WW+4*cc+3}], v2 offset:{LDS_W+128*cc}')
e('s_waitcnt lgkmcnt(0)')
e(f's_add_u32 s{S_TAG}, s{S_TAG}, 1')
e(f'v_mov_b32 v{KY+1}, s{S_TAG}')
e(f's_cmp_ge_u32 s{S_SLOT}, 27')
for cc in range(9):
    e(f's_waitcnt vmcnt({8-cc})')
    if RST and cc == 0: stamp(6)
    for d in range(4): e(f'v_dot2c_f32_bf16 v{ACC+d}, v{XR+4*cc+d}, v{WW+4*cc+d}')
stamp(2)
e('s_nop 2')
e(f'v_pk_add_f32 v[{ACC}:{ACC+1}], v[{ACC}:{ACC+1}], v[{ACC+2}:{ACC+3}]')
e(f'v_add_f32 v{ACC}, v{ACC}, v{ACC+1}')
for m in ['quad_perm:[1,0,3,2]', 'quad_perm:[2,3,0,1]', 'row_half_mirror']:
    e('s_nop 1'); dpp('v_add_f32', ACC, ACC, ACC, m)
K0, K1 = KY+2, KY+3
e(f'v_cmp_o_f32 vcc, v{ACC}, v{ACC}')
e(f'v_cvt_pk_bf16_f32 v{K0}, v{ACC}, v{ACC}')
e(f'v_ashrrev_i32 v{K1}, 31, v{K0}')
e(f'v_or_b32 v{K1}, 0x80000000, v{K1}')
e(f'v_xor_b32 v{K0}, v{K0}, v{K1}')
e(f'v_cndmask_b32 v{K0}, 0, v{K0}, vcc')
e(f'v_and_or_b32 v{KY}, v{K0}, s{S_T2}, v6')
e('s_nop 1'); dpp('v_max_u32', KY, KY, KY, 'row_shr:8')
e('s_nop 1'); dpp('v_max_u32', KY, KY, KY, 'row_bcast:15', '0xa')
e('s_nop 1'); dpp('v_max_u32', KY, KY, KY, 'row_bcast:31', '0xc')
e('s_mov_b32 exec_lo, 0'); e('s_brev_b32 exec_hi, 1')
e('s_cbranch_scc0 L_r_k1')
e('s_barrier')
lab('L_r_k1')
e(f'global_store_dwordx2 v3, v[{KY}:{KY+1}], {sp(WS)}')
e('s_cbranch_scc1 L_r_k2')
if HOLD: e('s_barrier')
lab('L_r_k2')
e(f'global_store_dwordx2 v7, v[{KY}:{KY+1}], {sp(WS)} sc1')
e('s_mov_b64 exec, -1')
stamp(3)
e(f'v_mov_b32 v{K1}, 0x207')
e(f'v_cmp_class_f32 vcc, v{ACC}, v{K1}')
e('s_cbranch_vccnz L_r_fix')
lab('L_r_nofix')
def copy_rows(m=ONT):
    if NOCOPY == 1 or (NOCOPY == 2 and m == '') or (NOCOPY == 3 and m != ''): return
    for cc in range(9):
        e(f'global_store_dwordx4 v4, v[{XR+4*cc}:{XR+4*cc+3}], {sp(OUT)} offset:{128*cc}{m}')
if CP == 'E':
    e(f'v_readlane_b32 s{S_T1}, v{KY}, 63')
    e(f's_andn2_b32 s{S_T1}, 0x7ff, s{S_T1}')
    e(f'v_cmp_ne_u32 vcc, s{S_T1}, v1')
    e('s_mov_b64 exec, vcc')
    copy_rows()
    e('s_not_b64 exec, vcc')
e('s_barrier')
e('v_mov_b32 v2, 0')
e(f'ds_read_b32 v2, v2 offset:{LDS_WIN}')
e('s_waitcnt lgkmcnt(0)')
e('v_cmp_ne_u32 vcc, v2, v1')
if CP == 'D': e('s_barrier')
stamp(4)
e('s_and_b64 exec, exec, vcc')
if CP == 'E': e('s_cbranch_scc0 L_r_end')
if SPL:
    e(f's_cmp_ge_u32 s{S_SLOT}, 27'); e('s_cbranch_scc1 L_r_plain')
copy_rows()
lab('L_r_end')
if CP != 'D': e('s_barrier')
if STAMP and not RST:
    stamp(5); e('s_waitcnt vmcnt(0)'); stamp(6)
endpgm()

if SPL:
    lab('L_r_plain')
    copy_rows('')
    e('s_branch L_r_end')
lab('L_w_far')
c('partners may sit on another die: publish a device-wide copy, then alternate between the two copies')
e(f's_cmp_gt_u32 s{S_CNT}, {SPIN}')
e('s_cbranch_scc1 L_w_go')
e(f'v_xor_b32 v13, {EXG^EXL}, v13')
e(f's_xor_b32 s{S_TB+3}, s{S_TB+3}, s{S_XCC}')
e(f's_cmp_lg_u32 s{S_CNT}, {LOCN}')
e('s_cbranch_scc1 L_w_same')
e(f'v_xor_b32 v12, {EXG^EXL}, v12')
e(f'v_xor_b32 v{AF+3}, s{S_XCC}, v{AF+3}')
e('s_mov_b32 exec_hi, 0')
e(f'global_store_dwordx4 v12, v[{AF}:{AF+3}], {sp(WS)} sc1')
e('s_mov_b32 exec_hi, -1')
e('s_branch L_w_same')
lab('L_p_slow')
e(f'v_mov_b32 v6, {WIN_G}')
e(f's_mov_b32 s{S_CNT}, {SPIN}')
lab('L_p_slowpoll')
e(f'global_load_dwordx2 v[8:9], v6, {sp(WS)} sc1')
e('s_waitcnt vmcnt(0) lgkmcnt(0)')
e(f'v_readfirstlane_b32 s{S_A}, v8')
e(f'v_readfirstlane_b32 s{S_A+1}, v9')
e(f's_sub_u32 s{S_CNT}, s{S_CNT}, 1')
e('s_cbranch_scc1 L_p_got')
e(f's_cmp_lg_u32 s{S_A+1}, s{S_TAG}')
e('s_cbranch_scc1 L_p_slowpoll')
e('s_branch L_p_got')
if STAMP:
    lab('L_flush')
    e('s_waitcnt vmcnt(0) lgkmcnt(0)')
    e('s_mov_b64 exec, 1')
    e('s_sleep 40')
    e(f's_lshl_b32 s{S_T0}, s2, 4'); e(f's_add_u32 s{S_T0}, s{S_T0}, s{S_WAVE}')
    e(f's_lshl_b32 s{S_T0}, s{S_T0}, 6'); e(f's_add_u32 s{S_T0}, s{S_T0}, 0x8000000')
    e(f'v_mov_b32 v2, s{S_T0}')
    for i in range(4):
        for k in range(4): e(f'v_mov_b32 v{4+k}, s{S_ST+4*i+k}')
        e(f'global_store_dwordx4 v2, v[4:7], {sp(WS)} offset:{16*i}'); e('s_nop 1')
    e('s_endpgm')
lab('L_r_fix')
c('x + x*0 turns an infinity into a NaN')
e(f's_mov_b32 s{S_SELHI}, 0x07060302')
for d in range(36):
    r = XR + d
    e(f'v_lshlrev_b32 v{K0}, 16, v{r}')
    e(f'v_and_b32 v{K1}, s{S_T2}, v{r}')
    e(f'v_fma_f32 v{K0}, v{K0}, 0, v{K0}')
    e(f'v_fma_f32 v{K1}, v{K1}, 0, v{K1}')
    e(f'v_perm_b32 v{r}, v{K1}, v{K0}, s{S_SELHI}')
e('s_branch L_r_nofix')

hdr = f'''; MoD (mixture-of-depths, capacity 1) router + SwiGLU FFN on the routed token, one launch.
; @launch grid=(256,1,1) block=(512,1,1) lds={LDS_BYTES}
.amdgcn_target "amdgcn-amd-amdhsa--gfx950"
.text
.globl standalone__moe_arch_mod__prompt_kernel
.p2align 12
.fill {(4096-768)//4}, 4, 0xBF800000
.p2align 8
.type standalone__moe_arch_mod__prompt_kernel,@function
standalone__moe_arch_mod__prompt_kernel:'''
tail = '''.section .rodata,"a"
.p2align 6
.amdhsa_kernel standalone__moe_arch_mod__prompt_kernel
  .amdhsa_next_free_vgpr 184
  .amdhsa_next_free_sgpr 96
  .amdhsa_accum_offset 184
  .amdhsa_group_segment_fixed_size 0
  .amdhsa_kernarg_size 64
  .amdhsa_user_sgpr_count 2
  .amdhsa_user_sgpr_kernarg_segment_ptr 1
  .amdhsa_system_sgpr_workgroup_id_x 1
  .amdhsa_float_denorm_mode_32 3
.end_amdhsa_kernel
'''
def offsets(lines):
    out = []; k = 0
    for ln in lines:
        if ln.startswith(';;WARM'): out.append(f'MK{k}:'); k += 1
        else: out.append(ln)
    src = hdr.replace('.fill 832,', '.fill 1024,') + '\n' + '\n'.join(out) + '\nL_warm1:\nL_warm2:\nL_warm3:\n' + tail
    d = tempfile.mkdtemp()
    open(d + '/a.s', 'w').write(src)
    subprocess.run(['clang', '-x', 'assembler', '-target', 'amdgcn-amd-amdhsa', '-mcpu=gfx950', '-c', d + '/a.s', '-o', d + '/a.o'], check=True)
    t = subprocess.run(['llvm-objdump', '-t', d + '/a.o'], capture_output=True, text=True).stdout
    sy = {m.group(2): int(m.group(1), 16) for m in re.finditer(r'^([0-9a-f]{16}) .*\.text\s+[0-9a-f]+ (?:\.protected |\.hidden )?(\S+)$', t, re.M)}
    base = sy['standalone__moe_arch_mod__prompt_kernel']
    return {n: v - base for n, v in sy.items()}
offs = offsets(L)
marks = [(i, ln) for i, ln in enumerate(L) if ln.startswith(';;WARM')]
mo = [offs[f'MK{k}'] for k in range(len(marks))]
chosen = []
segs = [(0, offs['L_end'])]
shift = 0
for (a, b) in segs:
    pass
    covered = ((a + shift) // 64) * 64 + 1088
    while covered < b + shift + 8:
        cand = [k for k in range(len(marks)) if a <= mo[k] < b and mo[k] + shift + 4 < covered + 64 and (not chosen or k > chosen[-1])]
        assert cand, (covered, mo, segs)
        k = cand[-1]
        sp4 = marks[k][1].startswith(';;WARMSPOT')
        pos = mo[k] + shift + (4 if sp4 else 0)
        chosen.append(k); shift += 8 if sp4 else 4
        nc = (pos // 64) * 64 + 1088
        assert nc > covered, (nc, covered, mo)
        covered = nc
assert offs['L_seg1_end'] + 20 < 4096
names = {k: n + 1 for n, k in enumerate(chosen)}
nst = len(chosen)
outl = []; k = 0
for ln in L:
    if ln.startswith(';;WARM'):
        if k in names:
            n = names[k]
            tgt = f'L_warm{n+3}' if n + 3 <= nst else 'L_p'
            if ln.startswith(';;WARMSPOT'): outl.append(f'    s_branch L_skip{n}')
            outl.append(f'L_warm{n}:'); outl.append(f'    s_branch {tgt}')
            if ln.startswith(';;WARMSPOT'): outl.append(f'L_skip{n}:')
        k += 1
    elif ln == 'L_p:':
        for n in range(nst + 1, 4): outl.append(f'L_warm{n}:')
        outl.append(ln)
    else: outl.append(ln)
sys.stderr.write(f'chosen {[mo[k] for k in chosen]} ' + ' '.join(f'{n}={v}' for n, v in sorted(offs.items(), key=lambda x: x[1]) if n in ('L_w','L_w_poll','L_p','L_end','L_seg1_end','L_r2','L_spare','L_s_end','L_r_end')) + '\n')
print(hdr); print('\n'.join(outl)); print(tail)
```

```python
import sys, subprocess, re, tempfile
def opt(name, d):
    a = sys.argv
    return type(d)(a[a.index(name)+1]) if name in a else d
def mod(name, d):
    v = opt(name, d); return '' if v == '-' else ' ' + v.replace('+', ' ')
STAMP = '--stamp' in sys.argv
MINI = '--mini' in sys.argv
WING = opt('--wing', 8); WIND = opt('--wind', 9); WIN0 = opt('--win0', 6)
NT = mod('--nt', 'nt'); XNT = mod('--xnt', '-'); ONT = mod('--ont', 'sc1')
CP = opt('--cp', 'D')
DIAG = opt('--diag', -1)
HOLD = opt('--hold', 1); WLAST = opt('--wlast', 0); LIGHT = opt('--light', 0)
WLDS = opt('--wlds', 1); TLB = opt('--tlb', 0); ACK = opt('--ack', 0)
K1SH = opt('--k1sh', 7)
SKEW = opt('--skew', -1)
X0 = opt('--x0', 1); APOLL = opt('--apoll', 4); ASL = opt('--asl', 1); SPEC = opt('--spec', 0)
B0 = opt('--b0', 0)
NOP = opt('--nop', 0); NOPT = opt('--nopt', 0); WST = opt('--wst', 0)
RST = opt('--rst', 0); LATE = opt('--late', 1); SPX = opt('--spx', 0)
NRD = opt('--nrd', 4); NBC = opt('--nbc', 64)
SPL = opt('--spl', 1)
ND1 = opt('--nd1', 8)
NOCOPY = opt('--nocopy', 0); EXM = mod('--exm', '-'); FOM = mod('--fom', '-')
EPM = mod('--epm', '-')
NOEP = opt('--noep', 0); NOFIN = opt('--nofin', 0); EARLYST = opt('--est', 0)
KD = opt('--kdiag', 0)
if KD: SKEW = 0
SPIN = 100000
LOCN = opt('--locn', 60)

NDEST = 8 * (NRD + SPEC)
L = []
def e(s): L.append('    ' + s)
def lab(s): L.append(s + ':')
def c(s): L.append('    ; ' + s)
X, WR, WG, WU, WD, OUT, DBG, WS = 4, 6, 8, 10, 12, 14, 16, 18
def sp(n): return f's[{n}:{n+1}]'
S_WAVE, S_XCD, S_SLOT = 20, 21, 22
S_T0, S_T1, S_T2, S_T3 = 23, 24, 25, 26
S_SELLO, S_SELHI = 27, 28
S_CNT, S_TAG, S_T, S_K = 29, 30, 31, 32
S_XCC = 33
S_A, S_B = 34, 36
S_TB = 38; S_PS = 42
S_M = 46
S_XS = 48
S_ST = 80
K1L, K1G, WIN_G, ACCU, BC, K2, EXL, EXG = 0x20000, 0x30000, 0x3000, 0x4000, 0x8000, 0x10000, 0x100000, 0x180000
LDS_X, LDS_WIN, LDS_P = 0, 128, 256
LDS_W = 2048
LDS_BYTES = 3328

def stamp(i):
    if STAMP: e(f's_memrealtime s[{S_ST+2*i}:{S_ST+2*i+1}]')
def endpgm():
    e('s_branch L_flush' if STAMP else 's_endpgm')
def dpp(op, d, a, b, m, rm='0xf'):
    e(f'{op}_dpp v{d}, v{a}, v{b} {m} row_mask:{rm} bank_mask:0xf')
def mdpp(d, a, m, rm='0xf'):
    e(f'v_mov_b32_dpp v{d}, v{a} {m} row_mask:{rm} bank_mask:0xf')
def perms(raw, T, p):
    for j in range(8):
        sel = S_SELHI if (j & 1) else S_SELLO
        e(f'v_perm_b32 v{T+4*j+p}, v{raw+4*(2*p+1)+j//2}, v{raw+4*(2*p)+j//2}, s{sel}')
def bf16r(d, s):
    e(f'v_cvt_pk_bf16_f32 v{d}, v{s}, v{s}'); e(f'v_lshlrev_b32 v{d}, 16, v{d}')
def slot9():
    e(f's_mul_i32 s{S_T0}, s{S_SLOT}, 57')
    e(f's_lshr_b32 s{S_T0}, s{S_T0}, 9')
    e(f's_mul_i32 s{S_K}, s{S_T0}, 9')
    e(f's_sub_u32 s{S_K}, s{S_SLOT}, s{S_K}')
    e(f's_mul_i32 s{S_T}, s{S_XCD}, 3')
    e(f's_add_u32 s{S_T}, s{S_T}, s{S_T0}')
    e(f's_mul_i32 s{S_T}, s{S_T}, 3')
b1n = [0]
def bar1():
    if not HOLD: return
    if X0:
        b1n[0] += 1
        e(f's_cmp_eq_u32 s{S_XCD}, 0'); e(f's_cbranch_scc1 L_nob{b1n[0]}')
        e('s_barrier')
        lab(f'L_nob{b1n[0]}')
    else: e('s_barrier')
def getxcc(): e(f's_getreg_b32 s{S_XCC}, hwreg(HW_REG_XCC_ID, 0, 3)')

if MINI and EARLYST: e('s_memrealtime s[80:81]')
e('s_cmp_ge_u32 s2, 256')
e('s_cbranch_scc1 L_exit0')
e('s_load_dwordx16 s[4:19], s[0:1], 0')
stamp(0)
if MINI and not EARLYST: e('s_memrealtime s[80:81]')
if DIAG >= 0 or SKEW >= 0: e('s_memrealtime s[76:77]')
e(f'v_readfirstlane_b32 s{S_WAVE}, v0')
e('v_and_b32 v0, 63, v0')
e(f's_and_b32 s{S_XCD}, s2, 7')
e(f's_lshr_b32 s{S_SLOT}, s2, 3')
e(f's_lshr_b32 s{S_WAVE}, s{S_WAVE}, 6')
if STAMP:
    for i in range(1, 8): e(f's_mov_b64 s[{S_ST+2*i}:{S_ST+2*i+1}], 0')
e(f's_cmp_lt_u32 s{S_WAVE}, 4'); e('s_cbranch_scc1 L_notp')
if B0: e('s_barrier')
e(f's_cmp_eq_u32 s{S_WAVE}, 4'); e('s_cbranch_scc1 L_warm1')
e(f's_cmp_eq_u32 s{S_WAVE}, 5'); e('s_cbranch_scc1 L_warm2')
e(f's_cmp_eq_u32 s{S_WAVE}, 6'); e('s_cbranch_scc1 L_warm3')
e('s_branch L_warm_r')
lab('L_spare0')
if X0:
    e(f's_cmp_eq_u32 s{S_WAVE}, 1'); e('s_cbranch_scc1 L_rx')
e(f's_cmp_lg_u32 s{S_WAVE}, 0'); e('s_cbranch_scc1 L_warm_s')
e(f's_lshl_b32 s{S_T1}, s{S_XCD}, {6+K1SH}')
e(f's_add_u32 s{S_T1}, s{S_T1}, {K1L}')
if X0:
    e(f's_cmp_eq_u32 s{S_XCD}, 0')
    e(f's_cselect_b32 s{S_T2}, 27, 0'); e(f's_cselect_b32 s{S_T3}, 31, 35')
    e(f'v_max_u32 v40, s{S_T2}, v0'); e(f'v_min_u32 v40, s{S_T3}, v40')
else: e('v_min_u32 v40, 31, v0')
e(f'v_lshl_add_u32 v40, v40, {K1SH}, s{S_T1}')
e('s_waitcnt lgkmcnt(0)')
e(f's_load_dword s{S_TAG}, {sp(WS)}, 0')
e(f's_cmp_lg_u32 s{S_SLOT}, 27'); e('s_cbranch_scc1 L_spare')
c('the first spare of each group brings the key lines into this L2')
e(f'global_load_dwordx2 v[8:9], v40, {sp(WS)} sc1')
e('s_branch L_spare')
lab('L_exit0')
e('s_endpgm')
lab('L_notp')
e(f's_cmp_lg_u32 s{S_WAVE}, 3'); e('s_cbranch_scc1 L_w')

XR, WW, ACC = 8, 44, 80
c('router wave: rows 8*wg + (l>>3), bytes 128c + 16*(l&7)')
e(f's_lshl_b32 s{S_T1}, s2, 3')
if X0:
    e(f's_cmp_lg_u32 s{S_XCD}, 0'); e('s_cbranch_scc1 L_r1')
    e(f's_cmp_ge_u32 s{S_SLOT}, 27'); e('s_cbranch_scc1 L_r1')
    e('s_endpgm')
    lab('L_rx')
    c('extra router wave: takes the rows of workgroup 8e, e = min(7*(31-slot) + xcd-1, 26)')
    e(f's_cmp_eq_u32 s{S_SLOT}, 27'); e('s_cbranch_scc1 L_exit0')
    e(f's_cmp_eq_u32 s{S_XCD}, 0'); e('s_cbranch_scc1 L_exit0')
    e(f's_mul_i32 s{S_T1}, s{S_SLOT}, -7')
    e(f's_add_u32 s{S_T1}, s{S_T1}, s{S_XCD}')
    e(f's_addk_i32 s{S_T1}, {7*31-1}')
    e(f's_min_u32 s{S_T1}, s{S_T1}, 26')
    e(f's_lshl_b32 s{S_T1}, s{S_T1}, 6')
    e(f's_addk_i32 s{S_SLOT}, 4')
    lab('L_r1')
e('s_setprio 3')
e('v_lshrrev_b32 v1, 3, v0')
e(f'v_add_u32 v1, s{S_T1}, v1')
e('v_and_b32 v2, 7, v0')
e('v_lshlrev_b32 v2, 4, v2')
e(f's_movk_i32 s{S_T2}, 1152')
e(f'v_mad_u32_u24 v4, v1, s{S_T2}, v2')
if WLDS:
    e('v_lshlrev_b32 v5, 4, v0')
    e(f's_movk_i32 m0, {LDS_W}')
e('s_waitcnt lgkmcnt(0)')
def wl():
    if WLDS:
        e(f'global_load_lds_dwordx4 v5, {sp(WR)}')
        e('s_mov_b64 exec, 0xff')
        e(f'global_load_lds_dwordx4 v5, {sp(WR)} offset:1024')
        e('s_mov_b64 exec, -1')
        return
    for cc in range(9): e(f'global_load_dwordx4 v[{WW+4*cc}:{WW+4*cc+3}], v2, {sp(WR)} offset:{128*cc}')
if not WLAST: wl()
for cc in range(9): e(f'global_load_dwordx4 v[{XR+4*cc}:{XR+4*cc+3}], v4, {sp(X)} offset:{128*cc}{XNT}')
if WLAST: wl()
e(f's_load_dword s{S_TAG}, {sp(WS)}, 0')
if B0: e('s_barrier')
stamp(1)
e('s_branch L_r2')

lab('L_w')
e(f's_cmp_ge_u32 s{S_SLOT}, 27'); e('s_cbranch_scc1 L_spare0')
RAW, TX, DA, AF = 16, 112, 144, 176
slot9()
e(f's_add_u32 s{S_T}, s{S_T}, s{S_WAVE}')
c('G: row = 64k + 32u + 8*(l>>4) + e ; col bytes = 128c + 16*(l&7) ; matrix = (l>>3)&1')
e('v_lshrrev_b32 v8, 4, v0')
e(f's_lshl_b32 s{S_T0}, s{S_K}, 3')
e(f'v_add_u32 v1, s{S_T0}, v8')
e(f's_mov_b32 s{S_T1}, {8*9216}')
e(f'v_mul_lo_u32 v1, v1, s{S_T1}')
e('v_and_b32 v9, 7, v0')
e('v_lshlrev_b32 v9, 4, v9')
e(f's_lshl_b32 s{S_T2}, s{S_T}, 7')
e(f'v_add3_u32 v1, v1, v9, s{S_T2}')
e('v_and_b32 v10, 8, v0')
e('v_cmp_ne_u32 vcc, 0, v10')
e(f's_mov_b32 s{S_A}, 9216'); e(f's_mov_b32 s{S_A+1}, 0')
e(f's_mov_b32 s{S_B}, {25*9216}'); e(f's_mov_b32 s{S_B+1}, 0')
e('s_waitcnt lgkmcnt(0)')
e(f'v_mov_b32 v2, s{WG}'); e(f'v_mov_b32 v3, s{WG+1}')
e(f'v_mov_b32 v4, s{WU}'); e(f'v_mov_b32 v5, s{WU+1}')
e('v_cndmask_b32 v2, v2, v4, vcc'); e('v_cndmask_b32 v3, v3, v5, vcc')
e('v_add_co_u32 v2, vcc, v2, v1')
e(f's_load_dword s{S_TAG}, {sp(WS)}, 0')
if not B0: e('s_nop 0')
if B0: e('s_barrier')
e('v_addc_co_u32 v3, vcc, 0, v3, vcc')
DOFF = [-2880, -1728, 1728, 2880]
def wload(n):
    if n < 16:
        e(f'global_load_dwordx4 v[{RAW+4*n}:{RAW+4*n+3}], v[2:3], off{NT}')
        if n < 15: e(f'v_lshl_add_u64 v[2:3], v[2:3], 0, {sp(S_B if n == 7 else S_A)}')
    else:
        r = n - 16
        e(f'global_load_dwordx4 v[{RAW+4*n}:{RAW+4*n+3}], v{6+r//4}, {sp(WD)} offset:{DOFF[r%4]}{NT}')
TG = [TX, RAW]; TD = RAW + 32
def gperm(pair): perms(RAW + 32*(pair//4), TG[pair//4], pair % 4)
if not LATE:
    for n in range(WIN0): wload(n)
c('D: row = 64c + 32*(kg&1) + 16*m + 2*(kg>>1) + {0,1,4,5,8,9,12,13} ; col bytes = 128k + 16q')
e('v_and_b32 v6, 24, v0')
e('v_lshlrev_b32 v6, 1, v6')
e('v_lshrrev_b32 v7, 5, v0')
e('v_lshl_add_u32 v6, v7, 1, v6')
e(f's_lshl_b32 s{S_T0}, s{S_T}, 6')
e(f'v_add_u32 v6, s{S_T0}, v6')
e(f's_movk_i32 s{S_T1}, 1152')
e(f'v_mul_lo_u32 v6, v6, s{S_T1}')
e(f's_lshl_b32 s{S_T3}, s{S_K}, 7')
e(f's_add_u32 s{S_T3}, s{S_T3}, 2880')
e(f'v_add3_u32 v6, v6, v9, s{S_T3}')
e('v_add_u32 v7, 9216, v6')
e(f's_mov_b32 s{S_SELLO}, 0x05040100')
e(f's_mov_b32 s{S_SELHI}, 0x07060302')
c('A-fragment LDS address, exchange addresses, partial LDS address')
e('v_lshlrev_b32 v11, 4, v8')
e(f's_mul_i32 s{S_T0}, s{S_T}, 4608')
e(f's_add_u32 s{S_T0}, s{S_T0}, {EXL+2048}')
e(f'v_lshl_add_u32 v13, v0, 4, s{S_T0}')
e(f's_lshl_b32 s{S_T1}, s{S_K}, 9')
e(f's_add_u32 s{S_T0}, s{S_T0}, s{S_T1}')
e(f's_sub_u32 s{S_T0}, s{S_T0}, 2048')
e('v_and_b32 v12, 4, v0'); e('v_lshlrev_b32 v12, 6, v12')
e('v_lshl_add_u32 v12, v10, 4, v12')
e('v_and_b32 v14, 3, v0'); e('v_lshl_add_u32 v12, v14, 5, v12')
e(f'v_add3_u32 v12, v12, v11, s{S_T0}')
e(f'v_cmp_eq_u32 {sp(S_M)}, 0, v10')
e(f's_lshl_b32 s{S_T0}, s{S_WAVE}, 9')
e('v_lshlrev_b32 v14, 5, v10')
e('v_lshl_add_u32 v14, v9, 1, v14')
e(f'v_add_u32 v14, s{S_T0}, v14')
getxcc()
for i in range(4): e(f's_mov_b32 s{S_PS+i}, {0x07060500+i:#x}')
if LATE:
    for n in range(WIN0): wload(n)
L.append(';;WARMSPOT')
bar1()
stamp(1)
done_pairs = 0; got = 0
NI = 16 + ND1
for n in range(WIN0, NI):
    w = WING if n < 16 else WIND
    need = n - w + 1
    if need > got:
        e(f's_waitcnt vmcnt({w-1})'); got = need
    wload(n)
    while done_pairs < 8 and 2*done_pairs + 2 <= got:
        gperm(done_pairs); done_pairs += 1
    if n == WING + 2:
        e('s_waitcnt lgkmcnt(0)')
        e(f's_add_u32 s{S_TAG}, s{S_TAG}, 1')
        e(f's_lshl_b32 s{S_T0}, s{S_XCC}, 24')
        e(f's_xor_b32 s{S_TAG}, s{S_TAG}, s{S_T0}')
        for i in range(4): e(f's_bfe_u32 s{S_TB+i}, s{S_TAG}, {(8<<16)|(8*i)}')
        e(f'v_mov_b32 v15, s{S_TAG}')
    L.append(';;WARMSPOT')
while done_pairs < (4 if ND1 == 8 else 7):
    e(f's_waitcnt vmcnt({NI - (2*done_pairs+2)})'); gperm(done_pairs); done_pairs += 1
if WST:
    e('s_waitcnt vmcnt(8)'); stamp(1); e('s_waitcnt vmcnt(0)')
stamp(2)
e('s_barrier')
e(f'ds_read_b128 v[{AF}:{AF+3}], v11 offset:{LDS_X}')
e(f'ds_read_b128 v[{AF+4}:{AF+7}], v11 offset:{LDS_X+64}')
for n in range(NI, 24): wload(n)
e('s_waitcnt lgkmcnt(0)' if STAMP else 's_waitcnt lgkmcnt(1)')
stamp(3)
JO = (0, 4, 1, 5, 2, 6, 3, 7)
for j in JO:
    e(f'v_mfma_f32_16x16x32_bf16 v[{DA+4*j}:{DA+4*j+3}], v[{AF}:{AF+3}], v[{TG[0]+4*j}:{TG[0]+4*j+3}], 0')
while done_pairs < 8:
    e(f's_waitcnt vmcnt({24 - (2*done_pairs+2)})'); gperm(done_pairs); done_pairs += 1
e('s_waitcnt lgkmcnt(0)')
for j in JO:
    e(f'v_mfma_f32_16x16x32_bf16 v[{DA+4*j}:{DA+4*j+3}], v[{AF+4}:{AF+7}], v[{TG[1]+4*j}:{TG[1]+4*j+3}], v[{DA+4*j}:{DA+4*j+3}]')
EX = TX
e('s_nop 1')
for j in range(4):
    mdpp(DA+4*j, DA+4*j+16, 'quad_perm:[0,1,2,3]', '0x2')
    e(f'v_perm_b32 v{AF+j}, v{DA+4*j}, v15, s{S_PS+j}')
e('s_mov_b32 exec_hi, 0')
e(f'global_store_dwordx4 v12, v[{AF}:{AF+3}], {sp(WS)}{EXM}')
e('s_mov_b32 exec_hi, -1')
stamp(4)
L.append(';;WARMSPOT')
for p in range(3):
    e(f's_waitcnt vmcnt({7-2*p})'); perms(RAW+64, TD, p)
def five_loads():
    for i in range(4):
        e(f'global_load_dwordx4 v[{EX+4*i}:{EX+4*i+3}], v13, {sp(WS)} offset:{1024*i-2048} sc1')
    e('s_mov_b32 exec_hi, 0')
    e(f'global_load_dwordx4 v[{EX+16}:{EX+19}], v13, {sp(WS)} offset:2048 sc1')
    e('s_mov_b32 exec_hi, -1')
five_loads()
e('s_waitcnt vmcnt(6)'); perms(RAW+64, TD, 3)
stamp(5)
e(f's_mov_b32 s{S_CNT}, 0')
e('s_branch L_w_chk')
L.append(';;WARMFREE')
lab('L_w_poll')
e(f's_add_u32 s{S_CNT}, s{S_CNT}, 1')
e(f's_cmp_ge_u32 s{S_CNT}, {LOCN}')
e('s_cbranch_scc1 L_w_far')
lab('L_w_same')
five_loads()
lab('L_w_chk')
M = EX + 20
for i in range(5):
    e(f's_waitcnt vmcnt({4-i})')
    if i == 4: e('s_mov_b32 exec_hi, 0')
    for d in range(4): e(f'v_xor_b32 v{EX+4*i+d}, s{S_TB+d}, v{EX+4*i+d}')
    if i == 0: e(f'v_or_b32 v{M}, v{EX}, v{EX+1}')
    else: e(f'v_or3_b32 v{M}, v{M}, v{EX+4*i}, v{EX+4*i+1}')
    e(f'v_or3_b32 v{M}, v{M}, v{EX+4*i+2}, v{EX+4*i+3}')
    if i > 0:
        e(f'v_pk_add_f32 v[{EX}:{EX+1}], v[{EX}:{EX+1}], v[{EX+4*i}:{EX+4*i+1}]')
        e(f'v_pk_add_f32 v[{EX+2}:{EX+3}], v[{EX+2}:{EX+3}], v[{EX+4*i+2}:{EX+4*i+3}]')
e('s_mov_b32 exec_hi, -1')
e(f'v_and_b32 v{M}, 0xff, v{M}')
e(f'v_cmp_ne_u32 vcc, 0, v{M}')
e('s_cbranch_vccnz L_w_poll')
lab('L_w_go')
stamp(6)
a0, a1, t0, t1 = EX, EX+1, EX+4, EX+5
e(f'v_permlane32_swap_b32 v{EX}, v{EX+2}')
e(f'v_permlane32_swap_b32 v{EX+1}, v{EX+3}')
e(f'v_pk_add_f32 v[{EX}:{EX+1}], v[{EX}:{EX+1}], v[{EX+2}:{EX+3}]')
e(f'v_cvt_pk_bf16_f32 v{EX+2}, v{a0}, v{a1}')
e(f'v_lshlrev_b32 v{a0}, 16, v{EX+2}')
e(f'v_and_b32 v{a1}, 0xffff0000, v{EX+2}')
e(f'v_mul_f32 v{t0}, 0xbfb8aa3b, v{a0}')
e(f'v_mul_f32 v{t1}, 0xbfb8aa3b, v{a1}')
e(f'v_exp_f32 v{t0}, v{t0}')
e(f'v_exp_f32 v{t1}, v{t1}')
e('s_nop 0')
e(f'v_pk_add_f32 v[{t0}:{t1}], v[{t0}:{t1}], 1.0 op_sel_hi:[1,0]')
e(f'v_rcp_f32 v{t0}, v{t0}')
e(f'v_rcp_f32 v{t1}, v{t1}')
e('s_nop 0')
e(f'v_pk_mul_f32 v[{t0}:{t1}], v[{a0}:{a1}], v[{t0}:{t1}]')
e(f'v_cvt_pk_bf16_f32 v{t0}, v{t0}, v{t1}')
e(f'v_cndmask_b32 v{t0}, v{EX+2}, v{t0}, {sp(S_M)}')
e(f'v_lshlrev_b32 v{a0}, 16, v{t0}')
e(f'v_and_b32 v{a1}, 0xffff0000, v{t0}')
e('s_nop 0')
dpp('v_mul_f32', a0, a0, a0, 'row_ror:8')
dpp('v_mul_f32', a1, a1, a1, 'row_ror:8')
e(f'v_cvt_pk_bf16_f32 v{a0}, v{a0}, v{a1}')
e('s_nop 1')
for p in range(4): mdpp(AF+4+p, a0, f'quad_perm:[{p},{p},{p},{p}]')
e('s_nop 1')
for j in range(8):
    e(f'v_mfma_f32_16x16x32_bf16 v[{DA+4*j}:{DA+4*j+3}], v[{AF+4}:{AF+7}], v[{TD+4*j}:{TD+4*j+3}], 0')
e('s_mov_b32 exec_lo, 0xff0000ff')
e('s_mov_b32 exec_hi, 0')
for jj in range(4):
    if jj > 0: e('s_nop 0')
    e(f'ds_write2_b32 v14, v{DA+8*jj}, v{DA+8*jj+4} offset0:{LDS_P//4+2*jj} offset1:{LDS_P//4+2*jj+1}')
e('s_waitcnt lgkmcnt(0)')
e('s_barrier')
stamp(7)
endpgm()
L.append(';;WARMFREE')

lab('L_p')
e(f's_cmp_ge_u32 s{S_SLOT}, 27'); e('s_cbranch_scc1 L_exit0')
getxcc()
slot9()
e('s_waitcnt lgkmcnt(0)')
e(f's_cmp_lg_u32 s{S_WAVE}, 6'); e('s_cbranch_scc1 L_p1')
c("bring this workgroup's three exchange slots (12 lines) into the L2")
e(f's_mul_i32 s{S_T0}, s{S_T}, 4608')
e(f's_lshl_b32 s{S_T1}, s{S_K}, 9')
e(f's_add_u32 s{S_T0}, s{S_T0}, s{S_T1}')
e(f's_add_u32 s{S_T0}, s{S_T0}, {EXL}')
e('v_lshrrev_b32 v1, 2, v0')
e(f's_movk_i32 s{S_T1}, 4608')
e(f'v_mul_u32_u24 v1, s{S_T1}, v1')
e('v_and_b32 v2, 3, v0')
e('v_lshlrev_b32 v2, 7, v2')
e(f'v_add3_u32 v1, v1, v2, s{S_T0}')
if TLB:
    e(f's_mul_i32 s{S_T1}, s{S_T}, {64*1152}')
    e(f's_lshl_b32 s{S_T2}, s{S_K}, 7')
    e(f's_add_u32 s{S_T1}, s{S_T1}, s{S_T2}')
    e(f's_movk_i32 s{S_T2}, {16*1152}')
    e(f'v_mul_u32_u24 v4, s{S_T2}, v0')
    e(f'v_add_u32 v4, s{S_T1}, v4')
e('s_mov_b64 exec, 0xfff')
if TLB == 1: e(f'global_load_dword v5, v4, {sp(WD)}')
bar1()
if TLB == 2: e(f'global_load_dword v5, v4, {sp(WD)}')
if not NOPT: e(f'global_load_dword v3, v1, {sp(WS)} sc1')
e('s_endpgm')
L.append(';;WARMFREE')
lab('L_p1')
e(f's_load_dword s{S_TAG}, {sp(WS)}, 0')
bar1()
e(f's_lshl_b32 s{S_T3}, s{S_XCC}, 12')
e(f's_add_u32 s{S_T3}, s{S_T3}, {BC}')
e(f's_add_u32 s{S_T2}, s{S_T3}, {64*NBC}')
e(f's_and_b32 s{S_T1}, s{S_WAVE}, 1')
e(f's_lshl_b32 s{S_T1}, s{S_T1}, 6')
e(f'v_lshl_add_u32 v4, v0, 2, s{S_T1}')
e(f's_lshl_b32 s{S_K}, s{S_K}, 7')
e(f's_add_u32 s{S_K}, s{S_K}, s{S_T1}')
e('v_and_b32 v10, 60, v0')
e(f'v_add_u32 v11, s{S_T1}, v10')
e('v_and_b32 v12, 1, v0')
e(f'v_cmp_eq_u32 {sp(S_M)}, 1, v12')
e('v_lshlrev_b32 v12, 2, v12')
e('v_lshl_add_u32 v12, v11, 1, v12')
e('v_lshrrev_b32 v13, 4, v0')
e('v_and_b32 v14, 15, v0')
e('v_lshlrev_b32 v14, 2, v14')
e('v_lshl_add_u32 v13, v13, 7, v14')
e(f's_lshl_b32 s{S_T0}, s{S_K}, 3')
e(f's_add_u32 s{S_T0}, s{S_T0}, {ACCU}')
e(f'v_add_u32 v13, s{S_T0}, v13')
e('v_mov_b32 v7, 0')
e('s_mov_b64 exec, 0xffff')
L.append(';;WARMSPOT')
e('s_waitcnt lgkmcnt(0)')
e(f's_add_u32 s{S_TAG}, s{S_TAG}, 1')
stamp(1)
if NOP: e(f's_sleep {NOP}')
if SKEW >= 0:
    e('s_cmp_ge_u32 s2, 8'); e('s_cbranch_scc1 L_p_poll')
    e('s_lshl_b32 s72, s2, 2'); e('s_add_u32 s72, s72, 0x300000'); e('v_mov_b32 v20, s72'); e('v_mov_b32 v21, s76')
    e(f'global_store_dword v20, v21, {sp(WS)} sc1')
lab('L_p_poll')
e(f's_load_dwordx2 {sp(S_A)}, {sp(WS)}, s{S_T3}')
e(f's_add_u32 s{S_T3}, s{S_T3}, 64')
e(f's_cmp_ge_u32 s{S_T3}, s{S_T2}')
e('s_cbranch_scc1 L_p_slow')
e('s_waitcnt lgkmcnt(0)')
e(f's_cmp_lg_u32 s{S_A+1}, s{S_TAG}')
e('s_cbranch_scc1 L_p_poll')
lab('L_p_got')
e(f's_andn2_b32 s{S_T1}, 0x7ff, s{S_A}')
e(f's_mul_i32 s{S_T0}, s{S_T1}, 1152')
e(f's_add_u32 s{S_T0}, s{S_T0}, s{S_K}')
e(f's_load_dwordx16 s[{S_XS}:{S_XS+15}], {sp(X)}, s{S_T0}')
stamp(2)
e(f'v_mov_b32 v6, s{S_T1}')
e(f'ds_write_b32 v7, v6 offset:{LDS_WIN}')
e('s_waitcnt lgkmcnt(0)')
stamp(3)
for d in range(16): e(f'v_writelane_b32 v5, s{S_XS+d}, {d}')
e(f'ds_write_b32 v4, v5 offset:{LDS_X}')
e('s_waitcnt lgkmcnt(0)')
e('s_barrier')
L.append(';;WARMSPOT')
e('s_mov_b64 exec, -1')
e(f'ds_read_b32 v5, v11 offset:{LDS_X}')
e(f'v_add_u32 v10, s{S_T0}, v10')
c('r_sel = bf16(sigmoid(r))')
e(f's_ashr_i32 s{S_T2}, s{S_A}, 31')
e(f's_not_b32 s{S_T2}, s{S_T2}')
e(f's_or_b32 s{S_T2}, s{S_T2}, 0x80000000')
e(f's_xor_b32 s{S_T1}, s{S_A}, s{S_T2}')
e(f's_and_b32 s{S_T1}, s{S_T1}, 0xffff0000')
e(f'v_mov_b32 v8, s{S_T1}')
e('v_mul_f32 v8, 0xbfb8aa3b, v8')
e('v_exp_f32 v8, v8')
e(f's_mov_b32 s{S_B}, 0x11111111'); e(f's_mov_b32 s{S_B+1}, 0x11111111')
e('v_add_f32 v8, 1.0, v8')
e('v_rcp_f32 v8, v8')
e(f's_lshl_b64 {sp(S_A)}, {sp(S_B)}, 2')
bf16r(8, 8)
e('s_waitcnt lgkmcnt(0)')
e('v_lshlrev_b32 v6, 16, v5')
e('v_and_b32 v5, 0xffff0000, v5')
e(f'v_cndmask_b32 v5, v6, v5, {sp(S_M)}')
e('v_fma_f32 v5, v5, 0, v5')
e('v_mov_b32 v9, 0x41b80000')
e(f'v_mov_b32 v15, s{S_TAG}')
e('s_mov_b32 exec_lo, 0x77777777'); e('s_mov_b32 exec_hi, 0x77777777')
stamp(4)
e('s_barrier')
for i in range(3):
    e(f'ds_read2st64_b32 v[{16+2*i}:{17+2*i}], v12 offset0:{LDS_P//256+2*i} offset1:{LDS_P//256+2*i+1}')
e('s_waitcnt lgkmcnt(1)' if not STAMP else 's_waitcnt lgkmcnt(0)')
e('v_pk_add_f32 v[16:17], v[16:17], v[18:19]')
e('s_waitcnt lgkmcnt(0)')
e('v_pk_add_f32 v[16:17], v[16:17], v[20:21]')
e('v_add_f32 v16, v16, v17')
e(f'v_cndmask_b32 v16, v16, 1.0, {sp(S_A)}')
e(f'global_atomic_add_f32 v17, v13, v16, {sp(WS)} sc0 sc1')
stamp(5)
e('s_waitcnt vmcnt(0)')
stamp(6)
mdpp(18, 17, 'quad_perm:[2,2,2,2]')
e('v_add_f32 v16, v16, v17')
e('v_cmp_eq_f32 vcc, v9, v18')
bf16r(16, 16)
e(f's_and_b64 vcc, vcc, {sp(S_B)}')
e('s_cbranch_scc0 L_end')
e('v_mul_f32 v16, v16, v8')
bf16r(16, 16)
e('v_add_f32 v16, v5, v16')
e('s_nop 1')
mdpp(17, 16, 'quad_perm:[1,1,1,1]')
e('v_cvt_pk_bf16_f32 v16, v16, v17')
e('s_mov_b64 exec, vcc')
if not NOFIN: e(f'global_store_dword v10, v16, {sp(OUT)}{FOM}')
if ACK: e('s_waitcnt vmcnt(0)')
stamp(7)
c('the last adder of the first granule moves the epoch on')
e(f's_cmp_lg_u32 s{S_K}, 0'); e('s_cbranch_scc1 L_end')
e('s_and_b64 exec, vcc, 1'); e('s_cbranch_scc0 L_end')
if not NOEP: e(f'global_store_dword v7, v15, {sp(WS)}{EPM}')
if KD: e('s_memrealtime s[78:79]'); e('s_branch L_kd')
lab('L_end')
if MINI:
    e('s_memrealtime s[82:83]'); e('s_mov_b64 exec, 1')
    e(f's_lshl_b32 s{S_T0}, s2, 4'); e(f's_add_u32 s{S_T0}, s{S_T0}, s{S_WAVE}')
    e(f's_lshl_b32 s{S_T0}, s{S_T0}, 6'); e(f's_add_u32 s{S_T0}, s{S_T0}, 0x8000000')
    e(f'v_mov_b32 v2, s{S_T0}'); e('s_waitcnt lgkmcnt(0)')
    for k in range(4): e(f'v_mov_b32 v{20+k}, s{80+k}')
    e(f'global_store_dwordx4 v2, v[20:23], {sp(WS)}')
if SKEW >= 0:
    if KD: e('s_endpgm'); lab('L_kd')
    else: e('s_cmp_lg_u32 s2, 9'); e('s_cbranch_scc1 L_exit0')
    e('s_mov_b32 s72, 0x300000'); e(f's_load_dwordx8 s[64:71], {sp(WS)}, s72'); e('s_waitcnt lgkmcnt(0)')
    e('s_mov_b32 s74, s64')
    for i in range(1, 8): e(f's_min_u32 s74, s74, s{64+i}')
    if KD: e('s_sub_u32 s74, s78, s74'); e('s_min_u32 s74, s74, 2000'); e('s_mul_i32 s74, s74, 10')
    else: e(f's_sub_u32 s74, s{64+SKEW}, s74'); e('s_min_u32 s74, s74, 500'); e('s_mul_i32 s74, s74, 20')
    e('s_memrealtime s[72:73]'); e('s_waitcnt lgkmcnt(0)'); e('s_add_u32 s74, s74, s72')
    lab('L_dspin')
    e('s_memrealtime s[72:73]'); e('s_waitcnt lgkmcnt(0)')
    e('s_sub_u32 s75, s74, s72'); e('s_cmp_gt_i32 s75, 0'); e('s_cbranch_scc1 L_dspin')
if DIAG >= 0:
    e(f's_cmp_lg_u32 s2, {DIAG}'); e('s_cbranch_scc1 L_exit0')
    e('s_memrealtime s[72:73]'); e('s_waitcnt lgkmcnt(0)')
    e('s_sub_u32 s74, s72, s76'); e('s_min_u32 s74, s74, 5000'); e('s_mul_i32 s74, s74, 10'); e('s_add_u32 s74, s74, s72')
    lab('L_dspin')
    e('s_memrealtime s[72:73]'); e('s_waitcnt lgkmcnt(0)')
    e('s_sub_u32 s75, s74, s72'); e('s_cmp_gt_i32 s75, 0'); e('s_cbranch_scc1 L_dspin')
endpgm()
lab('L_seg1_end')
e('.p2align 12')

lab('L_warm_s')
e('s_endpgm')
lab('L_spare')
getxcc()
e(f's_sub_u32 s{S_T}, s2, 224')
e(f's_lshl_b32 s{S_T3}, s{S_XCC}, 12')
e(f's_add_u32 s{S_T3}, s{S_T3}, {BC}')
e(f'v_lshl_add_u32 v3, v0, 6, s{S_T3}')
e(f's_cmp_lg_u32 s{S_SLOT}, 27'); e('s_cbranch_scc1 L_s_noclr')
c('clear 9 accumulator lines, bring the broadcast lines into this L2')
e(f's_mul_i32 s{S_T0}, s{S_XCD}, {9*128}')
e(f's_addk_i32 s{S_T0}, {ACCU}')
e(f'v_lshl_add_u32 v1, v0, 4, s{S_T0}')
e('v_mov_b64 v[12:13], 0'); e('v_mov_b64 v[14:15], 0')
e(f'global_store_dwordx4 v1, v[12:15], {sp(WS)} sc1')
e(f'global_store_dwordx4 v1, v[12:15], {sp(WS)} offset:128 sc1')
if NBC < 64: e('s_mov_b32 exec_hi, 0')
e(f'global_load_dwordx2 v[8:9], v3, {sp(WS)} sc1')
if NBC < 64: e('s_mov_b32 exec_hi, -1')
lab('L_s_noclr')
e(f's_lshl_b32 s{S_T0}, s{S_T}, 10')
e(f's_add_u32 s{S_T0}, s{S_T0}, {K2}')
e('v_and_b32 v41, 7, v0')
e(f'v_lshl_add_u32 v41, v41, {3 if APOLL else 7}, s{S_T0}')
if not APOLL:
    e(f's_cmp_ge_u32 s{S_T}, {NDEST}'); e('s_cbranch_scc1 L_s_nopt')
    e(f'global_load_dwordx2 v[8:9], v41, {sp(WS)} sc1')
    lab('L_s_nopt')
e(f's_lshl_b32 s{S_T0}, s{S_XCD}, {3 if APOLL else 7}')
e(f's_add_u32 s{S_T0}, s{S_T0}, {K2}')
e(f'v_lshl_add_u32 v42, v0, 10, s{S_T0}')
e(f's_movk_i32 s{S_T1}, 1152')
e(f's_movk_i32 s{S_T2}, 0x7ff')
e('v_mov_b32 v13, 0')
e('s_waitcnt lgkmcnt(0)')
e(f's_add_u32 s{S_TAG}, s{S_TAG}, 1')
e(f'v_mov_b32 v7, s{S_TAG}')
stamp(1)
e('s_barrier')
e(f's_cmp_lt_u32 s{S_T}, {NDEST}'); e('s_cbranch_scc1 L_s_l2')
e(f's_cmp_lg_u32 s{S_SLOT}, 27'); e('s_cbranch_scc1 L_s_wait')
e(f's_mov_b32 s{S_CNT}, 0')
lab('L_s_poll1')
e(f'global_load_dwordx2 v[8:9], v40, {sp(WS)} sc1')
e(f's_add_u32 s{S_CNT}, s{S_CNT}, 1')
e(f's_cmp_lg_u32 s{S_CNT}, {LOCN}')
e('s_cbranch_scc1 L_s_same1')
e(f'v_add_u32 v40, {K1G-K1L}, v40')
lab('L_s_same1')
e(f's_cmp_gt_u32 s{S_CNT}, {SPIN}')
e('s_cbranch_scc1 L_s_got1')
e('s_waitcnt vmcnt(0)')
e(f'v_cmp_ne_u32 vcc, s{S_TAG}, v9')
e('s_cbranch_vccnz L_s_poll1')
lab('L_s_got1')
stamp(7)
for m in ('row_shr:1', 'row_shr:2', 'row_shr:4', 'row_shr:8'):
    dpp('v_max_u32', 8, 8, 8, m); e('s_nop 1')
dpp('v_max_u32', 8, 8, 8, 'row_bcast:15', '0xa')
if X0:
    e('s_nop 1'); dpp('v_max_u32', 8, 8, 8, 'row_bcast:31', '0xc')
e(f's_mov_b64 exec, {(1<<NDEST)-1:#x}' if NDEST < 32 else 's_mov_b32 exec_hi, 0')
e(f'v_readlane_b32 s{S_T0}, v8, {63 if X0 else 31}')
e('s_nop 1')
e(f'v_mov_b32 v6, s{S_T0}')
e(f'global_store_dwordx2 v42, v[6:7], {sp(WS)} sc1')
if STAMP:
    stamp(5); e('s_waitcnt vmcnt(0)'); stamp(4)
lab('L_s_wait')
c('not a reader: take the winner from the local broadcast or the device-wide copy')
e('s_mov_b64 exec, 3')
e(f's_movk_i32 s{S_T0}, {WIN_G}'); e(f'v_writelane_b32 v3, s{S_T0}, 1')
e(f's_mov_b32 s{S_CNT}, {SPIN}')
lab('L_s_wpoll')
e(f'global_load_dwordx2 v[8:9], v3, {sp(WS)} sc1')
e(f's_sub_u32 s{S_CNT}, s{S_CNT}, 1')
e('s_cbranch_scc1 L_s_nog')
e('s_sleep 2')
e('s_waitcnt vmcnt(0)')
e(f'v_cmp_eq_u32 vcc, s{S_TAG}, v9')
e(f'v_bfi_b32 v14, v8, 0, s{S_T2}')
e('s_cbranch_vccz L_s_wpoll')
e('s_mov_b64 exec, vcc')
e('s_branch L_s_nog')
lab('L_s_l2')
e(f's_mov_b32 s{S_CNT}, {SPIN}')
e('v_min_u32 v5, 8, v0')
e('v_lshlrev_b32 v5, 7, v5')
if SPEC:
    e(f's_cmp_ge_u32 s{S_T}, {8*NRD}'); e('s_cbranch_scc1 L_s_spec')
if APOLL:
    e('v_mov_b64 v[10:11], 0')
    for i in range(APOLL): e(f'v_not_b32 v{17+2*i}, v7')
    e('s_mov_b64 exec, 0xff')
    lab('L_s_poll')
    for i in range(APOLL):
        o = (i + 1) % APOLL
        e(f'global_atomic_add_x2 v[{16+2*i}:{17+2*i}], v41, v[10:11], {sp(WS)} sc0 sc1')
        if ASL: e(f's_sleep {ASL}')
        e(f's_waitcnt vmcnt({APOLL-1})')
        e(f'v_cmp_ne_u32 vcc, s{S_TAG}, v{17+2*o}')
        dpp('v_max_u32', 8, 16+2*o, 16+2*o, 'quad_perm:[1,0,3,2]')
        e('s_cbranch_vccz L_s_got')
    e(f's_sub_u32 s{S_CNT}, s{S_CNT}, 1')
    e('s_cbranch_scc0 L_s_poll')
    lab('L_s_got')
    stamp(2)
    e('s_nop 0')
    dpp('v_max_u32', 8, 8, 8, 'quad_perm:[2,3,0,1]'); e('s_nop 1')
    dpp('v_max_u32', 8, 8, 8, 'row_half_mirror')
    e('s_mov_b64 exec, -1')
    e(f'v_readfirstlane_b32 s{S_T0}, v8')
    e('s_nop 1')
    e(f'v_mov_b32 v6, s{S_T0}')
else:
    lab('L_s_poll')
    if STAMP:
        e(f's_mov_b64 s[{S_ST+12}:{S_ST+13}], s[{S_ST+10}:{S_ST+11}]'); stamp(5); e('s_waitcnt lgkmcnt(0)')
    e(f'global_load_dwordx2 v[8:9], v41, {sp(WS)} sc1')
    e(f's_sub_u32 s{S_CNT}, s{S_CNT}, 1')
    e('s_cbranch_scc1 L_s_got')
    e('s_waitcnt vmcnt(0)')
    e(f'v_cmp_ne_u32 vcc, s{S_TAG}, v9')
    dpp('v_max_u32', 8, 8, 8, 'quad_perm:[1,0,3,2]')
    e('s_cbranch_vccnz L_s_poll')
    lab('L_s_got')
    stamp(2)
    e('s_nop 0')
    dpp('v_max_u32', 8, 8, 8, 'quad_perm:[2,3,0,1]'); e('s_nop 1')
    dpp('v_max_u32', 6, 8, 8, 'row_half_mirror')
if NBC < 64: e('s_mov_b32 exec_hi, 0')
e(f'global_store_dwordx2 v3, v[6:7], {sp(WS)}')
e(f'v_bfi_b32 v14, v6, 0, s{S_T2}')
e(f'v_mad_u32_u24 v5, v14, s{S_T1}, v5')
e(f'global_load_dword v39, v5, {sp(X)}')
stamp(3)
e(f's_cmp_lg_u32 s{S_T}, 7')
e('s_cbranch_scc1 L_s_nog')
e(f'v_mov_b32 v5, {WIN_G}')
e('s_mov_b64 exec, 1')
e(f'global_store_dwordx2 v5, v[6:7], {sp(WS)} sc1')
lab('L_s_nog')
e(f'ds_write_b32 v13, v14 offset:{LDS_WIN}')
e('s_waitcnt lgkmcnt(0)')
e('s_barrier')
e('s_barrier')
lab('L_s_end')
endpgm()

if SPEC:
    lab('L_s_spec')
    c("this spare pulls every candidate row into the L2 as its key arrives")
    e('v_lshrrev_b32 v12, 3, v0'); e('v_lshlrev_b32 v12, 7, v12')
    lab('L_s_spoll')
    e(f'global_load_dwordx2 v[8:9], v41, {sp(WS)} sc1')
    e(f's_sub_u32 s{S_CNT}, s{S_CNT}, 1')
    e('s_cbranch_scc1 L_s_got')
    e('s_waitcnt vmcnt(0)')
    e(f'v_cmp_eq_u32 vcc, s{S_TAG}, v9')
    e(f'v_bfi_b32 v10, v8, 0, s{S_T2}')
    e(f'v_mad_u32_u24 v11, v10, s{S_T1}, v12')
    e('s_and_b64 exec, vcc, -1')
    e('s_cbranch_scc0 L_s_snone')
    e(f'global_load_dword v38, v11, {sp(X)}')
    e(f'global_load_dword v38, v11, {sp(X)} offset:128')
    lab('L_s_snone')
    e('s_mov_b64 exec, -1')
    dpp('v_max_u32', 8, 8, 8, 'quad_perm:[1,0,3,2]')
    e('s_cmp_eq_u64 vcc, -1')
    e('s_cbranch_scc0 L_s_spoll')
    e('s_branch L_s_got')
e('.p2align 6')
lab('L_warm_r')
e('s_endpgm')
lab('L_r2')
for i in range(4): e(f'v_mov_b32 v{ACC+i}, 0')
e('v_sub_u32 v6, 0xffff, v1')
e(f's_lshl_b32 s{S_T0}, s{S_XCD}, 6')
e(f's_add_u32 s{S_T0}, s{S_T0}, s{S_SLOT}')
e(f's_lshl_b32 s{S_T0}, s{S_T0}, {K1SH}')
e(f's_add_u32 s{S_T0}, s{S_T0}, {K1L}')
e(f'v_mov_b32 v3, s{S_T0}')
e(f'v_add_u32 v7, {K1G-K1L}, v3')
e(f's_mov_b32 s{S_T2}, 0xffff0000')
KY = 84
if WLDS:
    if RST: e('s_waitcnt lgkmcnt(0)'); stamp(7)
    e('s_waitcnt vmcnt(9)')
    if RST: stamp(5)
    for cc in range(9): e(f'ds_read_b128 v[{WW+4*cc}:{WW+4*cc+3}], v2 offset:{LDS_W+128*cc}')
e('s_waitcnt lgkmcnt(0)')
e(f's_add_u32 s{S_TAG}, s{S_TAG}, 1')
e(f'v_mov_b32 v{KY+1}, s{S_TAG}')
e(f's_cmp_ge_u32 s{S_SLOT}, 27')
for cc in range(9):
    e(f's_waitcnt vmcnt({8-cc})')
    if RST and cc == 0: stamp(6)
    for d in range(4): e(f'v_dot2c_f32_bf16 v{ACC+d}, v{XR+4*cc+d}, v{WW+4*cc+d}')
stamp(2)
e('s_nop 2')
e(f'v_pk_add_f32 v[{ACC}:{ACC+1}], v[{ACC}:{ACC+1}], v[{ACC+2}:{ACC+3}]')
e(f'v_add_f32 v{ACC}, v{ACC}, v{ACC+1}')
for m in ['quad_perm:[1,0,3,2]', 'quad_perm:[2,3,0,1]', 'row_half_mirror']:
    e('s_nop 1'); dpp('v_add_f32', ACC, ACC, ACC, m)
K0, K1 = KY+2, KY+3
e(f'v_cmp_o_f32 vcc, v{ACC}, v{ACC}')
e(f'v_cvt_pk_bf16_f32 v{K0}, v{ACC}, v{ACC}')
e(f'v_ashrrev_i32 v{K1}, 31, v{K0}')
e(f'v_or_b32 v{K1}, 0x80000000, v{K1}')
e(f'v_xor_b32 v{K0}, v{K0}, v{K1}')
e(f'v_cndmask_b32 v{K0}, 0, v{K0}, vcc')
e(f'v_and_or_b32 v{KY}, v{K0}, s{S_T2}, v6')
e('s_nop 1'); dpp('v_max_u32', KY, KY, KY, 'row_shr:8')
e('s_nop 1'); dpp('v_max_u32', KY, KY, KY, 'row_bcast:15', '0xa')
e('s_nop 1'); dpp('v_max_u32', KY, KY, KY, 'row_bcast:31', '0xc')
e('s_mov_b32 exec_lo, 0'); e('s_brev_b32 exec_hi, 1')
e('s_cbranch_scc0 L_r_k1')
e('s_barrier')
lab('L_r_k1')
e(f'global_store_dwordx2 v3, v[{KY}:{KY+1}], {sp(WS)}')
e('s_cbranch_scc1 L_r_k2')
if HOLD: e('s_barrier')
lab('L_r_k2')
e(f'global_store_dwordx2 v7, v[{KY}:{KY+1}], {sp(WS)} sc1')
e('s_mov_b64 exec, -1')
stamp(3)
e(f'v_mov_b32 v{K1}, 0x207')
e(f'v_cmp_class_f32 vcc, v{ACC}, v{K1}')
e('s_cbranch_vccnz L_r_fix')
lab('L_r_nofix')
def copy_rows(m=ONT):
    if NOCOPY == 1 or (NOCOPY == 2 and m == '') or (NOCOPY == 3 and m != ''): return
    for cc in range(9):
        e(f'global_store_dwordx4 v4, v[{XR+4*cc}:{XR+4*cc+3}], {sp(OUT)} offset:{128*cc}{m}')
if CP == 'E':
    e(f'v_readlane_b32 s{S_T1}, v{KY}, 63')
    e(f's_andn2_b32 s{S_T1}, 0x7ff, s{S_T1}')
    e(f'v_cmp_ne_u32 vcc, s{S_T1}, v1')
    e('s_mov_b64 exec, vcc')
    copy_rows()
    e('s_not_b64 exec, vcc')
e('s_barrier')
e('v_mov_b32 v2, 0')
e(f'ds_read_b32 v2, v2 offset:{LDS_WIN}')
e('s_waitcnt lgkmcnt(0)')
e('v_cmp_ne_u32 vcc, v2, v1')
if CP == 'D': e('s_barrier')
stamp(4)
e('s_and_b64 exec, exec, vcc')
if CP == 'E': e('s_cbranch_scc0 L_r_end')
if SPL:
    e(f's_cmp_ge_u32 s{S_SLOT}, 27'); e('s_cbranch_scc1 L_r_plain')
copy_rows()
lab('L_r_end')
if CP != 'D': e('s_barrier')
if STAMP and not RST:
    stamp(5); e('s_waitcnt vmcnt(0)'); stamp(6)
endpgm()

if SPL:
    lab('L_r_plain')
    copy_rows('')
    e('s_branch L_r_end')
lab('L_w_far')
c('partners may sit on another die: publish a device-wide copy, then alternate between the two copies')
e(f's_cmp_gt_u32 s{S_CNT}, {SPIN}')
e('s_cbranch_scc1 L_w_go')
e(f'v_xor_b32 v13, {EXG^EXL}, v13')
e(f's_xor_b32 s{S_TB+3}, s{S_TB+3}, s{S_XCC}')
e(f's_cmp_lg_u32 s{S_CNT}, {LOCN}')
e('s_cbranch_scc1 L_w_same')
e(f'v_xor_b32 v12, {EXG^EXL}, v12')
e(f'v_xor_b32 v{AF+3}, s{S_XCC}, v{AF+3}')
e('s_mov_b32 exec_hi, 0')
e(f'global_store_dwordx4 v12, v[{AF}:{AF+3}], {sp(WS)} sc1')
e('s_mov_b32 exec_hi, -1')
e('s_branch L_w_same')
lab('L_p_slow')
e(f'v_mov_b32 v6, {WIN_G}')
e(f's_mov_b32 s{S_CNT}, {SPIN}')
lab('L_p_slowpoll')
e(f'global_load_dwordx2 v[8:9], v6, {sp(WS)} sc1')
e('s_waitcnt vmcnt(0) lgkmcnt(0)')
e(f'v_readfirstlane_b32 s{S_A}, v8')
e(f'v_readfirstlane_b32 s{S_A+1}, v9')
e(f's_sub_u32 s{S_CNT}, s{S_CNT}, 1')
e('s_cbranch_scc1 L_p_got')
e(f's_cmp_lg_u32 s{S_A+1}, s{S_TAG}')
e('s_cbranch_scc1 L_p_slowpoll')
e('s_branch L_p_got')
if STAMP:
    lab('L_flush')
    e('s_waitcnt vmcnt(0) lgkmcnt(0)')
    e('s_mov_b64 exec, 1')
    e('s_sleep 40')
    e(f's_lshl_b32 s{S_T0}, s2, 4'); e(f's_add_u32 s{S_T0}, s{S_T0}, s{S_WAVE}')
    e(f's_lshl_b32 s{S_T0}, s{S_T0}, 6'); e(f's_add_u32 s{S_T0}, s{S_T0}, 0x8000000')
    e(f'v_mov_b32 v2, s{S_T0}')
    for i in range(4):
        for k in range(4): e(f'v_mov_b32 v{4+k}, s{S_ST+4*i+k}')
        e(f'global_store_dwordx4 v2, v[4:7], {sp(WS)} offset:{16*i}'); e('s_nop 1')
    e('s_endpgm')
lab('L_r_fix')
c('x + x*0 turns an infinity into a NaN')
e(f's_mov_b32 s{S_SELHI}, 0x07060302')
for d in range(36):
    r = XR + d
    e(f'v_lshlrev_b32 v{K0}, 16, v{r}')
    e(f'v_and_b32 v{K1}, s{S_T2}, v{r}')
    e(f'v_fma_f32 v{K0}, v{K0}, 0, v{K0}')
    e(f'v_fma_f32 v{K1}, v{K1}, 0, v{K1}')
    e(f'v_perm_b32 v{r}, v{K1}, v{K0}, s{S_SELHI}')
e('s_branch L_r_nofix')

hdr = f'''; MoD (mixture-of-depths, capacity 1) router + SwiGLU FFN on the routed token, one launch.
; @launch grid=(256,1,1) block=(512,1,1) lds={LDS_BYTES}
.amdgcn_target "amdgcn-amd-amdhsa--gfx950"
.text
.globl standalone__moe_arch_mod__prompt_kernel
.p2align 12
.fill {(4096-768)//4}, 4, 0xBF800000
.p2align 8
.type standalone__moe_arch_mod__prompt_kernel,@function
standalone__moe_arch_mod__prompt_kernel:'''
tail = '''.section .rodata,"a"
.p2align 6
.amdhsa_kernel standalone__moe_arch_mod__prompt_kernel
  .amdhsa_next_free_vgpr 184
  .amdhsa_next_free_sgpr 96
  .amdhsa_accum_offset 184
  .amdhsa_group_segment_fixed_size 0
  .amdhsa_kernarg_size 64
  .amdhsa_user_sgpr_count 2
  .amdhsa_user_sgpr_kernarg_segment_ptr 1
  .amdhsa_system_sgpr_workgroup_id_x 1
  .amdhsa_float_denorm_mode_32 3
.end_amdhsa_kernel
'''
def offsets(lines):
    out = []; k = 0
    for ln in lines:
        if ln.startswith(';;WARM'): out.append(f'MK{k}:'); k += 1
        else: out.append(ln)
    src = hdr.replace('.fill 832,', '.fill 1024,') + '\n' + '\n'.join(out) + '\nL_warm1:\nL_warm2:\nL_warm3:\n' + tail
    d = tempfile.mkdtemp()
    open(d + '/a.s', 'w').write(src)
    subprocess.run(['clang', '-x', 'assembler', '-target', 'amdgcn-amd-amdhsa', '-mcpu=gfx950', '-c', d + '/a.s', '-o', d + '/a.o'], check=True)
    t = subprocess.run(['llvm-objdump', '-t', d + '/a.o'], capture_output=True, text=True).stdout
    sy = {m.group(2): int(m.group(1), 16) for m in re.finditer(r'^([0-9a-f]{16}) .*\.text\s+[0-9a-f]+ (?:\.protected |\.hidden )?(\S+)$', t, re.M)}
    base = sy['standalone__moe_arch_mod__prompt_kernel']
    return {n: v - base for n, v in sy.items()}
offs = offsets(L)
marks = [(i, ln) for i, ln in enumerate(L) if ln.startswith(';;WARM')]
mo = [offs[f'MK{k}'] for k in range(len(marks))]
chosen = []
segs = [(0, offs['L_end'])]
shift = 0
for (a, b) in segs:
    pass
    covered = ((a + shift) // 64) * 64 + 1088
    while covered < b + shift + 8:
        cand = [k for k in range(len(marks)) if a <= mo[k] < b and mo[k] + shift + 4 < covered + 64 and (not chosen or k > chosen[-1])]
        assert cand, (covered, mo, segs)
        k = cand[-1]
        sp4 = marks[k][1].startswith(';;WARMSPOT')
        pos = mo[k] + shift + (4 if sp4 else 0)
        chosen.append(k); shift += 8 if sp4 else 4
        nc = (pos // 64) * 64 + 1088
        assert nc > covered, (nc, covered, mo)
        covered = nc
assert offs['L_seg1_end'] + 20 < 4096
names = {k: n + 1 for n, k in enumerate(chosen)}
nst = len(chosen)
outl = []; k = 0
for ln in L:
    if ln.startswith(';;WARM'):
        if k in names:
            n = names[k]
            tgt = f'L_warm{n+3}' if n + 3 <= nst else 'L_p'
            if ln.startswith(';;WARMSPOT'): outl.append(f'    s_branch L_skip{n}')
            outl.append(f'L_warm{n}:'); outl.append(f'    s_branch {tgt}')
            if ln.startswith(';;WARMSPOT'): outl.append(f'L_skip{n}:')
        k += 1
    elif ln == 'L_p:':
        for n in range(nst + 1, 4): outl.append(f'L_warm{n}:')
        outl.append(ln)
    else: outl.append(ln)
sys.stderr.write(f'chosen {[mo[k] for k in chosen]} ' + ' '.join(f'{n}={v}' for n, v in sorted(offs.items(), key=lambda x: x[1]) if n in ('L_w','L_w_poll','L_p','L_end','L_seg1_end','L_r2','L_spare','L_s_end','L_r_end')) + '\n')
print(hdr); print('\n'.join(outl)); print(tail)
```

```python
import sys, subprocess, re, tempfile
def opt(name, d):
    a = sys.argv
    return type(d)(a[a.index(name)+1]) if name in a else d
def mod(name, d):
    v = opt(name, d); return '' if v == '-' else ' ' + v.replace('+', ' ')
STAMP = '--stamp' in sys.argv
MINI = '--mini' in sys.argv
WING = opt('--wing', 8); WIND = opt('--wind', 10); WIN0 = opt('--win0', 6)
NT = mod('--nt', 'nt'); XNT = mod('--xnt', '-'); ONT = mod('--ont', 'sc1')
CP = opt('--cp', 'D')
DIAG = opt('--diag', -1)
HOLD = opt('--hold', 1); WLAST = opt('--wlast', 0); LIGHT = opt('--light', 0)
WLDS = opt('--wlds', 1); TLB = opt('--tlb', 0); ACK = opt('--ack', 0)
K1SH = opt('--k1sh', 7)
SKEW = opt('--skew', -1)
X0 = opt('--x0', 1); APOLL = opt('--apoll', 1); ASL = opt('--asl', 0); SPEC = opt('--spec', 0)
B0 = opt('--b0', 0)
NOP = opt('--nop', 0); NOPT = opt('--nopt', 0); WST = opt('--wst', 0)
RST = opt('--rst', 0); LATE = opt('--late', 1); SPX = opt('--spx', 0)
NRD = opt('--nrd', 4); NBC = opt('--nbc', 64)
SPL = opt('--spl', 1)
ND1 = opt('--nd1', 8)
NOCOPY = opt('--nocopy', 0); EXM = mod('--exm', '-'); FOM = mod('--fom', '-')
EPM = mod('--epm', '-')
NOEP = opt('--noep', 0); NOFIN = opt('--nofin', 0); EARLYST = opt('--est', 0)
KD = opt('--kdiag', 0)
if KD: SKEW = 0
ROLL = opt('--roll', 1)
WEP = opt('--wep', 0); GMAP = opt('--gmap', 1); WSL = opt('--wsl', 0)
RPT = opt('--rpt', 1); WE0 = opt('--we0', 0)
PCNT = opt('--pcnt', 0)
K2X = opt('--k2x', 128); K2R = opt('--k2r', 8192)
TRIM = opt('--trim', 1)
GATE = opt('--gate', 0); ND0 = opt('--nd0', 0)
L1ST = opt('--l1st', 0)
A27 = opt('--a27', 1); APT = opt('--apt', 1)
SP27 = opt('--sp27', 0)
BF = opt('--bf', 1); TB = opt('--tb', 6)
SPIN = 100000
LOCN = opt('--locn', 60)

NDEST = 8 * (NRD + SPEC)
L = []
def e(s): L.append('    ' + s)
def lab(s): L.append(s + ':')
def c(s): L.append('    ; ' + s)
X, WR, WG, WU, WD, OUT, DBG, WS = 4, 6, 8, 10, 12, 14, 16, 18
def sp(n): return f's[{n}:{n+1}]'
S_WAVE, S_XCD, S_SLOT = 20, 21, 22
S_T0, S_T1, S_T2, S_T3 = 23, 24, 25, 26
S_SELLO, S_SELHI = 27, 28
S_CNT, S_TAG, S_T, S_K = 29, 30, 31, 32
S_XCC = 33
S_A, S_B = 34, 36
S_TB = 38; S_PS = 42
S_M = 46
S_XS = 48
S_ST = 80
K1L, K1G, WIN_G, ACCU, BC, K2, EXL, EXG = 0x20000, 0x30000, 0x3000, 0x4000, 0x8000, 0x40000, 0x100000, 0x180000
LDS_X, LDS_WIN, LDS_P = 0, 128, 256
LDS_W = 2048
LDS_BYTES = 3328

def stamp(i):
    if STAMP: e(f's_memrealtime s[{S_ST+2*i}:{S_ST+2*i+1}]')
def endpgm():
    e('s_branch L_flush' if STAMP else 's_endpgm')
def dpp(op, d, a, b, m, rm='0xf'):
    e(f'{op}_dpp v{d}, v{a}, v{b} {m} row_mask:{rm} bank_mask:0xf')
def mdpp(d, a, m, rm='0xf'):
    e(f'v_mov_b32_dpp v{d}, v{a} {m} row_mask:{rm} bank_mask:0xf')
def perms(raw, T, p):
    for j in range(8):
        sel = S_SELHI if (j & 1) else S_SELLO
        e(f'v_perm_b32 v{T+4*j+p}, v{raw+4*(2*p+1)+j//2}, v{raw+4*(2*p)+j//2}, s{sel}')
def bf16r(d, s):
    e(f'v_cvt_pk_bf16_f32 v{d}, v{s}, v{s}'); e(f'v_lshlrev_b32 v{d}, 16, v{d}')
def slot9():
    e(f's_mul_i32 s{S_T0}, s{S_SLOT}, 57')
    e(f's_lshr_b32 s{S_T0}, s{S_T0}, 9')
    e(f's_mul_i32 s{S_K}, s{S_T0}, 9')
    e(f's_sub_u32 s{S_K}, s{S_SLOT}, s{S_K}')
    e(f's_mul_i32 s{S_T}, s{S_XCD}, 3')
    e(f's_add_u32 s{S_T}, s{S_T}, s{S_T0}')
    e(f's_mul_i32 s{S_T}, s{S_T}, 3')
b1n = [0]
def bar1():
    if not HOLD: return
    if X0:
        b1n[0] += 1
        e(f's_cmp_eq_u32 s{S_XCD}, 0'); e(f's_cbranch_scc1 L_nob{b1n[0]}')
        e('s_barrier')
        lab(f'L_nob{b1n[0]}')
    else: e('s_barrier')
def getxcc(): e(f's_getreg_b32 s{S_XCC}, hwreg(HW_REG_XCC_ID, 0, 3)')

if MINI and EARLYST: e('s_memrealtime s[80:81]')
e('s_load_dwordx16 s[4:19], s[0:1], 0')
e('s_cmp_ge_u32 s2, 256')
e('s_cbranch_scc1 L_exit0')
stamp(0)
if MINI and not EARLYST: e('s_memrealtime s[80:81]')
if DIAG >= 0 or SKEW >= 0 or GATE: e('s_memrealtime s[76:77]')
e(f'v_readfirstlane_b32 s{S_WAVE}, v0')
e('v_and_b32 v0, 63, v0')
e(f's_and_b32 s{S_XCD}, s2, 7')
e(f's_lshr_b32 s{S_SLOT}, s2, 3')
e(f's_lshr_b32 s{S_WAVE}, s{S_WAVE}, 6')
if STAMP:
    for i in range(1, 8): e(f's_mov_b64 s[{S_ST+2*i}:{S_ST+2*i+1}], 0')
e(f's_cmp_lt_u32 s{S_WAVE}, 4'); e('s_cbranch_scc1 L_notp')
if B0: e('s_barrier')
e(f's_cmp_eq_u32 s{S_WAVE}, 4'); e('s_cbranch_scc1 L_warm1')
e(f's_cmp_eq_u32 s{S_WAVE}, 5'); e('s_cbranch_scc1 L_warm2')
e(f's_cmp_eq_u32 s{S_WAVE}, 6'); e('s_cbranch_scc1 L_warm3')
e('s_branch L_warm_r')
lab('L_spare0')
if X0:
    e(f's_cmp_eq_u32 s{S_WAVE}, 1'); e('s_cbranch_scc1 L_rx')
e(f's_cmp_lg_u32 s{S_WAVE}, 0'); e('s_cbranch_scc1 L_warm_s')
e(f's_lshl_b32 s{S_T1}, s{S_XCD}, {6+K1SH}')
e(f's_add_u32 s{S_T1}, s{S_T1}, {K1L}')
if X0:
    e(f's_cmp_eq_u32 s{S_XCD}, 0')
    e(f's_cselect_b32 s{S_T2}, 27, 0'); e(f's_cselect_b32 s{S_T3}, 31, 35')
    e(f'v_max_u32 v40, s{S_T2}, v0'); e(f'v_min_u32 v40, s{S_T3}, v40')
else: e('v_min_u32 v40, 31, v0')
e(f'v_lshl_add_u32 v40, v40, {K1SH}, s{S_T1}')
e('s_waitcnt lgkmcnt(0)')
e(f's_load_dword s{S_TAG}, {sp(WS)}, 0')
if not RPT or APT:
    e(f's_cmp_lg_u32 s{S_SLOT}, 27'); e('s_cbranch_scc1 L_spare')
    c('the first spare of each group brings the key lines into this L2')
    e(f'global_load_dwordx2 v[8:9], v40, {sp(WS)} sc1')
e('s_branch L_spare')
lab('L_exit0')
e('s_endpgm')
lab('L_notp')
e(f's_cmp_lg_u32 s{S_WAVE}, 3'); e('s_cbranch_scc1 L_w')

XR, WW, ACC = 8, 44, 80
c('router wave: rows 8*wg + (l>>3), bytes 128c + 16*(l&7)')
e(f's_lshl_b32 s{S_T1}, s2, 3')
if X0:
    e(f's_cmp_lg_u32 s{S_XCD}, 0'); e('s_cbranch_scc1 L_r1')
    e(f's_cmp_ge_u32 s{S_SLOT}, 27'); e('s_cbranch_scc1 L_r1')
    e('s_endpgm')
    lab('L_rx')
    c('extra router wave: takes the rows of workgroup 8e, e = min(7*(31-slot) + xcd-1, 26)')
    e(f's_cmp_eq_u32 s{S_SLOT}, 27'); e('s_cbranch_scc1 L_exit0')
    e(f's_cmp_eq_u32 s{S_XCD}, 0'); e('s_cbranch_scc1 L_exit0')
    e(f's_mul_i32 s{S_T1}, s{S_SLOT}, -7')
    e(f's_add_u32 s{S_T1}, s{S_T1}, s{S_XCD}')
    e(f's_addk_i32 s{S_T1}, {7*31-1}')
    e(f's_min_u32 s{S_T1}, s{S_T1}, 26')
    e(f's_lshl_b32 s{S_T1}, s{S_T1}, 6')
    e(f's_addk_i32 s{S_SLOT}, 4')
    lab('L_r1')
e('s_setprio 3')
e('v_lshrrev_b32 v1, 3, v0')
e(f'v_add_u32 v1, s{S_T1}, v1')
e('v_and_b32 v2, 7, v0')
e('v_lshlrev_b32 v2, 4, v2')
e(f's_movk_i32 s{S_T2}, 1152')
e(f'v_mad_u32_u24 v4, v1, s{S_T2}, v2')
e(f's_lshl_b32 s{S_T0}, s{S_XCD}, 6')
e(f's_add_u32 s{S_T0}, s{S_T0}, s{S_SLOT}')
e(f's_lshl_b32 s{S_T0}, s{S_T0}, {K1SH}')
e(f's_add_u32 s{S_T0}, s{S_T0}, {K1L}')
e(f'v_mov_b32 v3, s{S_T0}')
if WLDS:
    e('v_lshlrev_b32 v5, 4, v0')
    e(f's_movk_i32 m0, {LDS_W}')
e('s_waitcnt lgkmcnt(0)')
def wl():
    if WLDS:
        e(f'global_load_lds_dwordx4 v5, {sp(WR)}')
        e('s_mov_b64 exec, 0xff')
        e(f'global_load_lds_dwordx4 v5, {sp(WR)} offset:1024')
        e('s_mov_b64 exec, -1')
        return
    for cc in range(9): e(f'global_load_dwordx4 v[{WW+4*cc}:{WW+4*cc+3}], v2, {sp(WR)} offset:{128*cc}')
if not WLAST: wl()
for cc in range(9): e(f'global_load_dwordx4 v[{XR+4*cc}:{XR+4*cc+3}], v4, {sp(X)} offset:{128*cc}{XNT}')
if WLAST: wl()
if RPT: e(f'global_load_dword v{ACC+8}, v3, {sp(WS)} sc1')
e(f's_load_dword s{S_TAG}, {sp(WS)}, 0')
if B0: e('s_barrier')
stamp(1)
e('s_branch L_r2')

lab('L_w')
e(f's_cmp_ge_u32 s{S_SLOT}, 27'); e('s_cbranch_scc1 L_spare0')
RAW, TX, DA, AF = 16, 112, 144, 176
slot9()
e(f's_add_u32 s{S_T}, s{S_T}, s{S_WAVE}')
c('G: row = 64k + 32u + ' + ('8*(e>>1) + 2*(l>>4) + (e&1)' if GMAP else '8*(l>>4) + e') + ' ; col bytes = 128c + 16*(l&7) ; matrix = (l>>3)&1')
e('v_lshrrev_b32 v8, 4, v0')
e(f's_lshl_b32 s{S_T0}, s{S_K}, {5 if GMAP else 3}')
e(f'v_add_u32 v1, s{S_T0}, v8')
e(f's_mov_b32 s{S_T1}, {2*9216 if GMAP else 8*9216}')
e(f'v_mul_lo_u32 v1, v1, s{S_T1}')
e('v_and_b32 v9, 7, v0')
e('v_lshlrev_b32 v9, 4, v9')
e(f's_lshl_b32 s{S_T2}, s{S_T}, 7')
e(f'v_add3_u32 v1, v1, v9, s{S_T2}')
e('v_and_b32 v10, 8, v0')
e('v_cmp_ne_u32 vcc, 0, v10')
e(f's_mov_b32 s{S_A}, 9216'); e(f's_mov_b32 s{S_A+1}, 0')
e(f's_mov_b32 s{S_B}, {7*9216 if GMAP else 25*9216}'); e(f's_mov_b32 s{S_B+1}, 0')
e('s_waitcnt lgkmcnt(0)')
e(f'v_mov_b32 v2, s{WG}'); e(f'v_mov_b32 v3, s{WG+1}')
e(f'v_mov_b32 v4, s{WU}'); e(f'v_mov_b32 v5, s{WU+1}')
e('v_cndmask_b32 v2, v2, v4, vcc'); e('v_cndmask_b32 v3, v3, v5, vcc')
e('v_add_co_u32 v2, vcc, v2, v1')
e(f's_load_dword s{S_TAG}, {sp(WS)}, 0')
if not B0: e('s_nop 0')
if B0: e('s_barrier')
e('v_addc_co_u32 v3, vcc, 0, v3, vcc')
DOFF = [-2880, -1728, 1728, 2880]
def wload(n):
    if n < 16:
        e(f'global_load_dwordx4 v[{RAW+4*n}:{RAW+4*n+3}], v[2:3], off{NT}')
        if n < 15: e(f'v_lshl_add_u64 v[2:3], v[2:3], 0, {sp(S_B if (n & 1 if GMAP else n == 7) else S_A)}')
    else:
        r = n - 16
        e(f'global_load_dwordx4 v[{RAW+4*n}:{RAW+4*n+3}], v{6+r//4}, {sp(WD)} offset:{DOFF[r%4]}{NT}')
TG = [TX, RAW]; TD = RAW + 32
def gperm(pair): perms(RAW + 32*(pair//4), TG[pair//4], pair % 4)
if not LATE:
    for n in range(WIN0): wload(n)
c('D: row = 64c + 32*(kg&1) + 16*m + 2*(kg>>1) + {0,1,4,5,8,9,12,13} ; col bytes = 128k + 16q')
e('v_and_b32 v6, 24, v0')
e('v_lshlrev_b32 v6, 1, v6')
e('v_lshrrev_b32 v7, 5, v0')
e('v_lshl_add_u32 v6, v7, 1, v6')
e(f's_lshl_b32 s{S_T0}, s{S_T}, 6')
e(f'v_add_u32 v6, s{S_T0}, v6')
e(f's_movk_i32 s{S_T1}, 1152')
e(f'v_mul_lo_u32 v6, v6, s{S_T1}')
e(f's_lshl_b32 s{S_T3}, s{S_K}, 7')
e(f's_add_u32 s{S_T3}, s{S_T3}, 2880')
e(f'v_add3_u32 v6, v6, v9, s{S_T3}')
e('v_add_u32 v7, 9216, v6')
e(f's_mov_b32 s{S_SELLO}, 0x05040100')
e(f's_mov_b32 s{S_SELHI}, 0x07060302')
c('A-fragment LDS address, exchange addresses, partial LDS address')
e('v_lshlrev_b32 v11, 4, v8')
e(f's_mul_i32 s{S_T0}, s{S_T}, 4608')
e(f's_add_u32 s{S_T0}, s{S_T0}, {EXL+2048}')
e(f'v_lshl_add_u32 v13, v0, 4, s{S_T0}')
e(f's_lshl_b32 s{S_T1}, s{S_K}, 9')
e(f's_add_u32 s{S_T0}, s{S_T0}, s{S_T1}')
e(f's_sub_u32 s{S_T0}, s{S_T0}, 2048')
e('v_and_b32 v12, 4, v0'); e('v_lshlrev_b32 v12, 6, v12')
e('v_lshl_add_u32 v12, v10, 4, v12')
e('v_and_b32 v14, 3, v0'); e('v_lshl_add_u32 v12, v14, 5, v12')
e(f'v_add3_u32 v12, v12, v11, s{S_T0}')
if not TRIM: e(f'v_cmp_eq_u32 {sp(S_M)}, 0, v10')
e(f's_lshl_b32 s{S_T0}, s{S_WAVE}, 9')
e('v_lshlrev_b32 v14, 5, v10')
e('v_lshl_add_u32 v14, v9, 1, v14')
e(f'v_add_u32 v14, s{S_T0}, v14')
getxcc()
if TB == 8:
    for i in range(4): e(f's_mov_b32 s{S_PS+i}, {0x07060500+i:#x}')
if LATE:
    for n in range(WE0): wload(n)
    if WEP or WSL:
        if X0: e(f's_cmp_eq_u32 s{S_XCD}, 0'); e('s_cbranch_scc1 L_w_nodl')
        if WEP: e('s_waitcnt lgkmcnt(0)')
        if WSL: e(f's_sleep {WSL}')
        lab('L_w_nodl')
    for n in range(WE0, WIN0): wload(n)
L.append(';;WARMSPOT')
bar1()
stamp(1)
done_pairs = 0; got = 0
NI = 16 + ND1
for n in range(WIN0, NI):
    w = WING if n < 16 else WIND
    if GATE and n == 16 + ND0: e('s_barrier')
    need = n - w + 1
    if need > got:
        e(f's_waitcnt vmcnt({w-1})'); got = need
    wload(n)
    while done_pairs < 8 and 2*done_pairs + 2 <= got:
        gperm(done_pairs); done_pairs += 1
    if n == WING + 2:
        e('s_waitcnt lgkmcnt(0)')
        e(f's_add_u32 s{S_TAG}, s{S_TAG}, 1')
        e(f's_lshl_b32 s{S_T0}, s{S_XCC}, {3*TB}')
        e(f's_xor_b32 s{S_TAG}, s{S_TAG}, s{S_T0}')
        for i in range(4): e(f's_bfe_u32 s{S_TB+i}, s{S_TAG}, {(TB<<16)|(TB*i)}')
        if TB == 8: e(f'v_mov_b32 v15, s{S_TAG}')
    L.append(';;WARMSPOT')
while done_pairs < (4 if ND1 == 8 else 7):
    e(f's_waitcnt vmcnt({NI - (2*done_pairs+2)})'); gperm(done_pairs); done_pairs += 1
if WST:
    e('s_waitcnt vmcnt(8)'); stamp(1); e('s_waitcnt vmcnt(0)')
stamp(2)
e('s_barrier')
e(f'ds_read_b128 v[{AF}:{AF+3}], v11 offset:{LDS_X}')
e(f'ds_read_b128 v[{AF+4}:{AF+7}], v11 offset:{LDS_X+64}')
for n in range(NI, 24): wload(n)
e('s_waitcnt lgkmcnt(0)' if STAMP else 's_waitcnt lgkmcnt(1)')
stamp(3)
JO = (0, 4, 1, 5, 2, 6, 3, 7)
for j in JO:
    e(f'v_mfma_f32_16x16x32_bf16 v[{DA+4*j}:{DA+4*j+3}], v[{AF}:{AF+3}], v[{TG[0]+4*j}:{TG[0]+4*j+3}], 0')
while done_pairs < 8:
    e(f's_waitcnt vmcnt({24 - (2*done_pairs+2)})'); gperm(done_pairs); done_pairs += 1
e('s_waitcnt lgkmcnt(0)')
for j in JO:
    e(f'v_mfma_f32_16x16x32_bf16 v[{DA+4*j}:{DA+4*j+3}], v[{AF+4}:{AF+7}], v[{TG[1]+4*j}:{TG[1]+4*j+3}], v[{DA+4*j}:{DA+4*j+3}]')
EX = TX
e('s_nop 1')
for j in range(4):
    mdpp(DA+4*j, DA+4*j+16, 'quad_perm:[0,1,2,3]', '0x2')
    e(f'v_perm_b32 v{AF+j}, v{DA+4*j}, v15, s{S_PS+j}' if TB == 8 else f'v_bfi_b32 v{AF+j}, {(1<<TB)-1}, s{S_TB+j}, v{DA+4*j}')
e('s_mov_b32 exec_hi, 0')
e(f'global_store_dwordx4 v12, v[{AF}:{AF+3}], {sp(WS)}{EXM}')
e('s_mov_b32 exec_hi, -1')
stamp(4)
L.append(';;WARMSPOT')
for p in range(3):
    e(f's_waitcnt vmcnt({7-2*p})'); perms(RAW+64, TD, p)
def five_loads():
    for i in range(4):
        e(f'global_load_dwordx4 v[{EX+4*i}:{EX+4*i+3}], v13, {sp(WS)} offset:{1024*i-2048} sc1')
    e('s_mov_b32 exec_hi, 0')
    e(f'global_load_dwordx4 v[{EX+16}:{EX+19}], v13, {sp(WS)} offset:2048 sc1')
    e('s_mov_b32 exec_hi, -1')
five_loads()
if not TRIM: e('s_waitcnt vmcnt(6)'); perms(RAW+64, TD, 3)
elif STAMP: e('s_waitcnt vmcnt(6)')
stamp(5)
e(f's_mov_b32 s{S_CNT}, 0')
if TRIM: e(f's_mov_b32 s{S_A}, 0xbfb8aa3b')
e('s_branch L_w_chk')
L.append(';;WARMFREE')
if ROLL:
    lab('L_w_poll')
    e(f's_add_u32 s{S_CNT}, s{S_CNT}, 1')
    e(f's_cmp_ge_u32 s{S_CNT}, {LOCN}')
    e('s_cbranch_scc1 L_w_far')
    lab('L_w_chk')
    AC, TM, M = EX + 20, EX + 24, EX + 28
    for i in range(5):
        e('s_waitcnt vmcnt(4)')
        if i == 4: e('s_mov_b32 exec_hi, 0')
        dst = AC if i == 0 else TM
        for d in range(4): e(f'v_xor_b32 v{dst+d}, s{S_TB+d}, v{EX+4*i+d}')
        e(f'global_load_dwordx4 v[{EX+4*i}:{EX+4*i+3}], v13, {sp(WS)} offset:{1024*i-2048} sc1')
        if i == 0: e(f'v_or_b32 v{M}, v{dst}, v{dst+1}')
        else: e(f'v_or3_b32 v{M}, v{M}, v{dst}, v{dst+1}')
        e(f'v_or3_b32 v{M}, v{M}, v{dst+2}, v{dst+3}')
        if i > 0:
            e(f'v_pk_add_f32 v[{AC}:{AC+1}], v[{AC}:{AC+1}], v[{TM}:{TM+1}]')
            e(f'v_pk_add_f32 v[{AC+2}:{AC+3}], v[{AC+2}:{AC+3}], v[{TM+2}:{TM+3}]')
    e('s_mov_b32 exec_hi, -1')
    e(f'v_and_b32 v{M}, {(1<<TB)-1}, v{M}')
    e(f'v_cmp_ne_u32 vcc, 0, v{M}')
    e('s_cbranch_vccnz L_w_poll')
    EX0 = EX; EX = AC
else:
    lab('L_w_poll')
    e(f's_add_u32 s{S_CNT}, s{S_CNT}, 1')
    e(f's_cmp_ge_u32 s{S_CNT}, {LOCN}')
    e('s_cbranch_scc1 L_w_far')
    lab('L_w_same')
    five_loads()
    lab('L_w_chk')
    M = EX + 20
    for i in range(5):
        e(f's_waitcnt vmcnt({4-i})')
        if i == 4: e('s_mov_b32 exec_hi, 0')
        for d in range(4): e(f'v_xor_b32 v{EX+4*i+d}, s{S_TB+d}, v{EX+4*i+d}')
        if i == 0: e(f'v_or_b32 v{M}, v{EX}, v{EX+1}')
        else: e(f'v_or3_b32 v{M}, v{M}, v{EX+4*i}, v{EX+4*i+1}')
        e(f'v_or3_b32 v{M}, v{M}, v{EX+4*i+2}, v{EX+4*i+3}')
        if i > 0:
            e(f'v_pk_add_f32 v[{EX}:{EX+1}], v[{EX}:{EX+1}], v[{EX+4*i}:{EX+4*i+1}]')
            e(f'v_pk_add_f32 v[{EX+2}:{EX+3}], v[{EX+2}:{EX+3}], v[{EX+4*i+2}:{EX+4*i+3}]')
    e('s_mov_b32 exec_hi, -1')
    e(f'v_and_b32 v{M}, {(1<<TB)-1}, v{M}')
    e(f'v_cmp_ne_u32 vcc, 0, v{M}')
    e('s_cbranch_vccnz L_w_poll')
    EX0 = EX
lab('L_w_go')
stamp(6)
a0, a1, t0, t1 = EX, EX+1, EX+4, EX+5
if TRIM:
    def pj(j):
        sel = S_SELHI if (j & 1) else S_SELLO
        e(f'v_perm_b32 v{TD+4*j+3}, v{RAW+64+28+j//2}, v{RAW+64+24+j//2}, s{sel}')
    e(f'v_permlane32_swap_b32 v{EX}, v{EX+2}')
    e(f'v_permlane32_swap_b32 v{EX+1}, v{EX+3}')
    e(f'v_pk_add_f32 v[{EX}:{EX+1}], v[{EX}:{EX+1}], v[{EX+2}:{EX+3}]')
    e(f'v_cvt_pk_bf16_f32 v{EX+2}, v{a0}, v{a1}')
    e(f'v_lshlrev_b32 v{a0}, 16, v{EX+2}')
    e(f'v_and_b32 v{a1}, 0xffff0000, v{EX+2}')
    e(f'v_pk_mul_f32 v[{t0}:{t1}], v[{a0}:{a1}], {sp(S_A)} op_sel_hi:[1,0]')
    e(f'v_exp_f32 v{t0}, v{t0}')
    e(f'v_exp_f32 v{t1}, v{t1}')
    pj(0)
    e(f'v_pk_add_f32 v[{t0}:{t1}], v[{t0}:{t1}], 1.0 op_sel_hi:[1,0]')
    e(f'v_rcp_f32 v{t0}, v{t0}')
    e(f'v_rcp_f32 v{t1}, v{t1}')
    pj(1)
    e(f'v_pk_mul_f32 v[{t0}:{t1}], v[{a0}:{a1}], v[{t0}:{t1}]')
    e(f'v_cvt_pk_bf16_f32 v{t1}, v{t0}, v{t1}')
    e(f'v_lshlrev_b32 v{t0}, 16, v{t1}')
    e(f'v_and_b32 v{t1}, 0xffff0000, v{t1}')
    c('gate lanes (0..7 of each row) take u from the lane 8 further on; only they feed the MFMA rows that are read')
    pj(2)
    dpp('v_mul_f32', t0, a0, t0, 'row_ror:8')
    dpp('v_mul_f32', t1, a1, t1, 'row_ror:8')
    e(f'v_cvt_pk_bf16_f32 v{a0}, v{t0}, v{t1}')
    pj(3); pj(4)
    for p in range(4): mdpp(AF+4+p, a0, f'quad_perm:[{p},{p},{p},{p}]')
    pj(5); pj(6)
else:
    e(f'v_permlane32_swap_b32 v{EX}, v{EX+2}')
    e(f'v_permlane32_swap_b32 v{EX+1}, v{EX+3}')
    e(f'v_pk_add_f32 v[{EX}:{EX+1}], v[{EX}:{EX+1}], v[{EX+2}:{EX+3}]')
    e(f'v_cvt_pk_bf16_f32 v{EX+2}, v{a0}, v{a1}')
    e(f'v_lshlrev_b32 v{a0}, 16, v{EX+2}')
    e(f'v_and_b32 v{a1}, 0xffff0000, v{EX+2}')
    e(f'v_mul_f32 v{t0}, 0xbfb8aa3b, v{a0}')
    e(f'v_mul_f32 v{t1}, 0xbfb8aa3b, v{a1}')
    e(f'v_exp_f32 v{t0}, v{t0}')
    e(f'v_exp_f32 v{t1}, v{t1}')
    e('s_nop 0')
    e(f'v_pk_add_f32 v[{t0}:{t1}], v[{t0}:{t1}], 1.0 op_sel_hi:[1,0]')
    e(f'v_rcp_f32 v{t0}, v{t0}')
    e(f'v_rcp_f32 v{t1}, v{t1}')
    e('s_nop 0')
    e(f'v_pk_mul_f32 v[{t0}:{t1}], v[{a0}:{a1}], v[{t0}:{t1}]')
    e(f'v_cvt_pk_bf16_f32 v{t0}, v{t0}, v{t1}')
    e(f'v_cndmask_b32 v{t0}, v{EX+2}, v{t0}, {sp(S_M)}')
    e(f'v_lshlrev_b32 v{a0}, 16, v{t0}')
    e(f'v_and_b32 v{a1}, 0xffff0000, v{t0}')
    e('s_nop 0')
    dpp('v_mul_f32', a0, a0, a0, 'row_ror:8')
    dpp('v_mul_f32', a1, a1, a1, 'row_ror:8')
    e(f'v_cvt_pk_bf16_f32 v{a0}, v{a0}, v{a1}')
    e('s_nop 1')
    for p in range(4): mdpp(AF+4+p, a0, f'quad_perm:[{p},{p},{p},{p}]')
    e('s_nop 1')
for j in range(8):
    e(f'v_mfma_f32_16x16x32_bf16 v[{DA+4*j}:{DA+4*j+3}], v[{AF+4}:{AF+7}], v[{TD+4*j}:{TD+4*j+3}], 0')
    if TRIM and j == 0: pj(7)
e('s_mov_b32 exec_lo, 0xff0000ff')
e('s_mov_b32 exec_hi, 0')
for jj in range(4):
    if jj > 0: e('s_nop 0')
    e(f'ds_write2_b32 v14, v{DA+8*jj}, v{DA+8*jj+4} offset0:{LDS_P//4+2*jj} offset1:{LDS_P//4+2*jj+1}')
e('s_waitcnt lgkmcnt(0)')
e('s_barrier')
stamp(7)
if BF: e('s_barrier')
endpgm()
L.append(';;WARMFREE')

lab('L_p')
e(f's_cmp_ge_u32 s{S_SLOT}, 27'); e('s_cbranch_scc1 L_exit0')
getxcc()
slot9()
e('s_waitcnt lgkmcnt(0)')
e(f's_cmp_lg_u32 s{S_WAVE}, 6'); e('s_cbranch_scc1 L_p1')
c("bring this workgroup's three exchange slots (12 lines) into the L2")
e(f's_mul_i32 s{S_T0}, s{S_T}, 4608')
e(f's_lshl_b32 s{S_T1}, s{S_K}, 9')
e(f's_add_u32 s{S_T0}, s{S_T0}, s{S_T1}')
e(f's_add_u32 s{S_T0}, s{S_T0}, {EXL}')
e('v_lshrrev_b32 v1, 2, v0')
e(f's_movk_i32 s{S_T1}, 4608')
e(f'v_mul_u32_u24 v1, s{S_T1}, v1')
e('v_and_b32 v2, 3, v0')
e('v_lshlrev_b32 v2, 7, v2')
e(f'v_add3_u32 v1, v1, v2, s{S_T0}')
if TLB:
    e(f's_mul_i32 s{S_T1}, s{S_T}, {64*1152}')
    e(f's_lshl_b32 s{S_T2}, s{S_K}, 7')
    e(f's_add_u32 s{S_T1}, s{S_T1}, s{S_T2}')
    e(f's_movk_i32 s{S_T2}, {16*1152}')
    e(f'v_mul_u32_u24 v4, s{S_T2}, v0')
    e(f'v_add_u32 v4, s{S_T1}, v4')
e('s_mov_b64 exec, 0xfff')
if TLB == 1: e(f'global_load_dword v5, v4, {sp(WD)}')
bar1()
if TLB == 2: e(f'global_load_dword v5, v4, {sp(WD)}')
if not NOPT: e(f'global_load_dword v3, v1, {sp(WS)} sc1')
if GATE:
    e(f's_add_u32 s76, s76, {GATE}')
    if X0: e(f's_cmp_eq_u32 s{S_XCD}, 0'); e('s_cselect_b32 s74, 30, 0'); e('s_sub_u32 s76, s76, s74')
    lab('L_gate'); e('s_memrealtime s[72:73]'); e('s_waitcnt lgkmcnt(0)'); e('s_sub_u32 s75, s76, s72'); e('s_cmp_gt_i32 s75, 0'); e('s_cbranch_scc1 L_gate')
    e('s_barrier')
e('s_endpgm')
L.append(';;WARMFREE')
lab('L_p1')
e(f's_load_dword s{S_TAG}, {sp(WS)}, 0')
bar1()
e(f's_lshl_b32 s{S_T3}, s{S_XCC}, 12')
e(f's_add_u32 s{S_T3}, s{S_T3}, {BC}')
e(f's_add_u32 s{S_T2}, s{S_T3}, {64*NBC}')
e(f's_and_b32 s{S_T1}, s{S_WAVE}, 1')
e(f's_lshl_b32 s{S_T1}, s{S_T1}, 6')
e(f'v_lshl_add_u32 v4, v0, 2, s{S_T1}')
e(f's_lshl_b32 s{S_K}, s{S_K}, 7')
e(f's_add_u32 s{S_K}, s{S_K}, s{S_T1}')
e('v_and_b32 v10, 60, v0')
e(f'v_add_u32 v11, s{S_T1}, v10')
e('v_and_b32 v12, 1, v0')
e(f'v_cmp_eq_u32 {sp(S_M)}, 1, v12')
e('v_lshlrev_b32 v12, 2, v12')
e('v_lshl_add_u32 v12, v11, 1, v12')
if GMAP:
    e('v_and_b32 v11, 12, v0'); e('v_lshlrev_b32 v11, 2, v11')
    e('v_lshrrev_b32 v13, 4, v0'); e('v_lshl_add_u32 v11, v13, 2, v11')
    e(f'v_add_u32 v11, s{S_T1}, v11')
e('v_lshrrev_b32 v13, 4, v0')
e('v_and_b32 v14, 15, v0')
e('v_lshlrev_b32 v14, 2, v14')
e('v_lshl_add_u32 v13, v13, 7, v14')
e(f's_lshl_b32 s{S_T0}, s{S_K}, 3')
e(f's_add_u32 s{S_T0}, s{S_T0}, {ACCU}')
e(f'v_add_u32 v13, s{S_T0}, v13')
e('v_mov_b32 v7, 0')
e('s_mov_b64 exec, 0xffff')
L.append(';;WARMSPOT')
e('s_waitcnt lgkmcnt(0)')
e(f's_add_u32 s{S_TAG}, s{S_TAG}, 1')
if GATE: e('s_barrier')
stamp(1)
if NOP: e(f's_sleep {NOP}')
if SKEW >= 0:
    e('s_cmp_ge_u32 s2, 8'); e('s_cbranch_scc1 L_p_poll')
    e('s_lshl_b32 s72, s2, 2'); e('s_add_u32 s72, s72, 0x300000'); e('v_mov_b32 v20, s72'); e('v_mov_b32 v21, s76')
    e(f'global_store_dword v20, v21, {sp(WS)} sc1')
lab('L_p_poll')
e(f's_load_dwordx2 {sp(S_A)}, {sp(WS)}, s{S_T3}')
e(f's_add_u32 s{S_T3}, s{S_T3}, 64')
e(f's_cmp_ge_u32 s{S_T3}, s{S_T2}')
e('s_cbranch_scc1 L_p_slow')
e('s_waitcnt lgkmcnt(0)')
e(f's_cmp_lg_u32 s{S_A+1}, s{S_TAG}')
e('s_cbranch_scc1 L_p_poll')
lab('L_p_got')
if PCNT: e(f's_sub_u32 s{S_ST+2}, s{S_T2}, s{S_T3}'); e(f's_mov_b32 s{S_ST+3}, 0')
e(f's_andn2_b32 s{S_T1}, 0x7ff, s{S_A}')
e(f's_mul_i32 s{S_T0}, s{S_T1}, 1152')
e(f's_add_u32 s{S_T0}, s{S_T0}, s{S_K}')
e(f's_load_dwordx16 s[{S_XS}:{S_XS+15}], {sp(X)}, s{S_T0}')
stamp(2)
e(f'v_mov_b32 v6, s{S_T1}')
e(f'ds_write_b32 v7, v6 offset:{LDS_WIN}')
e('s_waitcnt lgkmcnt(0)')
stamp(3)
for d in range(16): e(f'v_writelane_b32 v5, s{S_XS+d}, {4*(d&3)+(d>>2) if GMAP else d}')
e(f'ds_write_b32 v4, v5 offset:{LDS_X}')
e('s_waitcnt lgkmcnt(0)')
e('s_barrier')
L.append(';;WARMSPOT')
e('s_mov_b64 exec, -1')
e(f'ds_read_b32 v5, v11 offset:{LDS_X}')
e(f'v_add_u32 v10, s{S_T0}, v10')
c('r_sel = bf16(sigmoid(r))')
e(f's_ashr_i32 s{S_T2}, s{S_A}, 31')
e(f's_not_b32 s{S_T2}, s{S_T2}')
e(f's_or_b32 s{S_T2}, s{S_T2}, 0x80000000')
e(f's_xor_b32 s{S_T1}, s{S_A}, s{S_T2}')
e(f's_and_b32 s{S_T1}, s{S_T1}, 0xffff0000')
e(f'v_mov_b32 v8, s{S_T1}')
e('v_mul_f32 v8, 0xbfb8aa3b, v8')
e('v_exp_f32 v8, v8')
e(f's_mov_b32 s{S_B}, 0x11111111'); e(f's_mov_b32 s{S_B+1}, 0x11111111')
e('v_add_f32 v8, 1.0, v8')
e('v_rcp_f32 v8, v8')
e(f's_lshl_b64 {sp(S_A)}, {sp(S_B)}, 2')
bf16r(8, 8)
e('s_waitcnt lgkmcnt(0)')
e('v_lshlrev_b32 v6, 16, v5')
e('v_and_b32 v5, 0xffff0000, v5')
e(f'v_cndmask_b32 v5, v6, v5, {sp(S_M)}')
e('v_fma_f32 v5, v5, 0, v5')
e('v_mov_b32 v9, 0x41b80000')
e(f'v_mov_b32 v15, s{S_TAG}')
e('s_mov_b32 exec_lo, 0x77777777'); e('s_mov_b32 exec_hi, 0x77777777')
stamp(4)
e('s_barrier')
for i in range(3):
    e(f'ds_read2st64_b32 v[{16+2*i}:{17+2*i}], v12 offset0:{LDS_P//256+2*i} offset1:{LDS_P//256+2*i+1}')
e('s_waitcnt lgkmcnt(1)' if not STAMP else 's_waitcnt lgkmcnt(0)')
e('v_pk_add_f32 v[16:17], v[16:17], v[18:19]')
e('s_waitcnt lgkmcnt(0)')
e('v_pk_add_f32 v[16:17], v[16:17], v[20:21]')
e('v_add_f32 v16, v16, v17')
e(f'v_cndmask_b32 v16, v16, 1.0, {sp(S_A)}')
e(f'global_atomic_add_f32 v17, v13, v16, {sp(WS)} sc0 sc1')
if BF: e('s_barrier')
stamp(5)
e('s_waitcnt vmcnt(0)')
stamp(6)
mdpp(18, 17, 'quad_perm:[2,2,2,2]')
e('v_add_f32 v16, v16, v17')
e('v_cmp_eq_f32 vcc, v9, v18')
bf16r(16, 16)
e(f's_and_b64 vcc, vcc, {sp(S_B)}')
e('s_cbranch_scc0 L_end')
e('v_mul_f32 v16, v16, v8')
bf16r(16, 16)
e('v_add_f32 v16, v5, v16')
e('s_nop 1')
mdpp(17, 16, 'quad_perm:[1,1,1,1]')
e('v_cvt_pk_bf16_f32 v16, v16, v17')
e('s_mov_b64 exec, vcc')
if not NOFIN: e(f'global_store_dword v10, v16, {sp(OUT)}{FOM}')
if ACK: e('s_waitcnt vmcnt(0)')
stamp(7)
c('the last adder of the first granule moves the epoch on')
e(f's_cmp_lg_u32 s{S_K}, 0'); e('s_cbranch_scc1 L_end')
e('s_and_b64 exec, vcc, 1'); e('s_cbranch_scc0 L_end')
if not NOEP: e(f'global_store_dword v7, v15, {sp(WS)}{EPM}')
if KD: e('s_memrealtime s[78:79]'); e('s_branch L_kd')
lab('L_end')
if MINI:
    e('s_memrealtime s[82:83]'); e('s_mov_b64 exec, 1')
    e(f's_lshl_b32 s{S_T0}, s2, 4'); e(f's_add_u32 s{S_T0}, s{S_T0}, s{S_WAVE}')
    e(f's_lshl_b32 s{S_T0}, s{S_T0}, 6'); e(f's_add_u32 s{S_T0}, s{S_T0}, 0x8000000')
    e(f'v_mov_b32 v2, s{S_T0}'); e('s_waitcnt lgkmcnt(0)')
    for k in range(4): e(f'v_mov_b32 v{20+k}, s{80+k}')
    e(f'global_store_dwordx4 v2, v[20:23], {sp(WS)}')
if SKEW >= 0:
    if KD: e('s_endpgm'); lab('L_kd')
    else: e('s_cmp_lg_u32 s2, 9'); e('s_cbranch_scc1 L_exit0')
    e('s_mov_b32 s72, 0x300000'); e(f's_load_dwordx8 s[64:71], {sp(WS)}, s72'); e('s_waitcnt lgkmcnt(0)')
    e('s_mov_b32 s74, s64')
    for i in range(1, 8): e(f's_min_u32 s74, s74, s{64+i}')
    if KD: e('s_sub_u32 s74, s78, s74'); e('s_min_u32 s74, s74, 2000'); e('s_mul_i32 s74, s74, 10')
    else: e(f's_sub_u32 s74, s{64+SKEW}, s74'); e('s_min_u32 s74, s74, 500'); e('s_mul_i32 s74, s74, 20')
    e('s_memrealtime s[72:73]'); e('s_waitcnt lgkmcnt(0)'); e('s_add_u32 s74, s74, s72')
    lab('L_dspin')
    e('s_memrealtime s[72:73]'); e('s_waitcnt lgkmcnt(0)')
    e('s_sub_u32 s75, s74, s72'); e('s_cmp_gt_i32 s75, 0'); e('s_cbranch_scc1 L_dspin')
if DIAG >= 0:
    e(f's_cmp_lg_u32 s2, {DIAG}'); e('s_cbranch_scc1 L_exit0')
    e('s_memrealtime s[72:73]'); e('s_waitcnt lgkmcnt(0)')
    e('s_sub_u32 s74, s72, s76'); e('s_min_u32 s74, s74, 5000'); e('s_mul_i32 s74, s74, 10'); e('s_add_u32 s74, s74, s72')
    lab('L_dspin')
    e('s_memrealtime s[72:73]'); e('s_waitcnt lgkmcnt(0)')
    e('s_sub_u32 s75, s74, s72'); e('s_cmp_gt_i32 s75, 0'); e('s_cbranch_scc1 L_dspin')
endpgm()
lab('L_seg1_end')
e('.p2align 12')

lab('L_warm_s')
e('s_endpgm')
lab('L_spare')
getxcc()
e(f's_sub_u32 s{S_T}, s2, 224')
e(f's_lshl_b32 s{S_T3}, s{S_XCC}, 12')
e(f's_add_u32 s{S_T3}, s{S_T3}, {BC}')
e(f'v_lshl_add_u32 v3, v0, 6, s{S_T3}')
e(f's_cmp_lg_u32 s{S_SLOT}, 27'); e('s_cbranch_scc1 L_s_noclr')
c('clear 9 accumulator lines, bring the broadcast lines into this L2')
e(f's_mul_i32 s{S_T0}, s{S_XCD}, {9*128}')
e(f's_addk_i32 s{S_T0}, {ACCU}')
e(f'v_lshl_add_u32 v1, v0, 4, s{S_T0}')
e('v_mov_b64 v[12:13], 0'); e('v_mov_b64 v[14:15], 0')
e(f'global_store_dwordx4 v1, v[12:15], {sp(WS)} sc1')
e(f'global_store_dwordx4 v1, v[12:15], {sp(WS)} offset:128 sc1')
if NBC < 64: e('s_mov_b32 exec_hi, 0')
e(f'global_load_dwordx2 v[8:9], v3, {sp(WS)} sc1')
if NBC < 64: e('s_mov_b32 exec_hi, -1')
lab('L_s_noclr')
e(f's_mul_i32 s{S_T0}, s{S_XCD}, {K2X}')
if SP27:
    e(f's_cmp_eq_u32 s{S_SLOT}, 27'); e(f's_cselect_b32 s{S_T1}, 32, s{S_SLOT}'); e(f's_mul_i32 s{S_T1}, s{S_T1}, {K2R}')
else: e(f's_mul_i32 s{S_T1}, s{S_SLOT}, {K2R}')
e(f's_add_u32 s{S_T0}, s{S_T0}, s{S_T1}')
e(f's_add_u32 s{S_T0}, s{S_T0}, {(K2 - 28*K2R) & 0xffffffff}')
e('v_and_b32 v41, 7, v0')
e(f'v_mul_u32_u24 v42, {K2X}, v41')
e(f'v_lshl_add_u32 v41, v41, {3 if APOLL else 7}, s{S_T0}')
if not APOLL:
    e(f's_cmp_ge_u32 s{S_T}, {NDEST}'); e('s_cbranch_scc1 L_s_nopt')
    e(f'global_load_dwordx2 v[8:9], v41, {sp(WS)} sc1')
    lab('L_s_nopt')
e(f's_lshl_b32 s{S_T0}, s{S_XCD}, {3 if APOLL else 7}')
e(f's_add_u32 s{S_T0}, s{S_T0}, {K2}')
e('v_lshrrev_b32 v2, 3, v0'); e(f'v_mul_u32_u24 v2, {K2R}, v2'); e(f'v_add3_u32 v42, v42, v2, s{S_T0}')
e(f's_movk_i32 s{S_T1}, 1152')
e(f's_movk_i32 s{S_T2}, 0x7ff')
e('v_mov_b32 v13, 0')
e('s_waitcnt lgkmcnt(0)')
e(f's_add_u32 s{S_TAG}, s{S_TAG}, 1')
e(f'v_mov_b32 v7, s{S_TAG}')
stamp(1)
e('s_barrier')
e(f's_cmp_lt_u32 s{S_T}, {NDEST}'); e('s_cbranch_scc1 L_s_l2')
e(f's_cmp_lg_u32 s{S_SLOT}, 27'); e('s_cbranch_scc1 L_s_wait')
e(f's_mov_b32 s{S_CNT}, 0')
if L1ST: stamp(6)
lab('L_s_poll1')
if L1ST:
    e(f's_mov_b64 s[{S_ST+6}:{S_ST+7}], s[{S_ST+4}:{S_ST+5}]'); stamp(2); e('s_waitcnt lgkmcnt(0)')
    e('s_mov_b64 s[70:71], vcc')
e(f'global_load_dwordx2 v[8:9], v40, {sp(WS)} sc1')
e(f's_add_u32 s{S_CNT}, s{S_CNT}, 1')
e(f's_cmp_lg_u32 s{S_CNT}, {LOCN}')
e('s_cbranch_scc1 L_s_same1')
if A27:
    c("the key of this very workgroup is always in the local copy")
    e('v_bfe_u32 v2, v40, %d, 6' % K1SH); e('v_cmp_ne_u32 vcc, 27, v2'); e('s_mov_b64 exec, vcc')
e(f'v_add_u32 v40, {K1G-K1L}, v40')
if A27: e('s_mov_b64 exec, -1')
lab('L_s_same1')
e(f's_cmp_gt_u32 s{S_CNT}, {SPIN}')
e('s_cbranch_scc1 L_s_got1')
e('s_waitcnt vmcnt(0)')
e(f'v_cmp_ne_u32 vcc, s{S_TAG}, v9')
e('s_cbranch_vccnz L_s_poll1')
lab('L_s_got1')
stamp(7)
if L1ST: e(f's_mov_b64 s[{S_ST+2}:{S_ST+3}], s[70:71]')
for m in ('row_shr:1', 'row_shr:2', 'row_shr:4', 'row_shr:8'):
    dpp('v_max_u32', 8, 8, 8, m); e('s_nop 1')
dpp('v_max_u32', 8, 8, 8, 'row_bcast:15', '0xa')
if X0:
    e('s_nop 1'); dpp('v_max_u32', 8, 8, 8, 'row_bcast:31', '0xc')
e(f's_mov_b64 exec, {(1<<NDEST)-1:#x}' if NDEST < 32 else f's_mov_b32 exec_hi, {0xff if SP27 else 0}')
e(f'v_readlane_b32 s{S_T0}, v8, {63 if X0 else 31}')
e('s_nop 1')
e(f'v_mov_b32 v6, s{S_T0}')
e(f'global_store_dwordx2 v42, v[6:7], {sp(WS)} sc1')
if STAMP:
    stamp(5); e('s_waitcnt vmcnt(0)'); stamp(4)
if SP27:
    e('s_mov_b64 exec, -1'); e('s_branch L_s_l2')
lab('L_s_wait')
c('not a reader: take the winner from the local broadcast or the device-wide copy')
e('s_mov_b64 exec, 3')
e(f's_movk_i32 s{S_T0}, {WIN_G}'); e(f'v_writelane_b32 v3, s{S_T0}, 1')
e(f's_mov_b32 s{S_CNT}, {SPIN}')
lab('L_s_wpoll')
e(f'global_load_dwordx2 v[8:9], v3, {sp(WS)} sc1')
e(f's_sub_u32 s{S_CNT}, s{S_CNT}, 1')
e('s_cbranch_scc1 L_s_nog')
e('s_sleep 2')
e('s_waitcnt vmcnt(0)')
e(f'v_cmp_eq_u32 vcc, s{S_TAG}, v9')
e(f'v_bfi_b32 v14, v8, 0, s{S_T2}')
e('s_cbranch_vccz L_s_wpoll')
e('s_mov_b64 exec, vcc')
e('s_branch L_s_nog')
lab('L_s_l2')
e(f's_mov_b32 s{S_CNT}, {SPIN}')
e('v_min_u32 v5, 8, v0')
e('v_lshlrev_b32 v5, 7, v5')
if SPEC or SP27:
    e(f's_cmp_ge_u32 s{S_T}, {8*NRD}'); e('s_cbranch_scc1 L_s_spec')
if APOLL:
    e('v_mov_b64 v[10:11], 0')
    for i in range(APOLL): e(f'v_not_b32 v{17+2*i}, v7')
    e('s_mov_b64 exec, 0xff')
    lab('L_s_poll')
    for i in range(APOLL):
        o = (i + 1) % APOLL
        e(f'global_atomic_add_x2 v[{16+2*i}:{17+2*i}], v41, v[10:11], {sp(WS)} sc0 sc1')
        if ASL: e(f's_sleep {ASL}')
        e(f's_waitcnt vmcnt({APOLL-1})')
        e(f'v_cmp_ne_u32 vcc, s{S_TAG}, v{17+2*o}')
        dpp('v_max_u32', 8, 16+2*o, 16+2*o, 'quad_perm:[1,0,3,2]')
        e('s_cbranch_vccz L_s_got')
    e(f's_sub_u32 s{S_CNT}, s{S_CNT}, 1')
    e('s_cbranch_scc0 L_s_poll')
    lab('L_s_got')
    stamp(2)
    e('s_nop 0')
    dpp('v_max_u32', 8, 8, 8, 'quad_perm:[2,3,0,1]'); e('s_nop 1')
    dpp('v_max_u32', 8, 8, 8, 'row_half_mirror')
    e('s_mov_b64 exec, -1')
    e(f'v_readfirstlane_b32 s{S_T0}, v8')
    e('s_nop 1')
    e(f'v_mov_b32 v6, s{S_T0}')
else:
    lab('L_s_poll')
    if STAMP:
        e(f's_mov_b64 s[{S_ST+12}:{S_ST+13}], s[{S_ST+10}:{S_ST+11}]'); stamp(5); e('s_waitcnt lgkmcnt(0)')
    e(f'global_load_dwordx2 v[8:9], v41, {sp(WS)} sc1')
    e(f's_sub_u32 s{S_CNT}, s{S_CNT}, 1')
    e('s_cbranch_scc1 L_s_got')
    e('s_waitcnt vmcnt(0)')
    e(f'v_cmp_ne_u32 vcc, s{S_TAG}, v9')
    dpp('v_max_u32', 8, 8, 8, 'quad_perm:[1,0,3,2]')
    e('s_cbranch_vccnz L_s_poll')
    lab('L_s_got')
    stamp(2)
    e('s_nop 0')
    dpp('v_max_u32', 8, 8, 8, 'quad_perm:[2,3,0,1]'); e('s_nop 1')
    dpp('v_max_u32', 6, 8, 8, 'row_half_mirror')
if NBC < 64: e('s_mov_b32 exec_hi, 0')
e(f'global_store_dwordx2 v3, v[6:7], {sp(WS)}')
e(f'v_bfi_b32 v14, v6, 0, s{S_T2}')
e(f'v_mad_u32_u24 v5, v14, s{S_T1}, v5')
e(f'global_load_dword v39, v5, {sp(X)}')
stamp(3)
e(f's_cmp_lg_u32 s{S_T}, 7')
e('s_cbranch_scc1 L_s_nog')
e(f'v_mov_b32 v5, {WIN_G}')
e('s_mov_b64 exec, 1')
e(f'global_store_dwordx2 v5, v[6:7], {sp(WS)} sc1')
lab('L_s_nog')
e(f'ds_write_b32 v13, v14 offset:{LDS_WIN}')
e('s_waitcnt lgkmcnt(0)')
e('s_barrier')
e('s_barrier')
if BF: e('s_barrier')
lab('L_s_end')
endpgm()

if SPEC or SP27:
    lab('L_s_spec')
    c("this spare pulls every candidate row into the L2 as its key arrives")
    e('v_lshrrev_b32 v12, 3, v0'); e('v_lshlrev_b32 v12, 7, v12')
    lab('L_s_spoll')
    e(f'global_load_dwordx2 v[8:9], v41, {sp(WS)} sc1')
    e(f's_sub_u32 s{S_CNT}, s{S_CNT}, 1')
    e('s_cbranch_scc1 L_s_got')
    e('s_waitcnt vmcnt(0)')
    e(f'v_cmp_eq_u32 vcc, s{S_TAG}, v9')
    e(f'v_bfi_b32 v10, v8, 0, s{S_T2}')
    e(f'v_mad_u32_u24 v11, v10, s{S_T1}, v12')
    e('s_and_b64 exec, vcc, -1')
    e('s_cbranch_scc0 L_s_snone')
    e(f'global_load_dword v38, v11, {sp(X)}')
    e(f'global_load_dword v38, v11, {sp(X)} offset:128')
    lab('L_s_snone')
    e('s_mov_b64 exec, -1')
    dpp('v_max_u32', 8, 8, 8, 'quad_perm:[1,0,3,2]')
    e('s_cmp_eq_u64 vcc, -1')
    e('s_cbranch_scc0 L_s_spoll')
    e('s_branch L_s_got')
e('.p2align 6')
lab('L_warm_r')
e('s_endpgm')
lab('L_r2')
for i in range(4): e(f'v_mov_b32 v{ACC+i}, 0')
e('v_sub_u32 v6, 0xffff, v1')
e(f'v_add_u32 v7, {K1G-K1L}, v3')
e(f's_mov_b32 s{S_T2}, 0xffff0000')
KY = 84
if WLDS:
    if RST: e('s_waitcnt lgkmcnt(0)'); stamp(7)
    e(f's_waitcnt vmcnt({9+RPT})')
    if RST: stamp(5)
    for cc in range(9): e(f'ds_read_b128 v[{WW+4*cc}:{WW+4*cc+3}], v2 offset:{LDS_W+128*cc}')
e('s_waitcnt lgkmcnt(0)')
e(f's_add_u32 s{S_TAG}, s{S_TAG}, 1')
e(f'v_mov_b32 v{KY+1}, s{S_TAG}')
e(f's_cmp_ge_u32 s{S_SLOT}, 27')
for cc in range(9):
    e(f's_waitcnt vmcnt({8-cc+RPT})')
    if RST and cc == 0: stamp(6)
    for d in range(4): e(f'v_dot2c_f32_bf16 v{ACC+d}, v{XR+4*cc+d}, v{WW+4*cc+d}')
stamp(2)
e('s_nop 2')
e(f'v_pk_add_f32 v[{ACC}:{ACC+1}], v[{ACC}:{ACC+1}], v[{ACC+2}:{ACC+3}]')
e(f'v_add_f32 v{ACC}, v{ACC}, v{ACC+1}')
for m in ['quad_perm:[1,0,3,2]', 'quad_perm:[2,3,0,1]', 'row_half_mirror']:
    e('s_nop 1'); dpp('v_add_f32', ACC, ACC, ACC, m)
K0, K1 = KY+2, KY+3
e(f'v_cmp_o_f32 vcc, v{ACC}, v{ACC}')
e(f'v_cvt_pk_bf16_f32 v{K0}, v{ACC}, v{ACC}')
e(f'v_ashrrev_i32 v{K1}, 31, v{K0}')
e(f'v_or_b32 v{K1}, 0x80000000, v{K1}')
e(f'v_xor_b32 v{K0}, v{K0}, v{K1}')
e(f'v_cndmask_b32 v{K0}, 0, v{K0}, vcc')
e(f'v_and_or_b32 v{KY}, v{K0}, s{S_T2}, v6')
e('s_nop 1'); dpp('v_max_u32', KY, KY, KY, 'row_shr:8')
e('s_nop 1'); dpp('v_max_u32', KY, KY, KY, 'row_bcast:15', '0xa')
e('s_nop 1'); dpp('v_max_u32', KY, KY, KY, 'row_bcast:31', '0xc')
e('s_mov_b32 exec_lo, 0'); e('s_brev_b32 exec_hi, 1')
e('s_cbranch_scc0 L_r_k1')
e('s_barrier')
lab('L_r_k1')
e(f'global_store_dwordx2 v3, v[{KY}:{KY+1}], {sp(WS)}')
if L1ST: stamp(7)
e('s_cbranch_scc1 L_r_k2')
if HOLD: e('s_barrier')
lab('L_r_k2')
if A27: e(f's_cmp_eq_u32 s{S_SLOT}, 27'); e('s_cbranch_scc1 L_r_k3')
e(f'global_store_dwordx2 v7, v[{KY}:{KY+1}], {sp(WS)} sc1')
if A27: lab('L_r_k3')
e('s_mov_b64 exec, -1')
stamp(3)
e(f'v_mov_b32 v{K1}, 0x207')
e(f'v_cmp_class_f32 vcc, v{ACC}, v{K1}')
e('s_cbranch_vccnz L_r_fix')
lab('L_r_nofix')
if GATE:
    e(f's_cmp_ge_u32 s{S_SLOT}, 27'); e('s_cbranch_scc1 L_r_noe'); e('s_barrier'); lab('L_r_noe')
def copy_rows(m=ONT):
    if NOCOPY == 1 or (NOCOPY == 2 and m == '') or (NOCOPY == 3 and m != ''): return
    for cc in range(9):
        e(f'global_store_dwordx4 v4, v[{XR+4*cc}:{XR+4*cc+3}], {sp(OUT)} offset:{128*cc}{m}')
if CP == 'E':
    e(f'v_readlane_b32 s{S_T1}, v{KY}, 63')
    e(f's_andn2_b32 s{S_T1}, 0x7ff, s{S_T1}')
    e(f'v_cmp_ne_u32 vcc, s{S_T1}, v1')
    e('s_mov_b64 exec, vcc')
    copy_rows()
    e('s_not_b64 exec, vcc')
e('s_barrier')
e('v_mov_b32 v2, 0')
e(f'ds_read_b32 v2, v2 offset:{LDS_WIN}')
e('s_waitcnt lgkmcnt(0)')
e('v_cmp_ne_u32 vcc, v2, v1')
if CP == 'D': e('s_barrier')
if BF: e('s_barrier')
stamp(4)
e('s_and_b64 exec, exec, vcc')
if CP == 'E': e('s_cbranch_scc0 L_r_end')
if SPL:
    e(f's_cmp_ge_u32 s{S_SLOT}, 27'); e('s_cbranch_scc1 L_r_plain')
copy_rows()
lab('L_r_end')
if CP != 'D': e('s_barrier')
if STAMP and not RST:
    stamp(5); e('s_waitcnt vmcnt(0)'); stamp(6)
endpgm()

if SPL:
    lab('L_r_plain')
    copy_rows('')
    e('s_branch L_r_end')
lab('L_w_far')
c('partners may sit on another die: publish a device-wide copy, then alternate between the two copies')
e(f's_cmp_gt_u32 s{S_CNT}, {SPIN}')
e('s_cbranch_scc1 L_w_go')
e(f'v_xor_b32 v13, {EXG^EXL}, v13')
e(f's_xor_b32 s{S_TB+3}, s{S_TB+3}, s{S_XCC}')
e(f's_cmp_lg_u32 s{S_CNT}, {LOCN}')
e('s_cbranch_scc1 L_w_same')
e(f'v_xor_b32 v12, {EXG^EXL}, v12')
e(f'v_xor_b32 v{AF+3}, s{S_XCC}, v{AF+3}')
e('s_mov_b32 exec_hi, 0')
e(f'global_store_dwordx4 v12, v[{AF}:{AF+3}], {sp(WS)} sc1')
e('s_mov_b32 exec_hi, -1')
if ROLL:
    lab('L_w_same')
    e('s_waitcnt vmcnt(0)')
    EX = EX0
    five_loads()
    e('s_branch L_w_chk')
else: e('s_branch L_w_same')
lab('L_p_slow')
e(f'v_mov_b32 v6, {WIN_G}')
e(f's_mov_b32 s{S_CNT}, {SPIN}')
lab('L_p_slowpoll')
e(f'global_load_dwordx2 v[8:9], v6, {sp(WS)} sc1')
e('s_waitcnt vmcnt(0) lgkmcnt(0)')
e(f'v_readfirstlane_b32 s{S_A}, v8')
e(f'v_readfirstlane_b32 s{S_A+1}, v9')
e(f's_sub_u32 s{S_CNT}, s{S_CNT}, 1')
e('s_cbranch_scc1 L_p_got')
e(f's_cmp_lg_u32 s{S_A+1}, s{S_TAG}')
e('s_cbranch_scc1 L_p_slowpoll')
e('s_branch L_p_got')
if STAMP:
    lab('L_flush')
    e('s_waitcnt vmcnt(0) lgkmcnt(0)')
    e('s_mov_b64 exec, 1')
    e('s_sleep 40')
    e(f's_lshl_b32 s{S_T0}, s2, 4'); e(f's_add_u32 s{S_T0}, s{S_T0}, s{S_WAVE}')
    e(f's_lshl_b32 s{S_T0}, s{S_T0}, 6'); e(f's_add_u32 s{S_T0}, s{S_T0}, 0x8000000')
    e(f'v_mov_b32 v2, s{S_T0}')
    for i in range(4):
        for k in range(4): e(f'v_mov_b32 v{4+k}, s{S_ST+4*i+k}')
        e(f'global_store_dwordx4 v2, v[4:7], {sp(WS)} offset:{16*i}'); e('s_nop 1')
    e('s_endpgm')
lab('L_r_fix')
c('x + x*0 turns an infinity into a NaN')
e(f's_mov_b32 s{S_SELHI}, 0x07060302')
for d in range(36):
    r = XR + d
    e(f'v_lshlrev_b32 v{K0}, 16, v{r}')
    e(f'v_and_b32 v{K1}, s{S_T2}, v{r}')
    e(f'v_fma_f32 v{K0}, v{K0}, 0, v{K0}')
    e(f'v_fma_f32 v{K1}, v{K1}, 0, v{K1}')
    e(f'v_perm_b32 v{r}, v{K1}, v{K0}, s{S_SELHI}')
e('s_branch L_r_nofix')

hdr = f'''; MoD (mixture-of-depths, capacity 1) router + SwiGLU FFN on the routed token, one launch.
; @launch grid=(256,1,1) block=(512,1,1) lds={LDS_BYTES}
.amdgcn_target "amdgcn-amd-amdhsa--gfx950"
.text
.globl standalone__moe_arch_mod__prompt_kernel
.p2align 12
.fill {(4096-768)//4}, 4, 0xBF800000
.p2align 8
.type standalone__moe_arch_mod__prompt_kernel,@function
standalone__moe_arch_mod__prompt_kernel:'''
tail = '''.section .rodata,"a"
.p2align 6
.amdhsa_kernel standalone__moe_arch_mod__prompt_kernel
  .amdhsa_next_free_vgpr 184
  .amdhsa_next_free_sgpr 96
  .amdhsa_accum_offset 184
  .amdhsa_group_segment_fixed_size 0
  .amdhsa_kernarg_size 64
  .amdhsa_user_sgpr_count 2
  .amdhsa_user_sgpr_kernarg_segment_ptr 1
  .amdhsa_system_sgpr_workgroup_id_x 1
  .amdhsa_float_denorm_mode_32 3
.end_amdhsa_kernel
'''
def offsets(lines):
    out = []; k = 0
    for ln in lines:
        if ln.startswith(';;WARM'): out.append(f'MK{k}:'); k += 1
        else: out.append(ln)
    src = hdr.replace('.fill 832,', '.fill 1024,') + '\n' + '\n'.join(out) + '\nL_warm1:\nL_warm2:\nL_warm3:\n' + tail
    d = tempfile.mkdtemp()
    open(d + '/a.s', 'w').write(src)
    subprocess.run(['clang', '-x', 'assembler', '-target', 'amdgcn-amd-amdhsa', '-mcpu=gfx950', '-c', d + '/a.s', '-o', d + '/a.o'], check=True)
    t = subprocess.run(['llvm-objdump', '-t', d + '/a.o'], capture_output=True, text=True).stdout
    sy = {m.group(2): int(m.group(1), 16) for m in re.finditer(r'^([0-9a-f]{16}) .*\.text\s+[0-9a-f]+ (?:\.protected |\.hidden )?(\S+)$', t, re.M)}
    base = sy['standalone__moe_arch_mod__prompt_kernel']
    return {n: v - base for n, v in sy.items()}
offs = offsets(L)
marks = [(i, ln) for i, ln in enumerate(L) if ln.startswith(';;WARM')]
mo = [offs[f'MK{k}'] for k in range(len(marks))]
chosen = []
segs = [(0, offs['L_end'])]
shift = 0
for (a, b) in segs:
    pass
    covered = ((a + shift) // 64) * 64 + 1088
    while covered < b + shift + 8:
        cand = [k for k in range(len(marks)) if a <= mo[k] < b and mo[k] + shift + 4 < covered + 64 and (not chosen or k > chosen[-1])]
        assert cand, (covered, mo, segs)
        k = cand[-1]
        sp4 = marks[k][1].startswith(';;WARMSPOT')
        pos = mo[k] + shift + (4 if sp4 else 0)
        chosen.append(k); shift += 8 if sp4 else 4
        nc = (pos // 64) * 64 + 1088
        assert nc > covered, (nc, covered, mo)
        covered = nc
assert offs['L_seg1_end'] + 20 < 4096
names = {k: n + 1 for n, k in enumerate(chosen)}
nst = len(chosen)
outl = []; k = 0
for ln in L:
    if ln.startswith(';;WARM'):
        if k in names:
            n = names[k]
            tgt = f'L_warm{n+3}' if n + 3 <= nst else 'L_p'
            if ln.startswith(';;WARMSPOT'): outl.append(f'    s_branch L_skip{n}')
            outl.append(f'L_warm{n}:'); outl.append(f'    s_branch {tgt}')
            if ln.startswith(';;WARMSPOT'): outl.append(f'L_skip{n}:')
        k += 1
    elif ln == 'L_p:':
        for n in range(nst + 1, 4): outl.append(f'L_warm{n}:')
        outl.append(ln)
    else: outl.append(ln)
sys.stderr.write(f'chosen {[mo[k] for k in chosen]} ' + ' '.join(f'{n}={v}' for n, v in sorted(offs.items(), key=lambda x: x[1]) if n in ('L_w','L_w_poll','L_p','L_end','L_seg1_end','L_r2','L_spare','L_s_end','L_r_end')) + '\n')
print(hdr); print('\n'.join(outl)); print(tail)
```

```python
import sys, subprocess, re, tempfile
def opt(name, d):
    a = sys.argv
    return type(d)(a[a.index(name)+1]) if name in a else d
def mod(name, d):
    v = opt(name, d); return '' if v == '-' else ' ' + v.replace('+', ' ')
STAMP = '--stamp' in sys.argv
MINI = '--mini' in sys.argv
WING = opt('--wing', 8); WIND = opt('--wind', 10); WIN0 = opt('--win0', 7)
NT = mod('--nt', 'nt'); XNT = mod('--xnt', '-'); ONT = mod('--ont', 'sc1')
CP = opt('--cp', 'D')
DIAG = opt('--diag', -1)
HOLD = opt('--hold', 1); WLAST = opt('--wlast', 0); LIGHT = opt('--light', 0)
WLDS = opt('--wlds', 1); TLB = opt('--tlb', 0); ACK = opt('--ack', 0)
K1SH = opt('--k1sh', 7)
SKEW = opt('--skew', -1)
X0 = opt('--x0', 0); APOLL = opt('--apoll', 1); ASL = opt('--asl', 0); SPEC = opt('--spec', 0)
B0 = opt('--b0', 0)
NOP = opt('--nop', 0); NOPT = opt('--nopt', 0); WST = opt('--wst', 0)
RST = opt('--rst', 0); LATE = opt('--late', 1); SPX = opt('--spx', 0)
NRD = opt('--nrd', 4); NBC = opt('--nbc', 64)
SPL = opt('--spl', 1)
ND1 = opt('--nd1', 8)
NOCOPY = opt('--nocopy', 0); EXM = mod('--exm', '-'); FOM = mod('--fom', '-')
EPM = mod('--epm', '-')
NOEP = opt('--noep', 0); NOFIN = opt('--nofin', 0); EARLYST = opt('--est', 0)
KD = opt('--kdiag', 0)
if KD: SKEW = 0
ROLL = opt('--roll', 1)
WEP = opt('--wep', 0); GMAP = opt('--gmap', 1); WSL = opt('--wsl', 0)
RPT = opt('--rpt', 1); WE0 = opt('--we0', 0)
PCNT = opt('--pcnt', 0)
K2X = opt('--k2x', 128); K2R = opt('--k2r', 8192)
TRIM = opt('--trim', 1)
GATE = opt('--gate', 0); ND0 = opt('--nd0', 0)
L1ST = opt('--l1st', 0)
A27 = opt('--a27', 1); APT = opt('--apt', 1)
SP27 = opt('--sp27', 0)
BF = opt('--bf', 1); TB = opt('--tb', 6)
WK = opt('--wk', 0)
ILV = opt('--ilv', 1)
SPIN = 100000
LOCN = opt('--locn', 60)

NDEST = 8 * (NRD + SPEC)
L = []
def e(s): L.append('    ' + s)
def lab(s): L.append(s + ':')
def c(s): L.append('    ; ' + s)
X, WR, WG, WU, WD, OUT, DBG, WS = 4, 6, 8, 10, 12, 14, 16, 18
def sp(n): return f's[{n}:{n+1}]'
S_WAVE, S_XCD, S_SLOT = 20, 21, 22
S_T0, S_T1, S_T2, S_T3 = 23, 24, 25, 26
S_SELLO, S_SELHI = 27, 28
S_CNT, S_TAG, S_T, S_K = 29, 30, 31, 32
S_XCC = 33
S_A, S_B = 34, 36
S_TB = 38; S_PS = 42
S_M = 46
S_XS = 48
S_ST = 80
K1L, K1G, WIN_G, ACCU, BC, K2, EXL, EXG = 0x20000, 0x30000, 0x3000, 0x4000, 0x8000, 0x40000, 0x100000, 0x180000
LDS_X, LDS_WIN, LDS_P = 0, 128, 256
LDS_W = 2048
LDS_BYTES = 3328

def stamp(i):
    if STAMP: e(f's_memrealtime s[{S_ST+2*i}:{S_ST+2*i+1}]')
def endpgm():
    e('s_branch L_flush' if STAMP else 's_endpgm')
def dpp(op, d, a, b, m, rm='0xf'):
    e(f'{op}_dpp v{d}, v{a}, v{b} {m} row_mask:{rm} bank_mask:0xf')
def mdpp(d, a, m, rm='0xf'):
    e(f'v_mov_b32_dpp v{d}, v{a} {m} row_mask:{rm} bank_mask:0xf')
def perms(raw, T, p):
    for j in range(8):
        sel = S_SELHI if (j & 1) else S_SELLO
        e(f'v_perm_b32 v{T+4*j+p}, v{raw+4*(2*p+1)+j//2}, v{raw+4*(2*p)+j//2}, s{sel}')
def bf16r(d, s):
    e(f'v_cvt_pk_bf16_f32 v{d}, v{s}, v{s}'); e(f'v_lshlrev_b32 v{d}, 16, v{d}')
def slot9():
    e(f's_mul_i32 s{S_T0}, s{S_SLOT}, 57')
    e(f's_lshr_b32 s{S_T0}, s{S_T0}, 9')
    e(f's_mul_i32 s{S_K}, s{S_T0}, 9')
    e(f's_sub_u32 s{S_K}, s{S_SLOT}, s{S_K}')
    e(f's_mul_i32 s{S_T}, s{S_XCD}, 3')
    e(f's_add_u32 s{S_T}, s{S_T}, s{S_T0}')
    e(f's_mul_i32 s{S_T}, s{S_T}, 3')
b1n = [0]
def bar1():
    if not HOLD: return
    if X0:
        b1n[0] += 1
        e(f's_cmp_eq_u32 s{S_XCD}, 0'); e(f's_cbranch_scc1 L_nob{b1n[0]}')
        e('s_barrier    ; B1')
        lab(f'L_nob{b1n[0]}')
    else: e('s_barrier')
def getxcc(): e(f's_getreg_b32 s{S_XCC}, hwreg(HW_REG_XCC_ID, 0, 3)')

if MINI and EARLYST: e('s_memrealtime s[80:81]')
e('s_load_dwordx16 s[4:19], s[0:1], 0')
e('s_cmp_ge_u32 s2, 256')
e('s_cbranch_scc1 L_exit0')
stamp(0)
if MINI and not EARLYST: e('s_memrealtime s[80:81]')
if DIAG >= 0 or SKEW >= 0 or GATE: e('s_memrealtime s[76:77]')
e(f'v_readfirstlane_b32 s{S_WAVE}, v0')
e('v_and_b32 v0, 63, v0')
e(f's_and_b32 s{S_XCD}, s2, 7')
e(f's_lshr_b32 s{S_SLOT}, s2, 3')
e(f's_lshr_b32 s{S_WAVE}, s{S_WAVE}, 6')
if STAMP:
    for i in range(1, 8): e(f's_mov_b64 s[{S_ST+2*i}:{S_ST+2*i+1}], 0')
e(f's_cmp_lt_u32 s{S_WAVE}, 4'); e('s_cbranch_scc1 L_notp')
if B0: e('s_barrier    ; B0')
if WK == 1: e('s_waitcnt lgkmcnt(0)')
if WK > 1: e(f's_sleep {WK}')
e(f's_cmp_eq_u32 s{S_WAVE}, 4'); e('s_cbranch_scc1 L_warm1')
e(f's_cmp_eq_u32 s{S_WAVE}, 5'); e('s_cbranch_scc1 L_warm2')
e(f's_cmp_eq_u32 s{S_WAVE}, 6'); e('s_cbranch_scc1 L_warm3')
e('s_branch L_warm_r')
lab('L_spare0')
if X0:
    e(f's_cmp_eq_u32 s{S_WAVE}, 1'); e('s_cbranch_scc1 L_rx')
e(f's_cmp_lg_u32 s{S_WAVE}, 0'); e('s_cbranch_scc1 L_warm_s')
e(f's_lshl_b32 s{S_T1}, s{S_XCD}, {6+K1SH}')
e(f's_add_u32 s{S_T1}, s{S_T1}, {K1L}')
if X0:
    e(f's_cmp_eq_u32 s{S_XCD}, 0')
    e(f's_cselect_b32 s{S_T2}, 27, 0'); e(f's_cselect_b32 s{S_T3}, 31, 35')
    e(f'v_max_u32 v40, s{S_T2}, v0'); e(f'v_min_u32 v40, s{S_T3}, v40')
else: e('v_min_u32 v40, 31, v0')
e(f'v_lshl_add_u32 v40, v40, {K1SH}, s{S_T1}')
e('s_waitcnt lgkmcnt(0)')
e(f's_load_dword s{S_TAG}, {sp(WS)}, 0')
if not RPT or APT:
    e(f's_cmp_lg_u32 s{S_SLOT}, 27'); e('s_cbranch_scc1 L_spare')
    c('the first spare of each group brings the key lines into this L2')
    e(f'global_load_dwordx2 v[8:9], v40, {sp(WS)} sc1')
e('s_branch L_spare')
lab('L_exit0')
e('s_endpgm')
lab('L_notp')
e(f's_cmp_lg_u32 s{S_WAVE}, 3'); e('s_cbranch_scc1 L_w')

XR, WW, ACC = 8, 44, 80
c('router wave: rows 8*wg + (l>>3), bytes 128c + 16*(l&7)')
e(f's_lshl_b32 s{S_T1}, s2, 3')
if X0:
    e(f's_cmp_lg_u32 s{S_XCD}, 0'); e('s_cbranch_scc1 L_r1')
    e(f's_cmp_ge_u32 s{S_SLOT}, 27'); e('s_cbranch_scc1 L_r1')
    e('s_endpgm')
    lab('L_rx')
    c('extra router wave: takes the rows of workgroup 8e, e = min(7*(31-slot) + xcd-1, 26)')
    e(f's_cmp_eq_u32 s{S_SLOT}, 27'); e('s_cbranch_scc1 L_exit0')
    e(f's_cmp_eq_u32 s{S_XCD}, 0'); e('s_cbranch_scc1 L_exit0')
    e(f's_mul_i32 s{S_T1}, s{S_SLOT}, -7')
    e(f's_add_u32 s{S_T1}, s{S_T1}, s{S_XCD}')
    e(f's_addk_i32 s{S_T1}, {7*31-1}')
    e(f's_min_u32 s{S_T1}, s{S_T1}, 26')
    e(f's_lshl_b32 s{S_T1}, s{S_T1}, 6')
    e(f's_addk_i32 s{S_SLOT}, 4')
    lab('L_r1')
e('s_setprio 3')
e('v_lshrrev_b32 v1, 3, v0')
e(f'v_add_u32 v1, s{S_T1}, v1')
e('v_and_b32 v2, 7, v0')
e('v_lshlrev_b32 v2, 4, v2')
e(f's_movk_i32 s{S_T2}, 1152')
e(f'v_mad_u32_u24 v4, v1, s{S_T2}, v2')
e(f's_lshl_b32 s{S_T0}, s{S_XCD}, 6')
e(f's_add_u32 s{S_T0}, s{S_T0}, s{S_SLOT}')
e(f's_lshl_b32 s{S_T0}, s{S_T0}, {K1SH}')
e(f's_add_u32 s{S_T0}, s{S_T0}, {K1L}')
e(f'v_mov_b32 v3, s{S_T0}')
if WLDS:
    e('v_lshlrev_b32 v5, 4, v0')
    e(f's_movk_i32 m0, {LDS_W}')
e('s_waitcnt lgkmcnt(0)')
def wl():
    if WLDS:
        e(f'global_load_lds_dwordx4 v5, {sp(WR)}')
        e('s_mov_b64 exec, 0xff')
        e(f'global_load_lds_dwordx4 v5, {sp(WR)} offset:1024')
        e('s_mov_b64 exec, -1')
        return
    for cc in range(9): e(f'global_load_dwordx4 v[{WW+4*cc}:{WW+4*cc+3}], v2, {sp(WR)} offset:{128*cc}')
if not WLAST: wl()
for cc in range(9): e(f'global_load_dwordx4 v[{XR+4*cc}:{XR+4*cc+3}], v4, {sp(X)} offset:{128*cc}{XNT}')
if WLAST: wl()
if RPT: e(f'global_load_dword v{ACC+8}, v3, {sp(WS)} sc1')
e(f's_load_dword s{S_TAG}, {sp(WS)}, 0')
if B0: e('s_barrier    ; B0')
stamp(1)
e('s_branch L_r2')

lab('L_w')
e(f's_cmp_ge_u32 s{S_SLOT}, 27'); e('s_cbranch_scc1 L_spare0')
RAW, TX, DA, AF = 16, 112, 144, 176
slot9()
e(f's_add_u32 s{S_T}, s{S_T}, s{S_WAVE}')
c('G: row = 64k + 32u + ' + ('8*(e>>1) + 2*(l>>4) + (e&1)' if GMAP else '8*(l>>4) + e') + ' ; col bytes = 128c + 16*(l&7) ; matrix = (l>>3)&1')
e('v_lshrrev_b32 v8, 4, v0')
e(f's_lshl_b32 s{S_T0}, s{S_K}, {5 if GMAP else 3}')
e(f'v_add_u32 v1, s{S_T0}, v8')
e(f's_mov_b32 s{S_T1}, {2*9216 if GMAP else 8*9216}')
e(f'v_mul_lo_u32 v1, v1, s{S_T1}')
e('v_and_b32 v9, 7, v0')
e('v_lshlrev_b32 v9, 4, v9')
e(f's_lshl_b32 s{S_T2}, s{S_T}, 7')
e(f'v_add3_u32 v1, v1, v9, s{S_T2}')
e('v_and_b32 v10, 8, v0')
e('v_cmp_ne_u32 vcc, 0, v10')
e(f's_mov_b32 s{S_A}, 9216'); e(f's_mov_b32 s{S_A+1}, 0')
e(f's_mov_b32 s{S_B}, {7*9216 if GMAP else 25*9216}'); e(f's_mov_b32 s{S_B+1}, 0')
e('s_waitcnt lgkmcnt(0)')
e(f'v_mov_b32 v2, s{WG}'); e(f'v_mov_b32 v3, s{WG+1}')
e(f'v_mov_b32 v4, s{WU}'); e(f'v_mov_b32 v5, s{WU+1}')
e('v_cndmask_b32 v2, v2, v4, vcc'); e('v_cndmask_b32 v3, v3, v5, vcc')
e('v_add_co_u32 v2, vcc, v2, v1')
e(f's_load_dword s{S_TAG}, {sp(WS)}, 0')
if not B0: e('s_nop 0')
if B0: e('s_barrier    ; B0')
e('v_addc_co_u32 v3, vcc, 0, v3, vcc')
DOFF = [-2880, -1728, 1728, 2880]
def wload(n):
    if n < 16:
        e(f'global_load_dwordx4 v[{RAW+4*n}:{RAW+4*n+3}], v[2:3], off{NT}')
        if n < 15: e(f'v_lshl_add_u64 v[2:3], v[2:3], 0, {sp(S_B if (n & 1 if GMAP else n == 7) else S_A)}')
    else:
        r = n - 16
        e(f'global_load_dwordx4 v[{RAW+4*n}:{RAW+4*n+3}], v{6+r//4}, {sp(WD)} offset:{DOFF[r%4]}{NT}')
TG = [TX, RAW]; TD = RAW + 32
def gperm(pair): perms(RAW + 32*(pair//4), TG[pair//4], pair % 4)
if not LATE:
    for n in range(WIN0): wload(n)
c('D: row = 64c + 32*(kg&1) + 16*m + 2*(kg>>1) + {0,1,4,5,8,9,12,13} ; col bytes = 128k + 16q')
e('v_and_b32 v6, 24, v0')
e('v_lshlrev_b32 v6, 1, v6')
e('v_lshrrev_b32 v7, 5, v0')
e('v_lshl_add_u32 v6, v7, 1, v6')
e(f's_lshl_b32 s{S_T0}, s{S_T}, 6')
e(f'v_add_u32 v6, s{S_T0}, v6')
e(f's_movk_i32 s{S_T1}, 1152')
e(f'v_mul_lo_u32 v6, v6, s{S_T1}')
e(f's_lshl_b32 s{S_T3}, s{S_K}, 7')
e(f's_add_u32 s{S_T3}, s{S_T3}, 2880')
e(f'v_add3_u32 v6, v6, v9, s{S_T3}')
e('v_add_u32 v7, 9216, v6')
e(f's_mov_b32 s{S_SELLO}, 0x05040100')
e(f's_mov_b32 s{S_SELHI}, 0x07060302')
c('A-fragment LDS address, exchange addresses, partial LDS address')
e('v_lshlrev_b32 v11, 4, v8')
e(f's_mul_i32 s{S_T0}, s{S_T}, 4608')
e(f's_add_u32 s{S_T0}, s{S_T0}, {EXL+2048}')
e(f'v_lshl_add_u32 v13, v0, 4, s{S_T0}')
e(f's_lshl_b32 s{S_T1}, s{S_K}, 9')
e(f's_add_u32 s{S_T0}, s{S_T0}, s{S_T1}')
e(f's_sub_u32 s{S_T0}, s{S_T0}, 2048')
e('v_and_b32 v12, 4, v0'); e('v_lshlrev_b32 v12, 6, v12')
e('v_lshl_add_u32 v12, v10, 4, v12')
e('v_and_b32 v14, 3, v0'); e('v_lshl_add_u32 v12, v14, 5, v12')
e(f'v_add3_u32 v12, v12, v11, s{S_T0}')
if not TRIM: e(f'v_cmp_eq_u32 {sp(S_M)}, 0, v10')
e(f's_lshl_b32 s{S_T0}, s{S_WAVE}, 9')
e('v_lshlrev_b32 v14, 5, v10')
e('v_lshl_add_u32 v14, v9, 1, v14')
e(f'v_add_u32 v14, s{S_T0}, v14')
getxcc()
if TB == 8:
    for i in range(4): e(f's_mov_b32 s{S_PS+i}, {0x07060500+i:#x}')
if LATE:
    for n in range(WE0): wload(n)
    if WEP or WSL:
        if X0: e(f's_cmp_eq_u32 s{S_XCD}, 0'); e('s_cbranch_scc1 L_w_nodl')
        if WEP: e('s_waitcnt lgkmcnt(0)')
        if WSL: e(f's_sleep {WSL}')
        lab('L_w_nodl')
    for n in range(WE0, WIN0): wload(n)
L.append(';;WARMSPOT')
bar1()
stamp(1)
done_pairs = 0; got = 0
NI = 16 + ND1
for n in range(WIN0, NI):
    w = WING if n < 16 else WIND
    if GATE and n == 16 + ND0: e('s_barrier    ; E')
    need = n - w + 1
    if need > got:
        e(f's_waitcnt vmcnt({w-1})'); got = need
    wload(n)
    while done_pairs < 8 and 2*done_pairs + 2 <= got:
        gperm(done_pairs); done_pairs += 1
    if n == WING + 2:
        e('s_waitcnt lgkmcnt(0)')
        e(f's_add_u32 s{S_TAG}, s{S_TAG}, 1')
        e(f's_lshl_b32 s{S_T0}, s{S_XCC}, {3*TB}')
        e(f's_xor_b32 s{S_TAG}, s{S_TAG}, s{S_T0}')
        for i in range(4): e(f's_bfe_u32 s{S_TB+i}, s{S_TAG}, {(TB<<16)|(TB*i)}')
        if TB == 8: e(f'v_mov_b32 v15, s{S_TAG}')
    L.append(';;WARMSPOT')
while done_pairs < (4 if ND1 == 8 else 7):
    e(f's_waitcnt vmcnt({NI - (2*done_pairs+2)})'); gperm(done_pairs); done_pairs += 1
if WST:
    e('s_waitcnt vmcnt(8)'); stamp(1); e('s_waitcnt vmcnt(0)')
stamp(2)
e('s_barrier    ; A')
e(f'ds_read_b128 v[{AF}:{AF+3}], v11 offset:{LDS_X}')
e(f'ds_read_b128 v[{AF+4}:{AF+7}], v11 offset:{LDS_X+64}')
for n in range(NI, 24): wload(n)
e('s_waitcnt lgkmcnt(0)' if STAMP else 's_waitcnt lgkmcnt(1)')
stamp(3)
JO = (0, 4, 1, 5, 2, 6, 3, 7)
for j in JO:
    e(f'v_mfma_f32_16x16x32_bf16 v[{DA+4*j}:{DA+4*j+3}], v[{AF}:{AF+3}], v[{TG[0]+4*j}:{TG[0]+4*j+3}], 0')
late = ILV and done_pairs < 8
while done_pairs < (7 if late else 8):
    e(f's_waitcnt vmcnt({24 - (2*done_pairs+2)})'); gperm(done_pairs); done_pairs += 1
def g7(j):
    sel = S_SELHI if (j & 1) else S_SELLO
    e(f'v_perm_b32 v{TG[1]+4*j+3}, v{RAW+32+28+j//2}, v{RAW+32+24+j//2}, s{sel}')
if late:
    e('s_waitcnt vmcnt(8) lgkmcnt(0)')
    for j in JO[:3]: g7(j)
else: e('s_waitcnt lgkmcnt(0)')
for n, j in enumerate(JO):
    e(f'v_mfma_f32_16x16x32_bf16 v[{DA+4*j}:{DA+4*j+3}], v[{AF+4}:{AF+7}], v[{TG[1]+4*j}:{TG[1]+4*j+3}], v[{DA+4*j}:{DA+4*j+3}]')
    if late and n + 3 < 8: g7(JO[n+3])
EX = TX
e('s_nop 1')
for j in range(4):
    mdpp(DA+4*j, DA+4*j+16, 'quad_perm:[0,1,2,3]', '0x2')
    e(f'v_perm_b32 v{AF+j}, v{DA+4*j}, v15, s{S_PS+j}' if TB == 8 else f'v_bfi_b32 v{AF+j}, {(1<<TB)-1}, s{S_TB+j}, v{DA+4*j}')
e('s_mov_b32 exec_hi, 0')
e(f'global_store_dwordx4 v12, v[{AF}:{AF+3}], {sp(WS)}{EXM}')
e('s_mov_b32 exec_hi, -1')
stamp(4)
L.append(';;WARMSPOT')
for p in range(3):
    e(f's_waitcnt vmcnt({7-2*p})'); perms(RAW+64, TD, p)
def five_loads():
    for i in range(4):
        e(f'global_load_dwordx4 v[{EX+4*i}:{EX+4*i+3}], v13, {sp(WS)} offset:{1024*i-2048} sc1')
    e('s_mov_b32 exec_hi, 0')
    e(f'global_load_dwordx4 v[{EX+16}:{EX+19}], v13, {sp(WS)} offset:2048 sc1')
    e('s_mov_b32 exec_hi, -1')
five_loads()
if not TRIM: e('s_waitcnt vmcnt(6)'); perms(RAW+64, TD, 3)
elif STAMP: e('s_waitcnt vmcnt(6)')
stamp(5)
e(f's_mov_b32 s{S_CNT}, 0')
if TRIM: e(f's_mov_b32 s{S_A}, 0xbfb8aa3b')
e('s_branch L_w_chk')
L.append(';;WARMFREE')
if ROLL:
    lab('L_w_poll')
    e(f's_add_u32 s{S_CNT}, s{S_CNT}, 1')
    e(f's_cmp_ge_u32 s{S_CNT}, {LOCN}')
    e('s_cbranch_scc1 L_w_far')
    lab('L_w_chk')
    AC, TM, M = EX + 20, EX + 24, EX + 28
    for i in range(5):
        e('s_waitcnt vmcnt(4)')
        if i == 4: e('s_mov_b32 exec_hi, 0')
        dst = AC if i == 0 else TM
        for d in range(4): e(f'v_xor_b32 v{dst+d}, s{S_TB+d}, v{EX+4*i+d}')
        e(f'global_load_dwordx4 v[{EX+4*i}:{EX+4*i+3}], v13, {sp(WS)} offset:{1024*i-2048} sc1')
        if i == 0: e(f'v_or_b32 v{M}, v{dst}, v{dst+1}')
        else: e(f'v_or3_b32 v{M}, v{M}, v{dst}, v{dst+1}')
        e(f'v_or3_b32 v{M}, v{M}, v{dst+2}, v{dst+3}')
        if i > 0:
            e(f'v_pk_add_f32 v[{AC}:{AC+1}], v[{AC}:{AC+1}], v[{TM}:{TM+1}]')
            e(f'v_pk_add_f32 v[{AC+2}:{AC+3}], v[{AC+2}:{AC+3}], v[{TM+2}:{TM+3}]')
    e('s_mov_b32 exec_hi, -1')
    e(f'v_and_b32 v{M}, {(1<<TB)-1}, v{M}')
    e(f'v_cmp_ne_u32 vcc, 0, v{M}')
    e('s_cbranch_vccnz L_w_poll')
    EX0 = EX; EX = AC
else:
    lab('L_w_poll')
    e(f's_add_u32 s{S_CNT}, s{S_CNT}, 1')
    e(f's_cmp_ge_u32 s{S_CNT}, {LOCN}')
    e('s_cbranch_scc1 L_w_far')
    lab('L_w_same')
    five_loads()
    lab('L_w_chk')
    M = EX + 20
    for i in range(5):
        e(f's_waitcnt vmcnt({4-i})')
        if i == 4: e('s_mov_b32 exec_hi, 0')
        for d in range(4): e(f'v_xor_b32 v{EX+4*i+d}, s{S_TB+d}, v{EX+4*i+d}')
        if i == 0: e(f'v_or_b32 v{M}, v{EX}, v{EX+1}')
        else: e(f'v_or3_b32 v{M}, v{M}, v{EX+4*i}, v{EX+4*i+1}')
        e(f'v_or3_b32 v{M}, v{M}, v{EX+4*i+2}, v{EX+4*i+3}')
        if i > 0:
            e(f'v_pk_add_f32 v[{EX}:{EX+1}], v[{EX}:{EX+1}], v[{EX+4*i}:{EX+4*i+1}]')
            e(f'v_pk_add_f32 v[{EX+2}:{EX+3}], v[{EX+2}:{EX+3}], v[{EX+4*i+2}:{EX+4*i+3}]')
    e('s_mov_b32 exec_hi, -1')
    e(f'v_and_b32 v{M}, {(1<<TB)-1}, v{M}')
    e(f'v_cmp_ne_u32 vcc, 0, v{M}')
    e('s_cbranch_vccnz L_w_poll')
    EX0 = EX
lab('L_w_go')
stamp(6)
a0, a1, t0, t1 = EX, EX+1, EX+4, EX+5
if TRIM:
    def pj(j):
        sel = S_SELHI if (j & 1) else S_SELLO
        e(f'v_perm_b32 v{TD+4*j+3}, v{RAW+64+28+j//2}, v{RAW+64+24+j//2}, s{sel}')
    e(f'v_permlane32_swap_b32 v{EX}, v{EX+2}')
    e(f'v_permlane32_swap_b32 v{EX+1}, v{EX+3}')
    e(f'v_pk_add_f32 v[{EX}:{EX+1}], v[{EX}:{EX+1}], v[{EX+2}:{EX+3}]')
    e(f'v_cvt_pk_bf16_f32 v{EX+2}, v{a0}, v{a1}')
    e(f'v_lshlrev_b32 v{a0}, 16, v{EX+2}')
    e(f'v_and_b32 v{a1}, 0xffff0000, v{EX+2}')
    e(f'v_pk_mul_f32 v[{t0}:{t1}], v[{a0}:{a1}], {sp(S_A)} op_sel_hi:[1,0]')
    e(f'v_exp_f32 v{t0}, v{t0}')
    e(f'v_exp_f32 v{t1}, v{t1}')
    pj(0)
    e(f'v_pk_add_f32 v[{t0}:{t1}], v[{t0}:{t1}], 1.0 op_sel_hi:[1,0]')
    e(f'v_rcp_f32 v{t0}, v{t0}')
    e(f'v_rcp_f32 v{t1}, v{t1}')
    pj(1)
    e(f'v_pk_mul_f32 v[{t0}:{t1}], v[{a0}:{a1}], v[{t0}:{t1}]')
    e(f'v_cvt_pk_bf16_f32 v{t1}, v{t0}, v{t1}')
    e(f'v_lshlrev_b32 v{t0}, 16, v{t1}')
    e(f'v_and_b32 v{t1}, 0xffff0000, v{t1}')
    c('gate lanes (0..7 of each row) take u from the lane 8 further on; only they feed the MFMA rows that are read')
    pj(2)
    dpp('v_mul_f32', t0, a0, t0, 'row_ror:8')
    dpp('v_mul_f32', t1, a1, t1, 'row_ror:8')
    e(f'v_cvt_pk_bf16_f32 v{a0}, v{t0}, v{t1}')
    pj(3); pj(4)
    for p in range(4): mdpp(AF+4+p, a0, f'quad_perm:[{p},{p},{p},{p}]')
    pj(5); pj(6)
else:
    e(f'v_permlane32_swap_b32 v{EX}, v{EX+2}')
    e(f'v_permlane32_swap_b32 v{EX+1}, v{EX+3}')
    e(f'v_pk_add_f32 v[{EX}:{EX+1}], v[{EX}:{EX+1}], v[{EX+2}:{EX+3}]')
    e(f'v_cvt_pk_bf16_f32 v{EX+2}, v{a0}, v{a1}')
    e(f'v_lshlrev_b32 v{a0}, 16, v{EX+2}')
    e(f'v_and_b32 v{a1}, 0xffff0000, v{EX+2}')
    e(f'v_mul_f32 v{t0}, 0xbfb8aa3b, v{a0}')
    e(f'v_mul_f32 v{t1}, 0xbfb8aa3b, v{a1}')
    e(f'v_exp_f32 v{t0}, v{t0}')
    e(f'v_exp_f32 v{t1}, v{t1}')
    e('s_nop 0')
    e(f'v_pk_add_f32 v[{t0}:{t1}], v[{t0}:{t1}], 1.0 op_sel_hi:[1,0]')
    e(f'v_rcp_f32 v{t0}, v{t0}')
    e(f'v_rcp_f32 v{t1}, v{t1}')
    e('s_nop 0')
    e(f'v_pk_mul_f32 v[{t0}:{t1}], v[{a0}:{a1}], v[{t0}:{t1}]')
    e(f'v_cvt_pk_bf16_f32 v{t0}, v{t0}, v{t1}')
    e(f'v_cndmask_b32 v{t0}, v{EX+2}, v{t0}, {sp(S_M)}')
    e(f'v_lshlrev_b32 v{a0}, 16, v{t0}')
    e(f'v_and_b32 v{a1}, 0xffff0000, v{t0}')
    e('s_nop 0')
    dpp('v_mul_f32', a0, a0, a0, 'row_ror:8')
    dpp('v_mul_f32', a1, a1, a1, 'row_ror:8')
    e(f'v_cvt_pk_bf16_f32 v{a0}, v{a0}, v{a1}')
    e('s_nop 1')
    for p in range(4): mdpp(AF+4+p, a0, f'quad_perm:[{p},{p},{p},{p}]')
    e('s_nop 1')
for j in range(8):
    e(f'v_mfma_f32_16x16x32_bf16 v[{DA+4*j}:{DA+4*j+3}], v[{AF+4}:{AF+7}], v[{TD+4*j}:{TD+4*j+3}], 0')
    if TRIM and j == 0: pj(7)
e('s_mov_b32 exec_lo, 0xff0000ff')
e('s_mov_b32 exec_hi, 0')
for jj in range(4):
    if jj > 0: e('s_nop 0')
    e(f'ds_write2_b32 v14, v{DA+8*jj}, v{DA+8*jj+4} offset0:{LDS_P//4+2*jj} offset1:{LDS_P//4+2*jj+1}')
e('s_waitcnt lgkmcnt(0)')
e('s_barrier    ; D')
stamp(7)
if BF: e('s_barrier    ; F')
endpgm()
L.append(';;WARMFREE')

lab('L_p')
e(f's_cmp_ge_u32 s{S_SLOT}, 27'); e('s_cbranch_scc1 L_exit0')
getxcc()
slot9()
e('s_waitcnt lgkmcnt(0)')
e(f's_cmp_lg_u32 s{S_WAVE}, 6'); e('s_cbranch_scc1 L_p1')
c("bring this workgroup's three exchange slots (12 lines) into the L2")
e(f's_mul_i32 s{S_T0}, s{S_T}, 4608')
e(f's_lshl_b32 s{S_T1}, s{S_K}, 9')
e(f's_add_u32 s{S_T0}, s{S_T0}, s{S_T1}')
e(f's_add_u32 s{S_T0}, s{S_T0}, {EXL}')
e('v_lshrrev_b32 v1, 2, v0')
e(f's_movk_i32 s{S_T1}, 4608')
e(f'v_mul_u32_u24 v1, s{S_T1}, v1')
e('v_and_b32 v2, 3, v0')
e('v_lshlrev_b32 v2, 7, v2')
e(f'v_add3_u32 v1, v1, v2, s{S_T0}')
if TLB:
    e(f's_mul_i32 s{S_T1}, s{S_T}, {64*1152}')
    e(f's_lshl_b32 s{S_T2}, s{S_K}, 7')
    e(f's_add_u32 s{S_T1}, s{S_T1}, s{S_T2}')
    e(f's_movk_i32 s{S_T2}, {16*1152}')
    e(f'v_mul_u32_u24 v4, s{S_T2}, v0')
    e(f'v_add_u32 v4, s{S_T1}, v4')
e('s_mov_b64 exec, 0xfff')
if TLB == 1: e(f'global_load_dword v5, v4, {sp(WD)}')
bar1()
if TLB == 2: e(f'global_load_dword v5, v4, {sp(WD)}')
if not NOPT: e(f'global_load_dword v3, v1, {sp(WS)} sc1')
if GATE:
    e(f's_add_u32 s76, s76, {GATE}')
    if X0: e(f's_cmp_eq_u32 s{S_XCD}, 0'); e('s_cselect_b32 s74, 30, 0'); e('s_sub_u32 s76, s76, s74')
    lab('L_gate'); e('s_memrealtime s[72:73]'); e('s_waitcnt lgkmcnt(0)'); e('s_sub_u32 s75, s76, s72'); e('s_cmp_gt_i32 s75, 0'); e('s_cbranch_scc1 L_gate')
    e('s_barrier')
e('s_endpgm')
L.append(';;WARMFREE')
lab('L_p1')
e(f's_load_dword s{S_TAG}, {sp(WS)}, 0')
bar1()
e(f's_lshl_b32 s{S_T3}, s{S_XCC}, 12')
e(f's_add_u32 s{S_T3}, s{S_T3}, {BC}')
e(f's_add_u32 s{S_T2}, s{S_T3}, {64*NBC}')
e(f's_and_b32 s{S_T1}, s{S_WAVE}, 1')
e(f's_lshl_b32 s{S_T1}, s{S_T1}, 6')
e(f'v_lshl_add_u32 v4, v0, 2, s{S_T1}')
e(f's_lshl_b32 s{S_K}, s{S_K}, 7')
e(f's_add_u32 s{S_K}, s{S_K}, s{S_T1}')
e('v_and_b32 v10, 60, v0')
e(f'v_add_u32 v11, s{S_T1}, v10')
e('v_and_b32 v12, 1, v0')
e(f'v_cmp_eq_u32 {sp(S_M)}, 1, v12')
e('v_lshlrev_b32 v12, 2, v12')
e('v_lshl_add_u32 v12, v11, 1, v12')
if GMAP:
    e('v_and_b32 v11, 12, v0'); e('v_lshlrev_b32 v11, 2, v11')
    e('v_lshrrev_b32 v13, 4, v0'); e('v_lshl_add_u32 v11, v13, 2, v11')
    e(f'v_add_u32 v11, s{S_T1}, v11')
e('v_lshrrev_b32 v13, 4, v0')
e('v_and_b32 v14, 15, v0')
e('v_lshlrev_b32 v14, 2, v14')
e('v_lshl_add_u32 v13, v13, 7, v14')
e(f's_lshl_b32 s{S_T0}, s{S_K}, 3')
e(f's_add_u32 s{S_T0}, s{S_T0}, {ACCU}')
e(f'v_add_u32 v13, s{S_T0}, v13')
e('v_mov_b32 v7, 0')
e('s_mov_b64 exec, 0xffff')
L.append(';;WARMSPOT')
e('s_waitcnt lgkmcnt(0)')
e(f's_add_u32 s{S_TAG}, s{S_TAG}, 1')
if GATE: e('s_barrier    ; E')
stamp(1)
if NOP: e(f's_sleep {NOP}')
if SKEW >= 0:
    e('s_cmp_ge_u32 s2, 8'); e('s_cbranch_scc1 L_p_poll')
    e('s_lshl_b32 s72, s2, 2'); e('s_add_u32 s72, s72, 0x300000'); e('v_mov_b32 v20, s72'); e('v_mov_b32 v21, s76')
    e(f'global_store_dword v20, v21, {sp(WS)} sc1')
lab('L_p_poll')
e(f's_load_dwordx2 {sp(S_A)}, {sp(WS)}, s{S_T3}')
e(f's_add_u32 s{S_T3}, s{S_T3}, 64')
e(f's_cmp_ge_u32 s{S_T3}, s{S_T2}')
e('s_cbranch_scc1 L_p_slow')
e('s_waitcnt lgkmcnt(0)')
e(f's_cmp_lg_u32 s{S_A+1}, s{S_TAG}')
e('s_cbranch_scc1 L_p_poll')
lab('L_p_got')
if PCNT: e(f's_sub_u32 s{S_ST+2}, s{S_T2}, s{S_T3}'); e(f's_mov_b32 s{S_ST+3}, 0')
e(f's_andn2_b32 s{S_T1}, 0x7ff, s{S_A}')
e(f's_mul_i32 s{S_T0}, s{S_T1}, 1152')
e(f's_add_u32 s{S_T0}, s{S_T0}, s{S_K}')
e(f's_load_dwordx16 s[{S_XS}:{S_XS+15}], {sp(X)}, s{S_T0}')
stamp(2)
e(f'v_mov_b32 v6, s{S_T1}')
e(f'ds_write_b32 v7, v6 offset:{LDS_WIN}')
e('s_waitcnt lgkmcnt(0)')
stamp(3)
for d in range(16): e(f'v_writelane_b32 v5, s{S_XS+d}, {4*(d&3)+(d>>2) if GMAP else d}')
e(f'ds_write_b32 v4, v5 offset:{LDS_X}')
e('s_waitcnt lgkmcnt(0)')
e('s_barrier    ; A')
L.append(';;WARMSPOT')
e('s_mov_b64 exec, -1')
e(f'ds_read_b32 v5, v11 offset:{LDS_X}')
e(f'v_add_u32 v10, s{S_T0}, v10')
c('r_sel = bf16(sigmoid(r))')
e(f's_ashr_i32 s{S_T2}, s{S_A}, 31')
e(f's_not_b32 s{S_T2}, s{S_T2}')
e(f's_or_b32 s{S_T2}, s{S_T2}, 0x80000000')
e(f's_xor_b32 s{S_T1}, s{S_A}, s{S_T2}')
e(f's_and_b32 s{S_T1}, s{S_T1}, 0xffff0000')
e(f'v_mov_b32 v8, s{S_T1}')
e('v_mul_f32 v8, 0xbfb8aa3b, v8')
e('v_exp_f32 v8, v8')
e(f's_mov_b32 s{S_B}, 0x11111111'); e(f's_mov_b32 s{S_B+1}, 0x11111111')
e('v_add_f32 v8, 1.0, v8')
e('v_rcp_f32 v8, v8')
e(f's_lshl_b64 {sp(S_A)}, {sp(S_B)}, 2')
bf16r(8, 8)
e('s_waitcnt lgkmcnt(0)')
e('v_lshlrev_b32 v6, 16, v5')
e('v_and_b32 v5, 0xffff0000, v5')
e(f'v_cndmask_b32 v5, v6, v5, {sp(S_M)}')
e('v_fma_f32 v5, v5, 0, v5')
e('v_mov_b32 v9, 0x41b80000')
e(f'v_mov_b32 v15, s{S_TAG}')
e('s_mov_b32 exec_lo, 0x77777777'); e('s_mov_b32 exec_hi, 0x77777777')
stamp(4)
e('s_barrier    ; D')
for i in range(3):
    e(f'ds_read2st64_b32 v[{16+2*i}:{17+2*i}], v12 offset0:{LDS_P//256+2*i} offset1:{LDS_P//256+2*i+1}')
e('s_waitcnt lgkmcnt(1)' if not STAMP else 's_waitcnt lgkmcnt(0)')
e('v_pk_add_f32 v[16:17], v[16:17], v[18:19]')
e('s_waitcnt lgkmcnt(0)')
e('v_pk_add_f32 v[16:17], v[16:17], v[20:21]')
e('v_add_f32 v16, v16, v17')
e(f'v_cndmask_b32 v16, v16, 1.0, {sp(S_A)}')
e(f'global_atomic_add_f32 v17, v13, v16, {sp(WS)} sc0 sc1')
if BF: e('s_barrier    ; F')
stamp(5)
e('s_waitcnt vmcnt(0)')
stamp(6)
mdpp(18, 17, 'quad_perm:[2,2,2,2]')
e('v_add_f32 v16, v16, v17')
e('v_cmp_eq_f32 vcc, v9, v18')
bf16r(16, 16)
e(f's_and_b64 vcc, vcc, {sp(S_B)}')
e('s_cbranch_scc0 L_end')
e('v_mul_f32 v16, v16, v8')
bf16r(16, 16)
e('v_add_f32 v16, v5, v16')
e('s_nop 1')
mdpp(17, 16, 'quad_perm:[1,1,1,1]')
e('v_cvt_pk_bf16_f32 v16, v16, v17')
e('s_mov_b64 exec, vcc')
if not NOFIN: e(f'global_store_dword v10, v16, {sp(OUT)}{FOM}')
if ACK: e('s_waitcnt vmcnt(0)')
stamp(7)
c('the last adder of the first granule moves the epoch on')
e(f's_cmp_lg_u32 s{S_K}, 0'); e('s_cbranch_scc1 L_end')
e('s_and_b64 exec, vcc, 1'); e('s_cbranch_scc0 L_end')
if not NOEP: e(f'global_store_dword v7, v15, {sp(WS)}{EPM}')
if KD: e('s_memrealtime s[78:79]'); e('s_branch L_kd')
lab('L_end')
if MINI:
    e('s_memrealtime s[82:83]'); e('s_mov_b64 exec, 1')
    e(f's_lshl_b32 s{S_T0}, s2, 4'); e(f's_add_u32 s{S_T0}, s{S_T0}, s{S_WAVE}')
    e(f's_lshl_b32 s{S_T0}, s{S_T0}, 6'); e(f's_add_u32 s{S_T0}, s{S_T0}, 0x8000000')
    e(f'v_mov_b32 v2, s{S_T0}'); e('s_waitcnt lgkmcnt(0)')
    for k in range(4): e(f'v_mov_b32 v{20+k}, s{80+k}')
    e(f'global_store_dwordx4 v2, v[20:23], {sp(WS)}')
if SKEW >= 0:
    if KD: e('s_endpgm'); lab('L_kd')
    else: e('s_cmp_lg_u32 s2, 9'); e('s_cbranch_scc1 L_exit0')
    e('s_mov_b32 s72, 0x300000'); e(f's_load_dwordx8 s[64:71], {sp(WS)}, s72'); e('s_waitcnt lgkmcnt(0)')
    e('s_mov_b32 s74, s64')
    for i in range(1, 8): e(f's_min_u32 s74, s74, s{64+i}')
    if KD: e('s_sub_u32 s74, s78, s74'); e('s_min_u32 s74, s74, 2000'); e('s_mul_i32 s74, s74, 10')
    else: e(f's_sub_u32 s74, s{64+SKEW}, s74'); e('s_min_u32 s74, s74, 500'); e('s_mul_i32 s74, s74, 20')
    e('s_memrealtime s[72:73]'); e('s_waitcnt lgkmcnt(0)'); e('s_add_u32 s74, s74, s72')
    lab('L_dspin')
    e('s_memrealtime s[72:73]'); e('s_waitcnt lgkmcnt(0)')
    e('s_sub_u32 s75, s74, s72'); e('s_cmp_gt_i32 s75, 0'); e('s_cbranch_scc1 L_dspin')
if DIAG >= 0:
    e(f's_cmp_lg_u32 s2, {DIAG}'); e('s_cbranch_scc1 L_exit0')
    e('s_memrealtime s[72:73]'); e('s_waitcnt lgkmcnt(0)')
    e('s_sub_u32 s74, s72, s76'); e('s_min_u32 s74, s74, 5000'); e('s_mul_i32 s74, s74, 10'); e('s_add_u32 s74, s74, s72')
    lab('L_dspin')
    e('s_memrealtime s[72:73]'); e('s_waitcnt lgkmcnt(0)')
    e('s_sub_u32 s75, s74, s72'); e('s_cmp_gt_i32 s75, 0'); e('s_cbranch_scc1 L_dspin')
endpgm()
lab('L_seg1_end')
e('.p2align 12')

lab('L_warm_s')
e('s_endpgm')
lab('L_spare')
getxcc()
e(f's_sub_u32 s{S_T}, s2, 224')
e(f's_lshl_b32 s{S_T3}, s{S_XCC}, 12')
e(f's_add_u32 s{S_T3}, s{S_T3}, {BC}')
e(f'v_lshl_add_u32 v3, v0, 6, s{S_T3}')
e(f's_cmp_lg_u32 s{S_SLOT}, 27'); e('s_cbranch_scc1 L_s_noclr')
c('clear 9 accumulator lines, bring the broadcast lines into this L2')
e(f's_mul_i32 s{S_T0}, s{S_XCD}, {9*128}')
e(f's_addk_i32 s{S_T0}, {ACCU}')
e(f'v_lshl_add_u32 v1, v0, 4, s{S_T0}')
e('v_mov_b64 v[12:13], 0'); e('v_mov_b64 v[14:15], 0')
e(f'global_store_dwordx4 v1, v[12:15], {sp(WS)} sc1')
e(f'global_store_dwordx4 v1, v[12:15], {sp(WS)} offset:128 sc1')
if NBC < 64: e('s_mov_b32 exec_hi, 0')
e(f'global_load_dwordx2 v[8:9], v3, {sp(WS)} sc1')
if NBC < 64: e('s_mov_b32 exec_hi, -1')
lab('L_s_noclr')
e(f's_mul_i32 s{S_T0}, s{S_XCD}, {K2X}')
if SP27:
    e(f's_cmp_eq_u32 s{S_SLOT}, 27'); e(f's_cselect_b32 s{S_T1}, 32, s{S_SLOT}'); e(f's_mul_i32 s{S_T1}, s{S_T1}, {K2R}')
else: e(f's_mul_i32 s{S_T1}, s{S_SLOT}, {K2R}')
e(f's_add_u32 s{S_T0}, s{S_T0}, s{S_T1}')
e(f's_add_u32 s{S_T0}, s{S_T0}, {(K2 - 28*K2R) & 0xffffffff}')
e('v_and_b32 v41, 7, v0')
e(f'v_mul_u32_u24 v42, {K2X}, v41')
e(f'v_lshl_add_u32 v41, v41, {3 if APOLL else 7}, s{S_T0}')
if not APOLL:
    e(f's_cmp_ge_u32 s{S_T}, {NDEST}'); e('s_cbranch_scc1 L_s_nopt')
    e(f'global_load_dwordx2 v[8:9], v41, {sp(WS)} sc1')
    lab('L_s_nopt')
e(f's_lshl_b32 s{S_T0}, s{S_XCD}, {3 if APOLL else 7}')
e(f's_add_u32 s{S_T0}, s{S_T0}, {K2}')
e('v_lshrrev_b32 v2, 3, v0'); e(f'v_mul_u32_u24 v2, {K2R}, v2'); e(f'v_add3_u32 v42, v42, v2, s{S_T0}')
e(f's_movk_i32 s{S_T1}, 1152')
e(f's_movk_i32 s{S_T2}, 0x7ff')
e('v_mov_b32 v13, 0')
e('s_waitcnt lgkmcnt(0)')
e(f's_add_u32 s{S_TAG}, s{S_TAG}, 1')
e(f'v_mov_b32 v7, s{S_TAG}')
stamp(1)
e('s_barrier    ; B1')
e(f's_cmp_lt_u32 s{S_T}, {NDEST}'); e('s_cbranch_scc1 L_s_l2')
e(f's_cmp_lg_u32 s{S_SLOT}, 27'); e('s_cbranch_scc1 L_s_wait')
e(f's_mov_b32 s{S_CNT}, 0')
if L1ST: stamp(6)
lab('L_s_poll1')
if L1ST:
    e(f's_mov_b64 s[{S_ST+6}:{S_ST+7}], s[{S_ST+4}:{S_ST+5}]'); stamp(2); e('s_waitcnt lgkmcnt(0)')
    e('s_mov_b64 s[70:71], vcc')
e(f'global_load_dwordx2 v[8:9], v40, {sp(WS)} sc1')
e(f's_add_u32 s{S_CNT}, s{S_CNT}, 1')
e(f's_cmp_lg_u32 s{S_CNT}, {LOCN}')
e('s_cbranch_scc1 L_s_same1')
if A27:
    c("the key of this very workgroup is always in the local copy")
    e('v_bfe_u32 v2, v40, %d, 6' % K1SH); e('v_cmp_ne_u32 vcc, 27, v2'); e('s_mov_b64 exec, vcc')
e(f'v_add_u32 v40, {K1G-K1L}, v40')
if A27: e('s_mov_b64 exec, -1')
lab('L_s_same1')
e(f's_cmp_gt_u32 s{S_CNT}, {SPIN}')
e('s_cbranch_scc1 L_s_got1')
e('s_waitcnt vmcnt(0)')
e(f'v_cmp_ne_u32 vcc, s{S_TAG}, v9')
e('s_cbranch_vccnz L_s_poll1')
lab('L_s_got1')
stamp(7)
if L1ST: e(f's_mov_b64 s[{S_ST+2}:{S_ST+3}], s[70:71]')
for m in ('row_shr:1', 'row_shr:2', 'row_shr:4', 'row_shr:8'):
    dpp('v_max_u32', 8, 8, 8, m); e('s_nop 1')
dpp('v_max_u32', 8, 8, 8, 'row_bcast:15', '0xa')
if X0:
    e('s_nop 1'); dpp('v_max_u32', 8, 8, 8, 'row_bcast:31', '0xc')
e(f's_mov_b64 exec, {(1<<NDEST)-1:#x}' if NDEST < 32 else f's_mov_b32 exec_hi, {0xff if SP27 else 0}')
e(f'v_readlane_b32 s{S_T0}, v8, {63 if X0 else 31}')
e('s_nop 1')
e(f'v_mov_b32 v6, s{S_T0}')
e(f'global_store_dwordx2 v42, v[6:7], {sp(WS)} sc1')
if STAMP:
    stamp(5); e('s_waitcnt vmcnt(0)'); stamp(4)
if SP27:
    e('s_mov_b64 exec, -1'); e('s_branch L_s_l2')
lab('L_s_wait')
c('not a reader: take the winner from the local broadcast or the device-wide copy')
e('s_mov_b64 exec, 3')
e(f's_movk_i32 s{S_T0}, {WIN_G}'); e(f'v_writelane_b32 v3, s{S_T0}, 1')
e(f's_mov_b32 s{S_CNT}, {SPIN}')
lab('L_s_wpoll')
e(f'global_load_dwordx2 v[8:9], v3, {sp(WS)} sc1')
e(f's_sub_u32 s{S_CNT}, s{S_CNT}, 1')
e('s_cbranch_scc1 L_s_nog')
if opt('--wsleep', 0): e('s_sleep 2')
e('s_waitcnt vmcnt(0)')
e(f'v_cmp_eq_u32 vcc, s{S_TAG}, v9')
e(f'v_bfi_b32 v14, v8, 0, s{S_T2}')
e('s_cbranch_vccz L_s_wpoll')
e('s_mov_b64 exec, vcc')
e('s_branch L_s_nog')
lab('L_s_l2')
e(f's_mov_b32 s{S_CNT}, {SPIN}')
e('v_min_u32 v5, 8, v0')
e('v_lshlrev_b32 v5, 7, v5')
if SPEC or SP27:
    e(f's_cmp_ge_u32 s{S_T}, {8*NRD}'); e('s_cbranch_scc1 L_s_spec')
if APOLL:
    e('v_mov_b64 v[10:11], 0')
    for i in range(APOLL): e(f'v_not_b32 v{17+2*i}, v7')
    e('s_mov_b64 exec, 0xff')
    lab('L_s_poll')
    for i in range(APOLL):
        o = (i + 1) % APOLL
        e(f'global_atomic_add_x2 v[{16+2*i}:{17+2*i}], v41, v[10:11], {sp(WS)} sc0 sc1')
        if ASL: e(f's_sleep {ASL}')
        e(f's_waitcnt vmcnt({APOLL-1})')
        e(f'v_cmp_ne_u32 vcc, s{S_TAG}, v{17+2*o}')
        dpp('v_max_u32', 8, 16+2*o, 16+2*o, 'quad_perm:[1,0,3,2]')
        e('s_cbranch_vccz L_s_got')
    e(f's_sub_u32 s{S_CNT}, s{S_CNT}, 1')
    e('s_cbranch_scc0 L_s_poll')
    lab('L_s_got')
    stamp(2)
    e('s_nop 0')
    dpp('v_max_u32', 8, 8, 8, 'quad_perm:[2,3,0,1]'); e('s_nop 1')
    dpp('v_max_u32', 8, 8, 8, 'row_half_mirror')
    e('s_mov_b64 exec, -1')
    e(f'v_readfirstlane_b32 s{S_T0}, v8')
    e('s_nop 1')
    e(f'v_mov_b32 v6, s{S_T0}')
else:
    lab('L_s_poll')
    if STAMP:
        e(f's_mov_b64 s[{S_ST+12}:{S_ST+13}], s[{S_ST+10}:{S_ST+11}]'); stamp(5); e('s_waitcnt lgkmcnt(0)')
    e(f'global_load_dwordx2 v[8:9], v41, {sp(WS)} sc1')
    e(f's_sub_u32 s{S_CNT}, s{S_CNT}, 1')
    e('s_cbranch_scc1 L_s_got')
    e('s_waitcnt vmcnt(0)')
    e(f'v_cmp_ne_u32 vcc, s{S_TAG}, v9')
    dpp('v_max_u32', 8, 8, 8, 'quad_perm:[1,0,3,2]')
    e('s_cbranch_vccnz L_s_poll')
    lab('L_s_got')
    stamp(2)
    e('s_nop 0')
    dpp('v_max_u32', 8, 8, 8, 'quad_perm:[2,3,0,1]'); e('s_nop 1')
    dpp('v_max_u32', 6, 8, 8, 'row_half_mirror')
if NBC < 64: e('s_mov_b32 exec_hi, 0')
e(f'global_store_dwordx2 v3, v[6:7], {sp(WS)}')
e(f'v_bfi_b32 v14, v6, 0, s{S_T2}')
e(f'v_mad_u32_u24 v5, v14, s{S_T1}, v5')
e(f'global_load_dword v39, v5, {sp(X)}')
stamp(3)
e(f's_cmp_lg_u32 s{S_T}, 7')
e('s_cbranch_scc1 L_s_nog')
e(f'v_mov_b32 v5, {WIN_G}')
e('s_mov_b64 exec, 1')
e(f'global_store_dwordx2 v5, v[6:7], {sp(WS)} sc1')
lab('L_s_nog')
e(f'ds_write_b32 v13, v14 offset:{LDS_WIN}')
e('s_waitcnt lgkmcnt(0)')
e('s_barrier    ; A')
e('s_barrier    ; D')
if BF: e('s_barrier    ; F')
lab('L_s_end')
endpgm()

if SPEC or SP27:
    lab('L_s_spec')
    c("this spare pulls every candidate row into the L2 as its key arrives")
    e('v_lshrrev_b32 v12, 3, v0'); e('v_lshlrev_b32 v12, 7, v12')
    lab('L_s_spoll')
    e(f'global_load_dwordx2 v[8:9], v41, {sp(WS)} sc1')
    e(f's_sub_u32 s{S_CNT}, s{S_CNT}, 1')
    e('s_cbranch_scc1 L_s_got')
    e('s_waitcnt vmcnt(0)')
    e(f'v_cmp_eq_u32 vcc, s{S_TAG}, v9')
    e(f'v_bfi_b32 v10, v8, 0, s{S_T2}')
    e(f'v_mad_u32_u24 v11, v10, s{S_T1}, v12')
    e('s_and_b64 exec, vcc, -1')
    e('s_cbranch_scc0 L_s_snone')
    e(f'global_load_dword v38, v11, {sp(X)}')
    e(f'global_load_dword v38, v11, {sp(X)} offset:128')
    lab('L_s_snone')
    e('s_mov_b64 exec, -1')
    dpp('v_max_u32', 8, 8, 8, 'quad_perm:[1,0,3,2]')
    e('s_cmp_eq_u64 vcc, -1')
    e('s_cbranch_scc0 L_s_spoll')
    e('s_branch L_s_got')
e('.p2align 6')
lab('L_warm_r')
e('s_endpgm')
lab('L_r2')
for i in range(4): e(f'v_mov_b32 v{ACC+i}, 0')
e('v_sub_u32 v6, 0xffff, v1')
e(f'v_add_u32 v7, {K1G-K1L}, v3')
e(f's_mov_b32 s{S_T2}, 0xffff0000')
KY = 84
if WLDS:
    if RST: e('s_waitcnt lgkmcnt(0)'); stamp(7)
    e(f's_waitcnt vmcnt({9+RPT})')
    if RST: stamp(5)
    for cc in range(9): e(f'ds_read_b128 v[{WW+4*cc}:{WW+4*cc+3}], v2 offset:{LDS_W+128*cc}')
e('s_waitcnt lgkmcnt(0)')
e(f's_add_u32 s{S_TAG}, s{S_TAG}, 1')
e(f'v_mov_b32 v{KY+1}, s{S_TAG}')
e(f's_cmp_ge_u32 s{S_SLOT}, 27')
for cc in range(9):
    e(f's_waitcnt vmcnt({8-cc+RPT})')
    if RST and cc == 0: stamp(6)
    for d in range(4): e(f'v_dot2c_f32_bf16 v{ACC+d}, v{XR+4*cc+d}, v{WW+4*cc+d}')
stamp(2)
e('s_nop 2')
e(f'v_pk_add_f32 v[{ACC}:{ACC+1}], v[{ACC}:{ACC+1}], v[{ACC+2}:{ACC+3}]')
e(f'v_add_f32 v{ACC}, v{ACC}, v{ACC+1}')
for m in ['quad_perm:[1,0,3,2]', 'quad_perm:[2,3,0,1]', 'row_half_mirror']:
    e('s_nop 1'); dpp('v_add_f32', ACC, ACC, ACC, m)
K0, K1 = KY+2, KY+3
e(f'v_cmp_o_f32 vcc, v{ACC}, v{ACC}')
e(f'v_cvt_pk_bf16_f32 v{K0}, v{ACC}, v{ACC}')
e(f'v_ashrrev_i32 v{K1}, 31, v{K0}')
e(f'v_or_b32 v{K1}, 0x80000000, v{K1}')
e(f'v_xor_b32 v{K0}, v{K0}, v{K1}')
e(f'v_cndmask_b32 v{K0}, 0, v{K0}, vcc')
e(f'v_and_or_b32 v{KY}, v{K0}, s{S_T2}, v6')
e('s_nop 1'); dpp('v_max_u32', KY, KY, KY, 'row_shr:8')
e('s_nop 1'); dpp('v_max_u32', KY, KY, KY, 'row_bcast:15', '0xa')
e('s_nop 1'); dpp('v_max_u32', KY, KY, KY, 'row_bcast:31', '0xc')
e('s_mov_b32 exec_lo, 0'); e('s_brev_b32 exec_hi, 1')
e('s_cbranch_scc0 L_r_k1')
e('s_barrier    ; B1')
lab('L_r_k1')
e(f'global_store_dwordx2 v3, v[{KY}:{KY+1}], {sp(WS)}')
if L1ST: stamp(7)
e('s_cbranch_scc1 L_r_k2')
if HOLD: e('s_barrier    ; B1')
lab('L_r_k2')
if A27: e(f's_cmp_eq_u32 s{S_SLOT}, 27'); e('s_cbranch_scc1 L_r_k3')
e(f'global_store_dwordx2 v7, v[{KY}:{KY+1}], {sp(WS)} sc1')
if A27: lab('L_r_k3')
e('s_mov_b64 exec, -1')
stamp(3)
e(f'v_mov_b32 v{K1}, 0x207')
e(f'v_cmp_class_f32 vcc, v{ACC}, v{K1}')
e('s_cbranch_vccnz L_r_fix')
lab('L_r_nofix')
if GATE:
    e(f's_cmp_ge_u32 s{S_SLOT}, 27'); e('s_cbranch_scc1 L_r_noe'); e('s_barrier'); lab('L_r_noe')
def copy_rows(m=ONT):
    if NOCOPY == 1 or (NOCOPY == 2 and m == '') or (NOCOPY == 3 and m != ''): return
    for cc in range(9):
        e(f'global_store_dwordx4 v4, v[{XR+4*cc}:{XR+4*cc+3}], {sp(OUT)} offset:{128*cc}{m}')
if CP == 'E':
    e(f'v_readlane_b32 s{S_T1}, v{KY}, 63')
    e(f's_andn2_b32 s{S_T1}, 0x7ff, s{S_T1}')
    e(f'v_cmp_ne_u32 vcc, s{S_T1}, v1')
    e('s_mov_b64 exec, vcc')
    copy_rows()
    e('s_not_b64 exec, vcc')
e('s_barrier    ; A')
e('v_mov_b32 v2, 0')
e(f'ds_read_b32 v2, v2 offset:{LDS_WIN}')
e('s_waitcnt lgkmcnt(0)')
e('v_cmp_ne_u32 vcc, v2, v1')
if CP == 'D': e('s_barrier    ; D')
if BF: e('s_barrier    ; F')
stamp(4)
e('s_and_b64 exec, exec, vcc')
if CP == 'E': e('s_cbranch_scc0 L_r_end')
if SPL:
    e(f's_cmp_ge_u32 s{S_SLOT}, 27'); e('s_cbranch_scc1 L_r_plain')
copy_rows()
lab('L_r_end')
if CP != 'D': e('s_barrier    ; D')
if STAMP and not RST:
    stamp(5); e('s_waitcnt vmcnt(0)'); stamp(6)
endpgm()

if SPL:
    lab('L_r_plain')
    copy_rows('')
    e('s_branch L_r_end')
lab('L_w_far')
c('partners may sit on another die: publish a device-wide copy, then alternate between the two copies')
e(f's_cmp_gt_u32 s{S_CNT}, {SPIN}')
e('s_cbranch_scc1 L_w_go')
e(f'v_xor_b32 v13, {EXG^EXL}, v13')
e(f's_xor_b32 s{S_TB+3}, s{S_TB+3}, s{S_XCC}')
e(f's_cmp_lg_u32 s{S_CNT}, {LOCN}')
e('s_cbranch_scc1 L_w_same')
e(f'v_xor_b32 v12, {EXG^EXL}, v12')
e(f'v_xor_b32 v{AF+3}, s{S_XCC}, v{AF+3}')
e('s_mov_b32 exec_hi, 0')
e(f'global_store_dwordx4 v12, v[{AF}:{AF+3}], {sp(WS)} sc1')
e('s_mov_b32 exec_hi, -1')
if ROLL:
    lab('L_w_same')
    e('s_waitcnt vmcnt(0)')
    EX = EX0
    five_loads()
    e('s_branch L_w_chk')
else: e('s_branch L_w_same')
lab('L_p_slow')
e(f'v_mov_b32 v6, {WIN_G}')
e(f's_mov_b32 s{S_CNT}, {SPIN}')
lab('L_p_slowpoll')
e(f'global_load_dwordx2 v[8:9], v6, {sp(WS)} sc1')
e('s_waitcnt vmcnt(0) lgkmcnt(0)')
e(f'v_readfirstlane_b32 s{S_A}, v8')
e(f'v_readfirstlane_b32 s{S_A+1}, v9')
e(f's_sub_u32 s{S_CNT}, s{S_CNT}, 1')
e('s_cbranch_scc1 L_p_got')
e(f's_cmp_lg_u32 s{S_A+1}, s{S_TAG}')
e('s_cbranch_scc1 L_p_slowpoll')
e('s_branch L_p_got')
if STAMP:
    lab('L_flush')
    e('s_waitcnt vmcnt(0) lgkmcnt(0)')
    e('s_mov_b64 exec, 1')
    e('s_sleep 40')
    e(f's_lshl_b32 s{S_T0}, s2, 4'); e(f's_add_u32 s{S_T0}, s{S_T0}, s{S_WAVE}')
    e(f's_lshl_b32 s{S_T0}, s{S_T0}, 6'); e(f's_add_u32 s{S_T0}, s{S_T0}, 0x8000000')
    e(f'v_mov_b32 v2, s{S_T0}')
    for i in range(4):
        for k in range(4): e(f'v_mov_b32 v{4+k}, s{S_ST+4*i+k}')
        e(f'global_store_dwordx4 v2, v[4:7], {sp(WS)} offset:{16*i}'); e('s_nop 1')
    e('s_endpgm')
lab('L_r_fix')
c('x + x*0 turns an infinity into a NaN')
e(f's_mov_b32 s{S_SELHI}, 0x07060302')
for d in range(36):
    r = XR + d
    e(f'v_lshlrev_b32 v{K0}, 16, v{r}')
    e(f'v_and_b32 v{K1}, s{S_T2}, v{r}')
    e(f'v_fma_f32 v{K0}, v{K0}, 0, v{K0}')
    e(f'v_fma_f32 v{K1}, v{K1}, 0, v{K1}')
    e(f'v_perm_b32 v{r}, v{K1}, v{K0}, s{S_SELHI}')
e('s_branch L_r_nofix')

hdr = f'''; Mixture-of-depths block, capacity 1: r = x.w_r, the row with the largest r goes through a SwiGLU FFN
;   waves 0-2 (W) : workgroups 0..215 stream w_gate/w_up (64 rows x 64 columns, both matrices) and w_down
;                   (64 rows x 64 columns) into registers while the argmax is still being found; 9 workgroups
; @launch grid=(256,1,1) block=(512,1,1) lds={LDS_BYTES}
.amdgcn_target "amdgcn-amd-amdhsa--gfx950"
.text
.globl standalone__moe_arch_mod__prompt_kernel
.p2align 12
.fill {(4096-768)//4}, 4, 0xBF800000
.p2align 8
.type standalone__moe_arch_mod__prompt_kernel,@function
standalone__moe_arch_mod__prompt_kernel:'''
tail = '''.section .rodata,"a"
.p2align 6
.amdhsa_kernel standalone__moe_arch_mod__prompt_kernel
  .amdhsa_next_free_vgpr 184
  .amdhsa_next_free_sgpr %SG%
  .amdhsa_accum_offset 184
  .amdhsa_group_segment_fixed_size 0
  .amdhsa_kernarg_size 64
  .amdhsa_user_sgpr_count 2
  .amdhsa_user_sgpr_kernarg_segment_ptr 1
  .amdhsa_system_sgpr_workgroup_id_x 1
  .amdhsa_float_denorm_mode_32 3
.end_amdhsa_kernel
'''
tail = tail.replace('%SG%', '96' if (STAMP or MINI or DIAG >= 0 or SKEW >= 0 or GATE) else '64')
def offsets(lines):
    out = []; k = 0
    for ln in lines:
        if ln.startswith(';;WARM'): out.append(f'MK{k}:'); k += 1
        else: out.append(ln)
    src = hdr.replace('.fill 832,', '.fill 1024,') + '\n' + '\n'.join(out) + '\nL_warm1:\nL_warm2:\nL_warm3:\n' + tail
    d = tempfile.mkdtemp()
    open(d + '/a.s', 'w').write(src)
    subprocess.run(['clang', '-x', 'assembler', '-target', 'amdgcn-amd-amdhsa', '-mcpu=gfx950', '-c', d + '/a.s', '-o', d + '/a.o'], check=True)
    t = subprocess.run(['llvm-objdump', '-t', d + '/a.o'], capture_output=True, text=True).stdout
    sy = {m.group(2): int(m.group(1), 16) for m in re.finditer(r'^([0-9a-f]{16}) .*\.text\s+[0-9a-f]+ (?:\.protected |\.hidden )?(\S+)$', t, re.M)}
    base = sy['standalone__moe_arch_mod__prompt_kernel']
    return {n: v - base for n, v in sy.items()}
offs = offsets(L)
marks = [(i, ln) for i, ln in enumerate(L) if ln.startswith(';;WARM')]
mo = [offs[f'MK{k}'] for k in range(len(marks))]
chosen = []
segs = [(0, offs['L_end'])]
shift = 0
for (a, b) in segs:
    pass
    covered = ((a + shift) // 64) * 64 + 1088
    while covered < b + shift + 8:
        cand = [k for k in range(len(marks)) if a <= mo[k] < b and mo[k] + shift + 4 < covered + 64 and (not chosen or k > chosen[-1])]
        assert cand, (covered, mo, segs)
        k = cand[-1]
        sp4 = marks[k][1].startswith(';;WARMSPOT')
        pos = mo[k] + shift + (4 if sp4 else 0)
        chosen.append(k); shift += 8 if sp4 else 4
        nc = (pos // 64) * 64 + 1088
        assert nc > covered, (nc, covered, mo)
        covered = nc
assert offs['L_seg1_end'] + 20 < 4096
names = {k: n + 1 for n, k in enumerate(chosen)}
nst = len(chosen)
outl = []; k = 0
for ln in L:
    if ln.startswith(';;WARM'):
        if k in names:
            n = names[k]
            tgt = f'L_warm{n+3}' if n + 3 <= nst else 'L_p'
            if ln.startswith(';;WARMSPOT'): outl.append(f'    s_branch L_skip{n}')
            outl.append(f'L_warm{n}:'); outl.append(f'    s_branch {tgt}')
            if ln.startswith(';;WARMSPOT'): outl.append(f'L_skip{n}:')
        k += 1
    elif ln == 'L_p:':
        for n in range(nst + 1, 4): outl.append(f'L_warm{n}:')
        outl.append(ln)
    else: outl.append(ln)
sys.stderr.write(f'chosen {[mo[k] for k in chosen]} ' + ' '.join(f'{n}={v}' for n, v in sorted(offs.items(), key=lambda x: x[1]) if n in ('L_w','L_w_poll','L_p','L_end','L_seg1_end','L_r2','L_spare','L_s_end','L_r_end')) + '\n')
print(hdr); print('\n'.join(outl)); print(tail)
```

```python
import sys, subprocess, re, tempfile
def opt(name, d):
    a = sys.argv
    return type(d)(a[a.index(name)+1]) if name in a else d
def mod(name, d):
    v = opt(name, d); return '' if v == '-' else ' ' + v.replace('+', ' ')
STAMP = '--stamp' in sys.argv
MINI = '--mini' in sys.argv
WING = opt('--wing', 8); WIND = opt('--wind', 10); WIN0 = opt('--win0', 7)
NT = mod('--nt', 'nt'); XNT = mod('--xnt', '-'); ONT = mod('--ont', 'sc1')
CP = opt('--cp', 'D')
DIAG = opt('--diag', -1)
HOLD = opt('--hold', 1); WLAST = opt('--wlast', 0); LIGHT = opt('--light', 0)
WLDS = opt('--wlds', 1); TLB = opt('--tlb', 0); ACK = opt('--ack', 0)
K1SH = opt('--k1sh', 7)
SKEW = opt('--skew', -1)
X0 = opt('--x0', 0); APOLL = opt('--apoll', 1); ASL = opt('--asl', 0); SPEC = opt('--spec', 0)
B0 = opt('--b0', 0)
NOP = opt('--nop', 0); NOPT = opt('--nopt', 0); WST = opt('--wst', 0)
RST = opt('--rst', 0); LATE = opt('--late', 1); SPX = opt('--spx', 0)
NRD = opt('--nrd', 4); NBC = opt('--nbc', 64)
SPL = opt('--spl', 1)
ND1 = opt('--nd1', 8)
NOCOPY = opt('--nocopy', 0); EXM = mod('--exm', '-'); FOM = mod('--fom', '-')
EPM = mod('--epm', '-')
NOEP = opt('--noep', 0); NOFIN = opt('--nofin', 0); EARLYST = opt('--est', 0)
KD = opt('--kdiag', 0)
if KD: SKEW = 0
ROLL = opt('--roll', 1)
WEP = opt('--wep', 0); GMAP = opt('--gmap', 1); WSL = opt('--wsl', 0)
RPT = opt('--rpt', 1); WE0 = opt('--we0', 0)
PCNT = opt('--pcnt', 0)
K2X = opt('--k2x', 128); K2R = opt('--k2r', 8192)
TRIM = opt('--trim', 1)
GATE = opt('--gate', 0); ND0 = opt('--nd0', 0)
L1ST = opt('--l1st', 0)
A27 = opt('--a27', 1); APT = opt('--apt', 1)
SP27 = opt('--sp27', 0)
BF = opt('--bf', 1); TB = opt('--tb', 6)
WK = opt('--wk', 0)
ILV = opt('--ilv', 1)
BX = opt('--bx', 0)
if BX: BF = 0
SPIN = 100000
LOCN = opt('--locn', 60)

NDEST = 8 * (NRD + SPEC)
L = []
def e(s): L.append('    ' + s)
def lab(s): L.append(s + ':')
def c(s): L.append('    ; ' + s)
X, WR, WG, WU, WD, OUT, DBG, WS = 4, 6, 8, 10, 12, 14, 16, 18
def sp(n): return f's[{n}:{n+1}]'
S_WAVE, S_XCD, S_SLOT = 20, 21, 22
S_T0, S_T1, S_T2, S_T3 = 23, 24, 25, 26
S_SELLO, S_SELHI = 27, 28
S_CNT, S_TAG, S_T, S_K = 29, 30, 31, 32
S_XCC = 33
S_A, S_B = 34, 36
S_TB = 38; S_PS = 42
S_M = 46
S_XS = 48
S_ST = 80
K1L, K1G, WIN_G, ACCU, BC, K2, EXL, EXG = 0x20000, 0x30000, 0x3000, 0x4000, 0x8000, 0x40000, 0x100000, 0x180000
LDS_X, LDS_WIN, LDS_P = 0, 128, 256
LDS_W = 2048
LDS_BYTES = 3328

def stamp(i):
    if STAMP: e(f's_memrealtime s[{S_ST+2*i}:{S_ST+2*i+1}]')
def endpgm():
    e('s_branch L_flush' if STAMP else 's_endpgm')
def dpp(op, d, a, b, m, rm='0xf'):
    e(f'{op}_dpp v{d}, v{a}, v{b} {m} row_mask:{rm} bank_mask:0xf')
def mdpp(d, a, m, rm='0xf'):
    e(f'v_mov_b32_dpp v{d}, v{a} {m} row_mask:{rm} bank_mask:0xf')
def perms(raw, T, p):
    for j in range(8):
        sel = S_SELHI if (j & 1) else S_SELLO
        e(f'v_perm_b32 v{T+4*j+p}, v{raw+4*(2*p+1)+j//2}, v{raw+4*(2*p)+j//2}, s{sel}')
def bf16r(d, s):
    e(f'v_cvt_pk_bf16_f32 v{d}, v{s}, v{s}'); e(f'v_lshlrev_b32 v{d}, 16, v{d}')
def slot9():
    e(f's_mul_i32 s{S_T0}, s{S_SLOT}, 57')
    e(f's_lshr_b32 s{S_T0}, s{S_T0}, 9')
    e(f's_mul_i32 s{S_K}, s{S_T0}, 9')
    e(f's_sub_u32 s{S_K}, s{S_SLOT}, s{S_K}')
    e(f's_mul_i32 s{S_T}, s{S_XCD}, 3')
    e(f's_add_u32 s{S_T}, s{S_T}, s{S_T0}')
    e(f's_mul_i32 s{S_T}, s{S_T}, 3')
b1n = [0]
def bar1():
    if not HOLD: return
    if X0:
        b1n[0] += 1
        e(f's_cmp_eq_u32 s{S_XCD}, 0'); e(f's_cbranch_scc1 L_nob{b1n[0]}')
        e('s_barrier    ; B1')
        lab(f'L_nob{b1n[0]}')
    else: e('s_barrier')
def getxcc(): e(f's_getreg_b32 s{S_XCC}, hwreg(HW_REG_XCC_ID, 0, 3)')

if MINI and EARLYST: e('s_memrealtime s[80:81]')
e('s_load_dwordx16 s[4:19], s[0:1], 0')
e('s_cmp_ge_u32 s2, 256')
e('s_cbranch_scc1 L_exit0')
stamp(0)
if MINI and not EARLYST: e('s_memrealtime s[80:81]')
if DIAG >= 0 or SKEW >= 0 or GATE: e('s_memrealtime s[76:77]')
e(f'v_readfirstlane_b32 s{S_WAVE}, v0')
e('v_and_b32 v0, 63, v0')
e(f's_and_b32 s{S_XCD}, s2, 7')
e(f's_lshr_b32 s{S_SLOT}, s2, 3')
e(f's_lshr_b32 s{S_WAVE}, s{S_WAVE}, 6')
if STAMP:
    for i in range(1, 8): e(f's_mov_b64 s[{S_ST+2*i}:{S_ST+2*i+1}], 0')
e(f's_cmp_lt_u32 s{S_WAVE}, 4'); e('s_cbranch_scc1 L_notp')
if B0: e('s_barrier    ; B0')
if WK == 1: e('s_waitcnt lgkmcnt(0)')
if WK > 1: e(f's_sleep {WK}')
e(f's_cmp_eq_u32 s{S_WAVE}, 4'); e('s_cbranch_scc1 L_warm1')
e(f's_cmp_eq_u32 s{S_WAVE}, 5'); e('s_cbranch_scc1 L_warm2')
e(f's_cmp_eq_u32 s{S_WAVE}, 6'); e('s_cbranch_scc1 L_warm3')
e('s_branch L_warm_r')
lab('L_spare0')
if X0:
    e(f's_cmp_eq_u32 s{S_WAVE}, 1'); e('s_cbranch_scc1 L_rx')
e(f's_cmp_lg_u32 s{S_WAVE}, 0'); e('s_cbranch_scc1 L_warm_s')
e(f's_lshl_b32 s{S_T1}, s{S_XCD}, {6+K1SH}')
e(f's_add_u32 s{S_T1}, s{S_T1}, {K1L}')
if X0:
    e(f's_cmp_eq_u32 s{S_XCD}, 0')
    e(f's_cselect_b32 s{S_T2}, 27, 0'); e(f's_cselect_b32 s{S_T3}, 31, 35')
    e(f'v_max_u32 v40, s{S_T2}, v0'); e(f'v_min_u32 v40, s{S_T3}, v40')
else: e('v_min_u32 v40, 31, v0')
e(f'v_lshl_add_u32 v40, v40, {K1SH}, s{S_T1}')
e('s_waitcnt lgkmcnt(0)')
e(f's_load_dword s{S_TAG}, {sp(WS)}, 0')
if not RPT or APT:
    e(f's_cmp_lg_u32 s{S_SLOT}, 27'); e('s_cbranch_scc1 L_spare')
    c('the first spare of each group brings the key lines into this L2')
    e(f'global_load_dwordx2 v[8:9], v40, {sp(WS)} sc1')
e('s_branch L_spare')
lab('L_exit0')
e('s_endpgm')
lab('L_notp')
e(f's_cmp_lg_u32 s{S_WAVE}, 3'); e('s_cbranch_scc1 L_w')

XR, WW, ACC = 8, 44, 80
c('router wave: rows 8*wg + (l>>3), bytes 128c + 16*(l&7)')
e(f's_lshl_b32 s{S_T1}, s2, 3')
if X0:
    e(f's_cmp_lg_u32 s{S_XCD}, 0'); e('s_cbranch_scc1 L_r1')
    e(f's_cmp_ge_u32 s{S_SLOT}, 27'); e('s_cbranch_scc1 L_r1')
    e('s_endpgm')
    lab('L_rx')
    c('extra router wave: takes the rows of workgroup 8e, e = min(7*(31-slot) + xcd-1, 26)')
    e(f's_cmp_eq_u32 s{S_SLOT}, 27'); e('s_cbranch_scc1 L_exit0')
    e(f's_cmp_eq_u32 s{S_XCD}, 0'); e('s_cbranch_scc1 L_exit0')
    e(f's_mul_i32 s{S_T1}, s{S_SLOT}, -7')
    e(f's_add_u32 s{S_T1}, s{S_T1}, s{S_XCD}')
    e(f's_addk_i32 s{S_T1}, {7*31-1}')
    e(f's_min_u32 s{S_T1}, s{S_T1}, 26')
    e(f's_lshl_b32 s{S_T1}, s{S_T1}, 6')
    e(f's_addk_i32 s{S_SLOT}, 4')
    lab('L_r1')
e('s_setprio 3')
e('v_lshrrev_b32 v1, 3, v0')
e(f'v_add_u32 v1, s{S_T1}, v1')
e('v_and_b32 v2, 7, v0')
e('v_lshlrev_b32 v2, 4, v2')
e(f's_movk_i32 s{S_T2}, 1152')
e(f'v_mad_u32_u24 v4, v1, s{S_T2}, v2')
e(f's_lshl_b32 s{S_T0}, s{S_XCD}, 6')
e(f's_add_u32 s{S_T0}, s{S_T0}, s{S_SLOT}')
e(f's_lshl_b32 s{S_T0}, s{S_T0}, {K1SH}')
e(f's_add_u32 s{S_T0}, s{S_T0}, {K1L}')
e(f'v_mov_b32 v3, s{S_T0}')
if WLDS:
    e('v_lshlrev_b32 v5, 4, v0')
    e(f's_movk_i32 m0, {LDS_W}')
e('s_waitcnt lgkmcnt(0)')
def wl():
    if WLDS:
        e(f'global_load_lds_dwordx4 v5, {sp(WR)}')
        e('s_mov_b64 exec, 0xff')
        e(f'global_load_lds_dwordx4 v5, {sp(WR)} offset:1024')
        e('s_mov_b64 exec, -1')
        return
    for cc in range(9): e(f'global_load_dwordx4 v[{WW+4*cc}:{WW+4*cc+3}], v2, {sp(WR)} offset:{128*cc}')
if not WLAST: wl()
for cc in range(9): e(f'global_load_dwordx4 v[{XR+4*cc}:{XR+4*cc+3}], v4, {sp(X)} offset:{128*cc}{XNT}')
if WLAST: wl()
if RPT: e(f'global_load_dword v{ACC+8}, v3, {sp(WS)} sc1')
e(f's_load_dword s{S_TAG}, {sp(WS)}, 0')
if B0: e('s_barrier    ; B0')
stamp(1)
e('s_branch L_r2')

lab('L_w')
e(f's_cmp_ge_u32 s{S_SLOT}, 27'); e('s_cbranch_scc1 L_spare0')
RAW, TX, DA, AF = 16, 112, 144, 176
slot9()
e(f's_add_u32 s{S_T}, s{S_T}, s{S_WAVE}')
c('G: row = 64k + 32u + ' + ('8*(e>>1) + 2*(l>>4) + (e&1)' if GMAP else '8*(l>>4) + e') + ' ; col bytes = 128c + 16*(l&7) ; matrix = (l>>3)&1')
e('v_lshrrev_b32 v8, 4, v0')
e(f's_lshl_b32 s{S_T0}, s{S_K}, {5 if GMAP else 3}')
e(f'v_add_u32 v1, s{S_T0}, v8')
e(f's_mov_b32 s{S_T1}, {2*9216 if GMAP else 8*9216}')
e(f'v_mul_lo_u32 v1, v1, s{S_T1}')
e('v_and_b32 v9, 7, v0')
e('v_lshlrev_b32 v9, 4, v9')
e(f's_lshl_b32 s{S_T2}, s{S_T}, 7')
e(f'v_add3_u32 v1, v1, v9, s{S_T2}')
e('v_and_b32 v10, 8, v0')
e('v_cmp_ne_u32 vcc, 0, v10')
e(f's_mov_b32 s{S_A}, 9216'); e(f's_mov_b32 s{S_A+1}, 0')
e(f's_mov_b32 s{S_B}, {7*9216 if GMAP else 25*9216}'); e(f's_mov_b32 s{S_B+1}, 0')
e('s_waitcnt lgkmcnt(0)')
e(f'v_mov_b32 v2, s{WG}'); e(f'v_mov_b32 v3, s{WG+1}')
e(f'v_mov_b32 v4, s{WU}'); e(f'v_mov_b32 v5, s{WU+1}')
e('v_cndmask_b32 v2, v2, v4, vcc'); e('v_cndmask_b32 v3, v3, v5, vcc')
e('v_add_co_u32 v2, vcc, v2, v1')
e(f's_load_dword s{S_TAG}, {sp(WS)}, 0')
if not B0: e('s_nop 0')
if B0: e('s_barrier    ; B0')
e('v_addc_co_u32 v3, vcc, 0, v3, vcc')
DOFF = [-2880, -1728, 1728, 2880]
def wload(n):
    if n < 16:
        e(f'global_load_dwordx4 v[{RAW+4*n}:{RAW+4*n+3}], v[2:3], off{NT}')
        if n < 15: e(f'v_lshl_add_u64 v[2:3], v[2:3], 0, {sp(S_B if (n & 1 if GMAP else n == 7) else S_A)}')
    else:
        r = n - 16
        e(f'global_load_dwordx4 v[{RAW+4*n}:{RAW+4*n+3}], v{6+r//4}, {sp(WD)} offset:{DOFF[r%4]}{NT}')
TG = [TX, RAW]; TD = RAW + 32
def gperm(pair): perms(RAW + 32*(pair//4), TG[pair//4], pair % 4)
if not LATE:
    for n in range(WIN0): wload(n)
c('D: row = 64c + 32*(kg&1) + 16*m + 2*(kg>>1) + {0,1,4,5,8,9,12,13} ; col bytes = 128k + 16q')
e('v_and_b32 v6, 24, v0')
e('v_lshlrev_b32 v6, 1, v6')
e('v_lshrrev_b32 v7, 5, v0')
e('v_lshl_add_u32 v6, v7, 1, v6')
e(f's_lshl_b32 s{S_T0}, s{S_T}, 6')
e(f'v_add_u32 v6, s{S_T0}, v6')
e(f's_movk_i32 s{S_T1}, 1152')
e(f'v_mul_lo_u32 v6, v6, s{S_T1}')
e(f's_lshl_b32 s{S_T3}, s{S_K}, 7')
e(f's_add_u32 s{S_T3}, s{S_T3}, 2880')
e(f'v_add3_u32 v6, v6, v9, s{S_T3}')
e('v_add_u32 v7, 9216, v6')
e(f's_mov_b32 s{S_SELLO}, 0x05040100')
e(f's_mov_b32 s{S_SELHI}, 0x07060302')
c('A-fragment LDS address, exchange addresses, partial LDS address')
e('v_lshlrev_b32 v11, 4, v8')
e(f's_mul_i32 s{S_T0}, s{S_T}, 4608')
e(f's_add_u32 s{S_T0}, s{S_T0}, {EXL+2048}')
e(f'v_lshl_add_u32 v13, v0, 4, s{S_T0}')
e(f's_lshl_b32 s{S_T1}, s{S_K}, 9')
e(f's_add_u32 s{S_T0}, s{S_T0}, s{S_T1}')
e(f's_sub_u32 s{S_T0}, s{S_T0}, 2048')
e('v_and_b32 v12, 4, v0'); e('v_lshlrev_b32 v12, 6, v12')
e('v_lshl_add_u32 v12, v10, 4, v12')
e('v_and_b32 v14, 3, v0'); e('v_lshl_add_u32 v12, v14, 5, v12')
e(f'v_add3_u32 v12, v12, v11, s{S_T0}')
if not TRIM: e(f'v_cmp_eq_u32 {sp(S_M)}, 0, v10')
e(f's_lshl_b32 s{S_T0}, s{S_WAVE}, 9')
e('v_lshlrev_b32 v14, 5, v10')
e('v_lshl_add_u32 v14, v9, 1, v14')
e(f'v_add_u32 v14, s{S_T0}, v14')
getxcc()
if TB == 8:
    for i in range(4): e(f's_mov_b32 s{S_PS+i}, {0x07060500+i:#x}')
if LATE:
    for n in range(WE0): wload(n)
    if WEP or WSL:
        if X0: e(f's_cmp_eq_u32 s{S_XCD}, 0'); e('s_cbranch_scc1 L_w_nodl')
        if WEP: e('s_waitcnt lgkmcnt(0)')
        if WSL: e(f's_sleep {WSL}')
        lab('L_w_nodl')
    for n in range(WE0, WIN0): wload(n)
L.append(';;WARMSPOT')
bar1()
stamp(1)
done_pairs = 0; got = 0
NI = 16 + ND1
for n in range(WIN0, NI):
    w = WING if n < 16 else WIND
    if GATE and n == 16 + ND0: e('s_barrier    ; E')
    need = n - w + 1
    if need > got:
        e(f's_waitcnt vmcnt({w-1})'); got = need
    wload(n)
    while done_pairs < 8 and 2*done_pairs + 2 <= got:
        gperm(done_pairs); done_pairs += 1
    if n == WING + 2:
        e('s_waitcnt lgkmcnt(0)')
        e(f's_add_u32 s{S_TAG}, s{S_TAG}, 1')
        e(f's_lshl_b32 s{S_T0}, s{S_XCC}, {3*TB}')
        e(f's_xor_b32 s{S_TAG}, s{S_TAG}, s{S_T0}')
        for i in range(4): e(f's_bfe_u32 s{S_TB+i}, s{S_TAG}, {(TB<<16)|(TB*i)}')
        if TB == 8: e(f'v_mov_b32 v15, s{S_TAG}')
    L.append(';;WARMSPOT')
while done_pairs < (4 if ND1 == 8 else 7):
    e(f's_waitcnt vmcnt({NI - (2*done_pairs+2)})'); gperm(done_pairs); done_pairs += 1
if WST:
    e('s_waitcnt vmcnt(8)'); stamp(1); e('s_waitcnt vmcnt(0)')
stamp(2)
e('s_barrier    ; A')
e(f'ds_read_b128 v[{AF}:{AF+3}], v11 offset:{LDS_X}')
e(f'ds_read_b128 v[{AF+4}:{AF+7}], v11 offset:{LDS_X+64}')
for n in range(NI, 24): wload(n)
e('s_waitcnt lgkmcnt(0)' if STAMP else 's_waitcnt lgkmcnt(1)')
stamp(3)
JO = (0, 4, 1, 5, 2, 6, 3, 7)
for j in JO:
    e(f'v_mfma_f32_16x16x32_bf16 v[{DA+4*j}:{DA+4*j+3}], v[{AF}:{AF+3}], v[{TG[0]+4*j}:{TG[0]+4*j+3}], 0')
late = ILV and done_pairs < 8
while done_pairs < (7 if late else 8):
    e(f's_waitcnt vmcnt({24 - (2*done_pairs+2)})'); gperm(done_pairs); done_pairs += 1
def g7(j):
    sel = S_SELHI if (j & 1) else S_SELLO
    e(f'v_perm_b32 v{TG[1]+4*j+3}, v{RAW+32+28+j//2}, v{RAW+32+24+j//2}, s{sel}')
if late:
    e('s_waitcnt vmcnt(8) lgkmcnt(0)')
    for j in JO[:3]: g7(j)
else: e('s_waitcnt lgkmcnt(0)')
for n, j in enumerate(JO):
    e(f'v_mfma_f32_16x16x32_bf16 v[{DA+4*j}:{DA+4*j+3}], v[{AF+4}:{AF+7}], v[{TG[1]+4*j}:{TG[1]+4*j+3}], v[{DA+4*j}:{DA+4*j+3}]')
    if late and n + 3 < 8: g7(JO[n+3])
EX = TX
e('s_nop 1')
for j in range(4):
    mdpp(DA+4*j, DA+4*j+16, 'quad_perm:[0,1,2,3]', '0x2')
    e(f'v_perm_b32 v{AF+j}, v{DA+4*j}, v15, s{S_PS+j}' if TB == 8 else f'v_bfi_b32 v{AF+j}, {(1<<TB)-1}, s{S_TB+j}, v{DA+4*j}')
e('s_mov_b32 exec_hi, 0')
e(f'global_store_dwordx4 v12, v[{AF}:{AF+3}], {sp(WS)}{EXM}')
e('s_mov_b32 exec_hi, -1')
stamp(4)
L.append(';;WARMSPOT')
for p in range(3):
    e(f's_waitcnt vmcnt({7-2*p})'); perms(RAW+64, TD, p)
def five_loads():
    for i in range(4):
        e(f'global_load_dwordx4 v[{EX+4*i}:{EX+4*i+3}], v13, {sp(WS)} offset:{1024*i-2048} sc1')
    e('s_mov_b32 exec_hi, 0')
    e(f'global_load_dwordx4 v[{EX+16}:{EX+19}], v13, {sp(WS)} offset:2048 sc1')
    e('s_mov_b32 exec_hi, -1')
five_loads()
if not TRIM: e('s_waitcnt vmcnt(6)'); perms(RAW+64, TD, 3)
elif STAMP: e('s_waitcnt vmcnt(6)')
stamp(5)
e(f's_mov_b32 s{S_CNT}, 0')
if TRIM: e(f's_mov_b32 s{S_A}, 0xbfb8aa3b')
e('s_branch L_w_chk')
L.append(';;WARMFREE')
if ROLL:
    lab('L_w_poll')
    e(f's_add_u32 s{S_CNT}, s{S_CNT}, 1')
    e(f's_cmp_ge_u32 s{S_CNT}, {LOCN}')
    e('s_cbranch_scc1 L_w_far')
    lab('L_w_chk')
    AC, TM, M = EX + 20, EX + 24, EX + 28
    for i in range(5):
        e('s_waitcnt vmcnt(4)')
        if i == 4: e('s_mov_b32 exec_hi, 0')
        dst = AC if i == 0 else TM
        for d in range(4): e(f'v_xor_b32 v{dst+d}, s{S_TB+d}, v{EX+4*i+d}')
        e(f'global_load_dwordx4 v[{EX+4*i}:{EX+4*i+3}], v13, {sp(WS)} offset:{1024*i-2048} sc1')
        if i == 0: e(f'v_or_b32 v{M}, v{dst}, v{dst+1}')
        else: e(f'v_or3_b32 v{M}, v{M}, v{dst}, v{dst+1}')
        e(f'v_or3_b32 v{M}, v{M}, v{dst+2}, v{dst+3}')
        if i > 0:
            e(f'v_pk_add_f32 v[{AC}:{AC+1}], v[{AC}:{AC+1}], v[{TM}:{TM+1}]')
            e(f'v_pk_add_f32 v[{AC+2}:{AC+3}], v[{AC+2}:{AC+3}], v[{TM+2}:{TM+3}]')
    e('s_mov_b32 exec_hi, -1')
    e(f'v_and_b32 v{M}, {(1<<TB)-1}, v{M}')
    e(f'v_cmp_ne_u32 vcc, 0, v{M}')
    e('s_cbranch_vccnz L_w_poll')
    EX0 = EX; EX = AC
else:
    lab('L_w_poll')
    e(f's_add_u32 s{S_CNT}, s{S_CNT}, 1')
    e(f's_cmp_ge_u32 s{S_CNT}, {LOCN}')
    e('s_cbranch_scc1 L_w_far')
    lab('L_w_same')
    five_loads()
    lab('L_w_chk')
    M = EX + 20
    for i in range(5):
        e(f's_waitcnt vmcnt({4-i})')
        if i == 4: e('s_mov_b32 exec_hi, 0')
        for d in range(4): e(f'v_xor_b32 v{EX+4*i+d}, s{S_TB+d}, v{EX+4*i+d}')
        if i == 0: e(f'v_or_b32 v{M}, v{EX}, v{EX+1}')
        else: e(f'v_or3_b32 v{M}, v{M}, v{EX+4*i}, v{EX+4*i+1}')
        e(f'v_or3_b32 v{M}, v{M}, v{EX+4*i+2}, v{EX+4*i+3}')
        if i > 0:
            e(f'v_pk_add_f32 v[{EX}:{EX+1}], v[{EX}:{EX+1}], v[{EX+4*i}:{EX+4*i+1}]')
            e(f'v_pk_add_f32 v[{EX+2}:{EX+3}], v[{EX+2}:{EX+3}], v[{EX+4*i+2}:{EX+4*i+3}]')
    e('s_mov_b32 exec_hi, -1')
    e(f'v_and_b32 v{M}, {(1<<TB)-1}, v{M}')
    e(f'v_cmp_ne_u32 vcc, 0, v{M}')
    e('s_cbranch_vccnz L_w_poll')
    EX0 = EX
lab('L_w_go')
if BX: e('s_barrier    ; X')
stamp(6)
a0, a1, t0, t1 = EX, EX+1, EX+4, EX+5
if TRIM:
    def pj(j):
        sel = S_SELHI if (j & 1) else S_SELLO
        e(f'v_perm_b32 v{TD+4*j+3}, v{RAW+64+28+j//2}, v{RAW+64+24+j//2}, s{sel}')
    e(f'v_permlane32_swap_b32 v{EX}, v{EX+2}')
    e(f'v_permlane32_swap_b32 v{EX+1}, v{EX+3}')
    e(f'v_pk_add_f32 v[{EX}:{EX+1}], v[{EX}:{EX+1}], v[{EX+2}:{EX+3}]')
    e(f'v_cvt_pk_bf16_f32 v{EX+2}, v{a0}, v{a1}')
    e(f'v_lshlrev_b32 v{a0}, 16, v{EX+2}')
    e(f'v_and_b32 v{a1}, 0xffff0000, v{EX+2}')
    e(f'v_pk_mul_f32 v[{t0}:{t1}], v[{a0}:{a1}], {sp(S_A)} op_sel_hi:[1,0]')
    e(f'v_exp_f32 v{t0}, v{t0}')
    e(f'v_exp_f32 v{t1}, v{t1}')
    pj(0)
    e(f'v_pk_add_f32 v[{t0}:{t1}], v[{t0}:{t1}], 1.0 op_sel_hi:[1,0]')
    e(f'v_rcp_f32 v{t0}, v{t0}')
    e(f'v_rcp_f32 v{t1}, v{t1}')
    pj(1)
    e(f'v_pk_mul_f32 v[{t0}:{t1}], v[{a0}:{a1}], v[{t0}:{t1}]')
    e(f'v_cvt_pk_bf16_f32 v{t1}, v{t0}, v{t1}')
    e(f'v_lshlrev_b32 v{t0}, 16, v{t1}')
    e(f'v_and_b32 v{t1}, 0xffff0000, v{t1}')
    c('gate lanes (0..7 of each row) take u from the lane 8 further on; only they feed the MFMA rows that are read')
    pj(2)
    dpp('v_mul_f32', t0, a0, t0, 'row_ror:8')
    dpp('v_mul_f32', t1, a1, t1, 'row_ror:8')
    e(f'v_cvt_pk_bf16_f32 v{a0}, v{t0}, v{t1}')
    pj(3); pj(4)
    for p in range(4): mdpp(AF+4+p, a0, f'quad_perm:[{p},{p},{p},{p}]')
    pj(5); pj(6)
else:
    e(f'v_permlane32_swap_b32 v{EX}, v{EX+2}')
    e(f'v_permlane32_swap_b32 v{EX+1}, v{EX+3}')
    e(f'v_pk_add_f32 v[{EX}:{EX+1}], v[{EX}:{EX+1}], v[{EX+2}:{EX+3}]')
    e(f'v_cvt_pk_bf16_f32 v{EX+2}, v{a0}, v{a1}')
    e(f'v_lshlrev_b32 v{a0}, 16, v{EX+2}')
    e(f'v_and_b32 v{a1}, 0xffff0000, v{EX+2}')
    e(f'v_mul_f32 v{t0}, 0xbfb8aa3b, v{a0}')
    e(f'v_mul_f32 v{t1}, 0xbfb8aa3b, v{a1}')
    e(f'v_exp_f32 v{t0}, v{t0}')
    e(f'v_exp_f32 v{t1}, v{t1}')
    e('s_nop 0')
    e(f'v_pk_add_f32 v[{t0}:{t1}], v[{t0}:{t1}], 1.0 op_sel_hi:[1,0]')
    e(f'v_rcp_f32 v{t0}, v{t0}')
    e(f'v_rcp_f32 v{t1}, v{t1}')
    e('s_nop 0')
    e(f'v_pk_mul_f32 v[{t0}:{t1}], v[{a0}:{a1}], v[{t0}:{t1}]')
    e(f'v_cvt_pk_bf16_f32 v{t0}, v{t0}, v{t1}')
    e(f'v_cndmask_b32 v{t0}, v{EX+2}, v{t0}, {sp(S_M)}')
    e(f'v_lshlrev_b32 v{a0}, 16, v{t0}')
    e(f'v_and_b32 v{a1}, 0xffff0000, v{t0}')
    e('s_nop 0')
    dpp('v_mul_f32', a0, a0, a0, 'row_ror:8')
    dpp('v_mul_f32', a1, a1, a1, 'row_ror:8')
    e(f'v_cvt_pk_bf16_f32 v{a0}, v{a0}, v{a1}')
    e('s_nop 1')
    for p in range(4): mdpp(AF+4+p, a0, f'quad_perm:[{p},{p},{p},{p}]')
    e('s_nop 1')
for j in range(8):
    e(f'v_mfma_f32_16x16x32_bf16 v[{DA+4*j}:{DA+4*j+3}], v[{AF+4}:{AF+7}], v[{TD+4*j}:{TD+4*j+3}], 0')
    if TRIM and j == 0: pj(7)
e('s_mov_b32 exec_lo, 0xff0000ff')
e('s_mov_b32 exec_hi, 0')
for jj in range(4):
    if jj > 0: e('s_nop 0')
    e(f'ds_write2_b32 v14, v{DA+8*jj}, v{DA+8*jj+4} offset0:{LDS_P//4+2*jj} offset1:{LDS_P//4+2*jj+1}')
e('s_waitcnt lgkmcnt(0)')
e('s_barrier    ; D')
stamp(7)
if BF: e('s_barrier    ; F')
endpgm()
L.append(';;WARMFREE')

lab('L_p')
e(f's_cmp_ge_u32 s{S_SLOT}, 27'); e('s_cbranch_scc1 L_exit0')
getxcc()
slot9()
e('s_waitcnt lgkmcnt(0)')
e(f's_cmp_lg_u32 s{S_WAVE}, 6'); e('s_cbranch_scc1 L_p1')
c("bring this workgroup's three exchange slots (12 lines) into the L2")
e(f's_mul_i32 s{S_T0}, s{S_T}, 4608')
e(f's_lshl_b32 s{S_T1}, s{S_K}, 9')
e(f's_add_u32 s{S_T0}, s{S_T0}, s{S_T1}')
e(f's_add_u32 s{S_T0}, s{S_T0}, {EXL}')
e('v_lshrrev_b32 v1, 2, v0')
e(f's_movk_i32 s{S_T1}, 4608')
e(f'v_mul_u32_u24 v1, s{S_T1}, v1')
e('v_and_b32 v2, 3, v0')
e('v_lshlrev_b32 v2, 7, v2')
e(f'v_add3_u32 v1, v1, v2, s{S_T0}')
if TLB:
    e(f's_mul_i32 s{S_T1}, s{S_T}, {64*1152}')
    e(f's_lshl_b32 s{S_T2}, s{S_K}, 7')
    e(f's_add_u32 s{S_T1}, s{S_T1}, s{S_T2}')
    e(f's_movk_i32 s{S_T2}, {16*1152}')
    e(f'v_mul_u32_u24 v4, s{S_T2}, v0')
    e(f'v_add_u32 v4, s{S_T1}, v4')
e('s_mov_b64 exec, 0xfff')
if TLB == 1: e(f'global_load_dword v5, v4, {sp(WD)}')
bar1()
if TLB == 2: e(f'global_load_dword v5, v4, {sp(WD)}')
if not NOPT: e(f'global_load_dword v3, v1, {sp(WS)} sc1')
if GATE:
    e(f's_add_u32 s76, s76, {GATE}')
    if X0: e(f's_cmp_eq_u32 s{S_XCD}, 0'); e('s_cselect_b32 s74, 30, 0'); e('s_sub_u32 s76, s76, s74')
    lab('L_gate'); e('s_memrealtime s[72:73]'); e('s_waitcnt lgkmcnt(0)'); e('s_sub_u32 s75, s76, s72'); e('s_cmp_gt_i32 s75, 0'); e('s_cbranch_scc1 L_gate')
    e('s_barrier')
e('s_endpgm')
L.append(';;WARMFREE')
lab('L_p1')
e(f's_load_dword s{S_TAG}, {sp(WS)}, 0')
bar1()
e(f's_lshl_b32 s{S_T3}, s{S_XCC}, 12')
e(f's_add_u32 s{S_T3}, s{S_T3}, {BC}')
e(f's_add_u32 s{S_T2}, s{S_T3}, {64*NBC}')
e(f's_and_b32 s{S_T1}, s{S_WAVE}, 1')
e(f's_lshl_b32 s{S_T1}, s{S_T1}, 6')
e(f'v_lshl_add_u32 v4, v0, 2, s{S_T1}')
e(f's_lshl_b32 s{S_K}, s{S_K}, 7')
e(f's_add_u32 s{S_K}, s{S_K}, s{S_T1}')
e('v_and_b32 v10, 60, v0')
e(f'v_add_u32 v11, s{S_T1}, v10')
e('v_and_b32 v12, 1, v0')
e(f'v_cmp_eq_u32 {sp(S_M)}, 1, v12')
e('v_lshlrev_b32 v12, 2, v12')
e('v_lshl_add_u32 v12, v11, 1, v12')
if GMAP:
    e('v_and_b32 v11, 12, v0'); e('v_lshlrev_b32 v11, 2, v11')
    e('v_lshrrev_b32 v13, 4, v0'); e('v_lshl_add_u32 v11, v13, 2, v11')
    e(f'v_add_u32 v11, s{S_T1}, v11')
e('v_lshrrev_b32 v13, 4, v0')
e('v_and_b32 v14, 15, v0')
e('v_lshlrev_b32 v14, 2, v14')
e('v_lshl_add_u32 v13, v13, 7, v14')
e(f's_lshl_b32 s{S_T0}, s{S_K}, 3')
e(f's_add_u32 s{S_T0}, s{S_T0}, {ACCU}')
e(f'v_add_u32 v13, s{S_T0}, v13')
e('v_mov_b32 v7, 0')
e('s_mov_b64 exec, 0xffff')
L.append(';;WARMSPOT')
e('s_waitcnt lgkmcnt(0)')
e(f's_add_u32 s{S_TAG}, s{S_TAG}, 1')
if GATE: e('s_barrier    ; E')
stamp(1)
if NOP: e(f's_sleep {NOP}')
if SKEW >= 0:
    e('s_cmp_ge_u32 s2, 8'); e('s_cbranch_scc1 L_p_poll')
    e('s_lshl_b32 s72, s2, 2'); e('s_add_u32 s72, s72, 0x300000'); e('v_mov_b32 v20, s72'); e('v_mov_b32 v21, s76')
    e(f'global_store_dword v20, v21, {sp(WS)} sc1')
lab('L_p_poll')
e(f's_load_dwordx2 {sp(S_A)}, {sp(WS)}, s{S_T3}')
e(f's_add_u32 s{S_T3}, s{S_T3}, 64')
e(f's_cmp_ge_u32 s{S_T3}, s{S_T2}')
e('s_cbranch_scc1 L_p_slow')
e('s_waitcnt lgkmcnt(0)')
e(f's_cmp_lg_u32 s{S_A+1}, s{S_TAG}')
e('s_cbranch_scc1 L_p_poll')
lab('L_p_got')
if PCNT: e(f's_sub_u32 s{S_ST+2}, s{S_T2}, s{S_T3}'); e(f's_mov_b32 s{S_ST+3}, 0')
e(f's_andn2_b32 s{S_T1}, 0x7ff, s{S_A}')
e(f's_mul_i32 s{S_T0}, s{S_T1}, 1152')
e(f's_add_u32 s{S_T0}, s{S_T0}, s{S_K}')
e(f's_load_dwordx16 s[{S_XS}:{S_XS+15}], {sp(X)}, s{S_T0}')
stamp(2)
e(f'v_mov_b32 v6, s{S_T1}')
e(f'ds_write_b32 v7, v6 offset:{LDS_WIN}')
e('s_waitcnt lgkmcnt(0)')
stamp(3)
for d in range(16): e(f'v_writelane_b32 v5, s{S_XS+d}, {4*(d&3)+(d>>2) if GMAP else d}')
e(f'ds_write_b32 v4, v5 offset:{LDS_X}')
e('s_waitcnt lgkmcnt(0)')
e('s_barrier    ; A')
L.append(';;WARMSPOT')
e('s_mov_b64 exec, -1')
e(f'ds_read_b32 v5, v11 offset:{LDS_X}')
e(f'v_add_u32 v10, s{S_T0}, v10')
c('r_sel = bf16(sigmoid(r))')
e(f's_ashr_i32 s{S_T2}, s{S_A}, 31')
e(f's_not_b32 s{S_T2}, s{S_T2}')
e(f's_or_b32 s{S_T2}, s{S_T2}, 0x80000000')
e(f's_xor_b32 s{S_T1}, s{S_A}, s{S_T2}')
e(f's_and_b32 s{S_T1}, s{S_T1}, 0xffff0000')
e(f'v_mov_b32 v8, s{S_T1}')
e('v_mul_f32 v8, 0xbfb8aa3b, v8')
e('v_exp_f32 v8, v8')
e(f's_mov_b32 s{S_B}, 0x11111111'); e(f's_mov_b32 s{S_B+1}, 0x11111111')
e('v_add_f32 v8, 1.0, v8')
e('v_rcp_f32 v8, v8')
e(f's_lshl_b64 {sp(S_A)}, {sp(S_B)}, 2')
bf16r(8, 8)
e('s_waitcnt lgkmcnt(0)')
e('v_lshlrev_b32 v6, 16, v5')
e('v_and_b32 v5, 0xffff0000, v5')
e(f'v_cndmask_b32 v5, v6, v5, {sp(S_M)}')
e('v_fma_f32 v5, v5, 0, v5')
e('v_mov_b32 v9, 0x41b80000')
e(f'v_mov_b32 v15, s{S_TAG}')
e('s_mov_b32 exec_lo, 0x77777777'); e('s_mov_b32 exec_hi, 0x77777777')
stamp(4)
if BX: e('s_barrier    ; X')
e('s_barrier    ; D')
for i in range(3):
    e(f'ds_read2st64_b32 v[{16+2*i}:{17+2*i}], v12 offset0:{LDS_P//256+2*i} offset1:{LDS_P//256+2*i+1}')
e('s_waitcnt lgkmcnt(1)' if not STAMP else 's_waitcnt lgkmcnt(0)')
e('v_pk_add_f32 v[16:17], v[16:17], v[18:19]')
e('s_waitcnt lgkmcnt(0)')
e('v_pk_add_f32 v[16:17], v[16:17], v[20:21]')
e('v_add_f32 v16, v16, v17')
e(f'v_cndmask_b32 v16, v16, 1.0, {sp(S_A)}')
e(f'global_atomic_add_f32 v17, v13, v16, {sp(WS)} sc0 sc1')
if BF: e('s_barrier    ; F')
stamp(5)
e('s_waitcnt vmcnt(0)')
stamp(6)
mdpp(18, 17, 'quad_perm:[2,2,2,2]')
e('v_add_f32 v16, v16, v17')
e('v_cmp_eq_f32 vcc, v9, v18')
bf16r(16, 16)
e(f's_and_b64 vcc, vcc, {sp(S_B)}')
e('s_cbranch_scc0 L_end')
e('v_mul_f32 v16, v16, v8')
bf16r(16, 16)
e('v_add_f32 v16, v5, v16')
e('s_nop 1')
mdpp(17, 16, 'quad_perm:[1,1,1,1]')
e('v_cvt_pk_bf16_f32 v16, v16, v17')
e('s_mov_b64 exec, vcc')
if not NOFIN: e(f'global_store_dword v10, v16, {sp(OUT)}{FOM}')
if ACK: e('s_waitcnt vmcnt(0)')
stamp(7)
c('the last adder of the first granule moves the epoch on')
e(f's_cmp_lg_u32 s{S_K}, 0'); e('s_cbranch_scc1 L_end')
e('s_and_b64 exec, vcc, 1'); e('s_cbranch_scc0 L_end')
if not NOEP: e(f'global_store_dword v7, v15, {sp(WS)}{EPM}')
if KD: e('s_memrealtime s[78:79]'); e('s_branch L_kd')
lab('L_end')
if MINI:
    e('s_memrealtime s[82:83]'); e('s_mov_b64 exec, 1')
    e(f's_lshl_b32 s{S_T0}, s2, 4'); e(f's_add_u32 s{S_T0}, s{S_T0}, s{S_WAVE}')
    e(f's_lshl_b32 s{S_T0}, s{S_T0}, 6'); e(f's_add_u32 s{S_T0}, s{S_T0}, 0x8000000')
    e(f'v_mov_b32 v2, s{S_T0}'); e('s_waitcnt lgkmcnt(0)')
    for k in range(4): e(f'v_mov_b32 v{20+k}, s{80+k}')
    e(f'global_store_dwordx4 v2, v[20:23], {sp(WS)}')
if SKEW >= 0:
    if KD: e('s_endpgm'); lab('L_kd')
    else: e('s_cmp_lg_u32 s2, 9'); e('s_cbranch_scc1 L_exit0')
    e('s_mov_b32 s72, 0x300000'); e(f's_load_dwordx8 s[64:71], {sp(WS)}, s72'); e('s_waitcnt lgkmcnt(0)')
    e('s_mov_b32 s74, s64')
    for i in range(1, 8): e(f's_min_u32 s74, s74, s{64+i}')
    if KD: e('s_sub_u32 s74, s78, s74'); e('s_min_u32 s74, s74, 2000'); e('s_mul_i32 s74, s74, 10')
    else: e(f's_sub_u32 s74, s{64+SKEW}, s74'); e('s_min_u32 s74, s74, 500'); e('s_mul_i32 s74, s74, 20')
    e('s_memrealtime s[72:73]'); e('s_waitcnt lgkmcnt(0)'); e('s_add_u32 s74, s74, s72')
    lab('L_dspin')
    e('s_memrealtime s[72:73]'); e('s_waitcnt lgkmcnt(0)')
    e('s_sub_u32 s75, s74, s72'); e('s_cmp_gt_i32 s75, 0'); e('s_cbranch_scc1 L_dspin')
if DIAG >= 0:
    e(f's_cmp_lg_u32 s2, {DIAG}'); e('s_cbranch_scc1 L_exit0')
    e('s_memrealtime s[72:73]'); e('s_waitcnt lgkmcnt(0)')
    e('s_sub_u32 s74, s72, s76'); e('s_min_u32 s74, s74, 5000'); e('s_mul_i32 s74, s74, 10'); e('s_add_u32 s74, s74, s72')
    lab('L_dspin')
    e('s_memrealtime s[72:73]'); e('s_waitcnt lgkmcnt(0)')
    e('s_sub_u32 s75, s74, s72'); e('s_cmp_gt_i32 s75, 0'); e('s_cbranch_scc1 L_dspin')
endpgm()
lab('L_seg1_end')
e('.p2align 12')

lab('L_warm_s')
e('s_endpgm')
lab('L_spare')
getxcc()
e(f's_sub_u32 s{S_T}, s2, 224')
e(f's_lshl_b32 s{S_T3}, s{S_XCC}, 12')
e(f's_add_u32 s{S_T3}, s{S_T3}, {BC}')
e(f'v_lshl_add_u32 v3, v0, 6, s{S_T3}')
e(f's_cmp_lg_u32 s{S_SLOT}, 27'); e('s_cbranch_scc1 L_s_noclr')
c('clear 9 accumulator lines, bring the broadcast lines into this L2')
e(f's_mul_i32 s{S_T0}, s{S_XCD}, {9*128}')
e(f's_addk_i32 s{S_T0}, {ACCU}')
e(f'v_lshl_add_u32 v1, v0, 4, s{S_T0}')
e('v_mov_b64 v[12:13], 0'); e('v_mov_b64 v[14:15], 0')
e(f'global_store_dwordx4 v1, v[12:15], {sp(WS)} sc1')
e(f'global_store_dwordx4 v1, v[12:15], {sp(WS)} offset:128 sc1')
if NBC < 64: e('s_mov_b32 exec_hi, 0')
e(f'global_load_dwordx2 v[8:9], v3, {sp(WS)} sc1')
if NBC < 64: e('s_mov_b32 exec_hi, -1')
lab('L_s_noclr')
e(f's_mul_i32 s{S_T0}, s{S_XCD}, {K2X}')
if SP27:
    e(f's_cmp_eq_u32 s{S_SLOT}, 27'); e(f's_cselect_b32 s{S_T1}, 32, s{S_SLOT}'); e(f's_mul_i32 s{S_T1}, s{S_T1}, {K2R}')
else: e(f's_mul_i32 s{S_T1}, s{S_SLOT}, {K2R}')
e(f's_add_u32 s{S_T0}, s{S_T0}, s{S_T1}')
e(f's_add_u32 s{S_T0}, s{S_T0}, {(K2 - 28*K2R) & 0xffffffff}')
e('v_and_b32 v41, 7, v0')
e(f'v_mul_u32_u24 v42, {K2X}, v41')
e(f'v_lshl_add_u32 v41, v41, {3 if APOLL else 7}, s{S_T0}')
if not APOLL:
    e(f's_cmp_ge_u32 s{S_T}, {NDEST}'); e('s_cbranch_scc1 L_s_nopt')
    e(f'global_load_dwordx2 v[8:9], v41, {sp(WS)} sc1')
    lab('L_s_nopt')
e(f's_lshl_b32 s{S_T0}, s{S_XCD}, {3 if APOLL else 7}')
e(f's_add_u32 s{S_T0}, s{S_T0}, {K2}')
e('v_lshrrev_b32 v2, 3, v0'); e(f'v_mul_u32_u24 v2, {K2R}, v2'); e(f'v_add3_u32 v42, v42, v2, s{S_T0}')
e(f's_movk_i32 s{S_T1}, 1152')
e(f's_movk_i32 s{S_T2}, 0x7ff')
e('v_mov_b32 v13, 0')
e('s_waitcnt lgkmcnt(0)')
e(f's_add_u32 s{S_TAG}, s{S_TAG}, 1')
e(f'v_mov_b32 v7, s{S_TAG}')
stamp(1)
e('s_barrier    ; B1')
e(f's_cmp_lt_u32 s{S_T}, {NDEST}'); e('s_cbranch_scc1 L_s_l2')
e(f's_cmp_lg_u32 s{S_SLOT}, 27'); e('s_cbranch_scc1 L_s_wait')
e(f's_mov_b32 s{S_CNT}, 0')
if L1ST: stamp(6)
lab('L_s_poll1')
if L1ST:
    e(f's_mov_b64 s[{S_ST+6}:{S_ST+7}], s[{S_ST+4}:{S_ST+5}]'); stamp(2); e('s_waitcnt lgkmcnt(0)')
    e('s_mov_b64 s[70:71], vcc')
e(f'global_load_dwordx2 v[8:9], v40, {sp(WS)} sc1')
e(f's_add_u32 s{S_CNT}, s{S_CNT}, 1')
e(f's_cmp_lg_u32 s{S_CNT}, {LOCN}')
e('s_cbranch_scc1 L_s_same1')
if A27:
    c("the key of this very workgroup is always in the local copy")
    e('v_bfe_u32 v2, v40, %d, 6' % K1SH); e('v_cmp_ne_u32 vcc, 27, v2'); e('s_mov_b64 exec, vcc')
e(f'v_add_u32 v40, {K1G-K1L}, v40')
if A27: e('s_mov_b64 exec, -1')
lab('L_s_same1')
e(f's_cmp_gt_u32 s{S_CNT}, {SPIN}')
e('s_cbranch_scc1 L_s_got1')
e('s_waitcnt vmcnt(0)')
e(f'v_cmp_ne_u32 vcc, s{S_TAG}, v9')
e('s_cbranch_vccnz L_s_poll1')
lab('L_s_got1')
stamp(7)
if L1ST: e(f's_mov_b64 s[{S_ST+2}:{S_ST+3}], s[70:71]')
for m in ('row_shr:1', 'row_shr:2', 'row_shr:4', 'row_shr:8'):
    dpp('v_max_u32', 8, 8, 8, m); e('s_nop 1')
dpp('v_max_u32', 8, 8, 8, 'row_bcast:15', '0xa')
if X0:
    e('s_nop 1'); dpp('v_max_u32', 8, 8, 8, 'row_bcast:31', '0xc')
e(f's_mov_b64 exec, {(1<<NDEST)-1:#x}' if NDEST < 32 else f's_mov_b32 exec_hi, {0xff if SP27 else 0}')
e(f'v_readlane_b32 s{S_T0}, v8, {63 if X0 else 31}')
e('s_nop 1')
e(f'v_mov_b32 v6, s{S_T0}')
e(f'global_store_dwordx2 v42, v[6:7], {sp(WS)} sc1')
if STAMP:
    stamp(5); e('s_waitcnt vmcnt(0)'); stamp(4)
if SP27:
    e('s_mov_b64 exec, -1'); e('s_branch L_s_l2')
lab('L_s_wait')
c('not a reader: take the winner from the local broadcast or the device-wide copy')
e('s_mov_b64 exec, 3')
e(f's_movk_i32 s{S_T0}, {WIN_G}'); e(f'v_writelane_b32 v3, s{S_T0}, 1')
e(f's_mov_b32 s{S_CNT}, {SPIN}')
lab('L_s_wpoll')
e(f'global_load_dwordx2 v[8:9], v3, {sp(WS)} sc1')
e(f's_sub_u32 s{S_CNT}, s{S_CNT}, 1')
e('s_cbranch_scc1 L_s_nog')
if opt('--wsleep', 0): e('s_sleep 2')
e('s_waitcnt vmcnt(0)')
e(f'v_cmp_eq_u32 vcc, s{S_TAG}, v9')
e(f'v_bfi_b32 v14, v8, 0, s{S_T2}')
e('s_cbranch_vccz L_s_wpoll')
e('s_mov_b64 exec, vcc')
e('s_branch L_s_nog')
lab('L_s_l2')
e(f's_mov_b32 s{S_CNT}, {SPIN}')
e('v_min_u32 v5, 8, v0')
e('v_lshlrev_b32 v5, 7, v5')
if SPEC or SP27:
    e(f's_cmp_ge_u32 s{S_T}, {8*NRD}'); e('s_cbranch_scc1 L_s_spec')
if APOLL:
    e('v_mov_b64 v[10:11], 0')
    for i in range(APOLL): e(f'v_not_b32 v{17+2*i}, v7')
    e('s_mov_b64 exec, 0xff')
    lab('L_s_poll')
    for i in range(APOLL):
        o = (i + 1) % APOLL
        e(f'global_atomic_add_x2 v[{16+2*i}:{17+2*i}], v41, v[10:11], {sp(WS)} sc0 sc1')
        if ASL: e(f's_sleep {ASL}')
        e(f's_waitcnt vmcnt({APOLL-1})')
        e(f'v_cmp_ne_u32 vcc, s{S_TAG}, v{17+2*o}')
        dpp('v_max_u32', 8, 16+2*o, 16+2*o, 'quad_perm:[1,0,3,2]')
        e('s_cbranch_vccz L_s_got')
    e(f's_sub_u32 s{S_CNT}, s{S_CNT}, 1')
    e('s_cbranch_scc0 L_s_poll')
    lab('L_s_got')
    stamp(2)
    e('s_nop 0')
    dpp('v_max_u32', 8, 8, 8, 'quad_perm:[2,3,0,1]'); e('s_nop 1')
    dpp('v_max_u32', 8, 8, 8, 'row_half_mirror')
    e('s_mov_b64 exec, -1')
    e(f'v_readfirstlane_b32 s{S_T0}, v8')
    e('s_nop 1')
    e(f'v_mov_b32 v6, s{S_T0}')
else:
    lab('L_s_poll')
    if STAMP:
        e(f's_mov_b64 s[{S_ST+12}:{S_ST+13}], s[{S_ST+10}:{S_ST+11}]'); stamp(5); e('s_waitcnt lgkmcnt(0)')
    e(f'global_load_dwordx2 v[8:9], v41, {sp(WS)} sc1')
    e(f's_sub_u32 s{S_CNT}, s{S_CNT}, 1')
    e('s_cbranch_scc1 L_s_got')
    e('s_waitcnt vmcnt(0)')
    e(f'v_cmp_ne_u32 vcc, s{S_TAG}, v9')
    dpp('v_max_u32', 8, 8, 8, 'quad_perm:[1,0,3,2]')
    e('s_cbranch_vccnz L_s_poll')
    lab('L_s_got')
    stamp(2)
    e('s_nop 0')
    dpp('v_max_u32', 8, 8, 8, 'quad_perm:[2,3,0,1]'); e('s_nop 1')
    dpp('v_max_u32', 6, 8, 8, 'row_half_mirror')
if NBC < 64: e('s_mov_b32 exec_hi, 0')
e(f'global_store_dwordx2 v3, v[6:7], {sp(WS)}')
e(f'v_bfi_b32 v14, v6, 0, s{S_T2}')
e(f'v_mad_u32_u24 v5, v14, s{S_T1}, v5')
e(f'global_load_dword v39, v5, {sp(X)}')
stamp(3)
e(f's_cmp_lg_u32 s{S_T}, 7')
e('s_cbranch_scc1 L_s_nog')
e(f'v_mov_b32 v5, {WIN_G}')
e('s_mov_b64 exec, 1')
e(f'global_store_dwordx2 v5, v[6:7], {sp(WS)} sc1')
lab('L_s_nog')
e(f'ds_write_b32 v13, v14 offset:{LDS_WIN}')
e('s_waitcnt lgkmcnt(0)')
e('s_barrier    ; A')
e('s_barrier    ; D')
if BF or BX: e('s_barrier    ; F')
lab('L_s_end')
endpgm()

if SPEC or SP27:
    lab('L_s_spec')
    c("this spare pulls every candidate row into the L2 as its key arrives")
    e('v_lshrrev_b32 v12, 3, v0'); e('v_lshlrev_b32 v12, 7, v12')
    lab('L_s_spoll')
    e(f'global_load_dwordx2 v[8:9], v41, {sp(WS)} sc1')
    e(f's_sub_u32 s{S_CNT}, s{S_CNT}, 1')
    e('s_cbranch_scc1 L_s_got')
    e('s_waitcnt vmcnt(0)')
    e(f'v_cmp_eq_u32 vcc, s{S_TAG}, v9')
    e(f'v_bfi_b32 v10, v8, 0, s{S_T2}')
    e(f'v_mad_u32_u24 v11, v10, s{S_T1}, v12')
    e('s_and_b64 exec, vcc, -1')
    e('s_cbranch_scc0 L_s_snone')
    e(f'global_load_dword v38, v11, {sp(X)}')
    e(f'global_load_dword v38, v11, {sp(X)} offset:128')
    lab('L_s_snone')
    e('s_mov_b64 exec, -1')
    dpp('v_max_u32', 8, 8, 8, 'quad_perm:[1,0,3,2]')
    e('s_cmp_eq_u64 vcc, -1')
    e('s_cbranch_scc0 L_s_spoll')
    e('s_branch L_s_got')
e('.p2align 6')
lab('L_warm_r')
e('s_endpgm')
lab('L_r2')
for i in range(4): e(f'v_mov_b32 v{ACC+i}, 0')
e('v_sub_u32 v6, 0xffff, v1')
e(f'v_add_u32 v7, {K1G-K1L}, v3')
e(f's_mov_b32 s{S_T2}, 0xffff0000')
KY = 84
if WLDS:
    if RST: e('s_waitcnt lgkmcnt(0)'); stamp(7)
    e(f's_waitcnt vmcnt({9+RPT})')
    if RST: stamp(5)
    for cc in range(9): e(f'ds_read_b128 v[{WW+4*cc}:{WW+4*cc+3}], v2 offset:{LDS_W+128*cc}')
e('s_waitcnt lgkmcnt(0)')
e(f's_add_u32 s{S_TAG}, s{S_TAG}, 1')
e(f'v_mov_b32 v{KY+1}, s{S_TAG}')
e(f's_cmp_ge_u32 s{S_SLOT}, 27')
for cc in range(9):
    e(f's_waitcnt vmcnt({8-cc+RPT})')
    if RST and cc == 0: stamp(6)
    for d in range(4): e(f'v_dot2c_f32_bf16 v{ACC+d}, v{XR+4*cc+d}, v{WW+4*cc+d}')
stamp(2)
e('s_nop 2')
e(f'v_pk_add_f32 v[{ACC}:{ACC+1}], v[{ACC}:{ACC+1}], v[{ACC+2}:{ACC+3}]')
e(f'v_add_f32 v{ACC}, v{ACC}, v{ACC+1}')
for m in ['quad_perm:[1,0,3,2]', 'quad_perm:[2,3,0,1]', 'row_half_mirror']:
    e('s_nop 1'); dpp('v_add_f32', ACC, ACC, ACC, m)
K0, K1 = KY+2, KY+3
e(f'v_cmp_o_f32 vcc, v{ACC}, v{ACC}')
e(f'v_cvt_pk_bf16_f32 v{K0}, v{ACC}, v{ACC}')
e(f'v_ashrrev_i32 v{K1}, 31, v{K0}')
e(f'v_or_b32 v{K1}, 0x80000000, v{K1}')
e(f'v_xor_b32 v{K0}, v{K0}, v{K1}')
e(f'v_cndmask_b32 v{K0}, 0, v{K0}, vcc')
e(f'v_and_or_b32 v{KY}, v{K0}, s{S_T2}, v6')
e('s_nop 1'); dpp('v_max_u32', KY, KY, KY, 'row_shr:8')
e('s_nop 1'); dpp('v_max_u32', KY, KY, KY, 'row_bcast:15', '0xa')
e('s_nop 1'); dpp('v_max_u32', KY, KY, KY, 'row_bcast:31', '0xc')
e('s_mov_b32 exec_lo, 0'); e('s_brev_b32 exec_hi, 1')
e('s_cbranch_scc0 L_r_k1')
e('s_barrier    ; B1')
lab('L_r_k1')
e(f'global_store_dwordx2 v3, v[{KY}:{KY+1}], {sp(WS)}')
if L1ST: stamp(7)
e('s_cbranch_scc1 L_r_k2')
if HOLD: e('s_barrier    ; B1')
lab('L_r_k2')
if A27: e(f's_cmp_eq_u32 s{S_SLOT}, 27'); e('s_cbranch_scc1 L_r_k3')
e(f'global_store_dwordx2 v7, v[{KY}:{KY+1}], {sp(WS)} sc1')
if A27: lab('L_r_k3')
e('s_mov_b64 exec, -1')
stamp(3)
e(f'v_mov_b32 v{K1}, 0x207')
e(f'v_cmp_class_f32 vcc, v{ACC}, v{K1}')
e('s_cbranch_vccnz L_r_fix')
lab('L_r_nofix')
if GATE:
    e(f's_cmp_ge_u32 s{S_SLOT}, 27'); e('s_cbranch_scc1 L_r_noe'); e('s_barrier'); lab('L_r_noe')
def copy_rows(m=ONT):
    if NOCOPY == 1 or (NOCOPY == 2 and m == '') or (NOCOPY == 3 and m != ''): return
    for cc in range(9):
        e(f'global_store_dwordx4 v4, v[{XR+4*cc}:{XR+4*cc+3}], {sp(OUT)} offset:{128*cc}{m}')
if CP == 'E':
    e(f'v_readlane_b32 s{S_T1}, v{KY}, 63')
    e(f's_andn2_b32 s{S_T1}, 0x7ff, s{S_T1}')
    e(f'v_cmp_ne_u32 vcc, s{S_T1}, v1')
    e('s_mov_b64 exec, vcc')
    copy_rows()
    e('s_not_b64 exec, vcc')
e('s_barrier    ; A')
e('v_mov_b32 v2, 0')
e(f'ds_read_b32 v2, v2 offset:{LDS_WIN}')
e('s_waitcnt lgkmcnt(0)')
e('v_cmp_ne_u32 vcc, v2, v1')
if CP == 'D': e('s_barrier    ; D')
if BF: e('s_barrier    ; F')
stamp(4)
e('s_and_b64 exec, exec, vcc')
if CP == 'E': e('s_cbranch_scc0 L_r_end')
if SPL:
    e(f's_cmp_ge_u32 s{S_SLOT}, 27'); e('s_cbranch_scc1 L_r_plain')
copy_rows()
lab('L_r_end')
if BX: e('s_barrier    ; D')
if CP != 'D': e('s_barrier    ; D')
if STAMP and not RST:
    stamp(5); e('s_waitcnt vmcnt(0)'); stamp(6)
endpgm()

if SPL:
    lab('L_r_plain')
    copy_rows('')
    e('s_branch L_r_end')
lab('L_w_far')
c('partners may sit on another die: publish a device-wide copy, then alternate between the two copies')
e(f's_cmp_gt_u32 s{S_CNT}, {SPIN}')
e('s_cbranch_scc1 L_w_go')
e(f'v_xor_b32 v13, {EXG^EXL}, v13')
e(f's_xor_b32 s{S_TB+3}, s{S_TB+3}, s{S_XCC}')
e(f's_cmp_lg_u32 s{S_CNT}, {LOCN}')
e('s_cbranch_scc1 L_w_same')
e(f'v_xor_b32 v12, {EXG^EXL}, v12')
e(f'v_xor_b32 v{AF+3}, s{S_XCC}, v{AF+3}')
e('s_mov_b32 exec_hi, 0')
e(f'global_store_dwordx4 v12, v[{AF}:{AF+3}], {sp(WS)} sc1')
e('s_mov_b32 exec_hi, -1')
if ROLL:
    lab('L_w_same')
    e('s_waitcnt vmcnt(0)')
    EX = EX0
    five_loads()
    e('s_branch L_w_chk')
else: e('s_branch L_w_same')
lab('L_p_slow')
e(f'v_mov_b32 v6, {WIN_G}')
e(f's_mov_b32 s{S_CNT}, {SPIN}')
lab('L_p_slowpoll')
e(f'global_load_dwordx2 v[8:9], v6, {sp(WS)} sc1')
e('s_waitcnt vmcnt(0) lgkmcnt(0)')
e(f'v_readfirstlane_b32 s{S_A}, v8')
e(f'v_readfirstlane_b32 s{S_A+1}, v9')
e(f's_sub_u32 s{S_CNT}, s{S_CNT}, 1')
e('s_cbranch_scc1 L_p_got')
e(f's_cmp_lg_u32 s{S_A+1}, s{S_TAG}')
e('s_cbranch_scc1 L_p_slowpoll')
e('s_branch L_p_got')
if STAMP:
    lab('L_flush')
    e('s_waitcnt vmcnt(0) lgkmcnt(0)')
    e('s_mov_b64 exec, 1')
    e('s_sleep 40')
    e(f's_lshl_b32 s{S_T0}, s2, 4'); e(f's_add_u32 s{S_T0}, s{S_T0}, s{S_WAVE}')
    e(f's_lshl_b32 s{S_T0}, s{S_T0}, 6'); e(f's_add_u32 s{S_T0}, s{S_T0}, 0x8000000')
    e(f'v_mov_b32 v2, s{S_T0}')
    for i in range(4):
        for k in range(4): e(f'v_mov_b32 v{4+k}, s{S_ST+4*i+k}')
        e(f'global_store_dwordx4 v2, v[4:7], {sp(WS)} offset:{16*i}'); e('s_nop 1')
    e('s_endpgm')
lab('L_r_fix')
c('x + x*0 turns an infinity into a NaN')
e(f's_mov_b32 s{S_SELHI}, 0x07060302')
for d in range(36):
    r = XR + d
    e(f'v_lshlrev_b32 v{K0}, 16, v{r}')
    e(f'v_and_b32 v{K1}, s{S_T2}, v{r}')
    e(f'v_fma_f32 v{K0}, v{K0}, 0, v{K0}')
    e(f'v_fma_f32 v{K1}, v{K1}, 0, v{K1}')
    e(f'v_perm_b32 v{r}, v{K1}, v{K0}, s{S_SELHI}')
e('s_branch L_r_nofix')

hdr = f'''; Mixture-of-depths block, capacity 1: r = x.w_r, the row with the largest r goes through a SwiGLU FFN
;   waves 0-2 (W) : workgroups 0..215 stream w_gate/w_up (64 rows x 64 columns, both matrices) and w_down
;                   (64 rows x 64 columns) into registers while the argmax is still being found; 9 workgroups
; @launch grid=(256,1,1) block=(512,1,1) lds={LDS_BYTES}
.amdgcn_target "amdgcn-amd-amdhsa--gfx950"
.text
.globl standalone__moe_arch_mod__prompt_kernel
.p2align 12
.fill {(4096-768)//4}, 4, 0xBF800000
.p2align 8
.type standalone__moe_arch_mod__prompt_kernel,@function
standalone__moe_arch_mod__prompt_kernel:'''
tail = '''.section .rodata,"a"
.p2align 6
.amdhsa_kernel standalone__moe_arch_mod__prompt_kernel
  .amdhsa_next_free_vgpr 184
  .amdhsa_next_free_sgpr %SG%
  .amdhsa_accum_offset 184
  .amdhsa_group_segment_fixed_size 0
  .amdhsa_kernarg_size 64
  .amdhsa_user_sgpr_count 2
  .amdhsa_user_sgpr_kernarg_segment_ptr 1
  .amdhsa_system_sgpr_workgroup_id_x 1
  .amdhsa_float_denorm_mode_32 3
.end_amdhsa_kernel
'''
tail = tail.replace('%SG%', '96' if (STAMP or MINI or DIAG >= 0 or SKEW >= 0 or GATE) else '64')
def offsets(lines):
    out = []; k = 0
    for ln in lines:
        if ln.startswith(';;WARM'): out.append(f'MK{k}:'); k += 1
        else: out.append(ln)
    src = hdr.replace('.fill 832,', '.fill 1024,') + '\n' + '\n'.join(out) + '\nL_warm1:\nL_warm2:\nL_warm3:\n' + tail
    d = tempfile.mkdtemp()
    open(d + '/a.s', 'w').write(src)
    subprocess.run(['clang', '-x', 'assembler', '-target', 'amdgcn-amd-amdhsa', '-mcpu=gfx950', '-c', d + '/a.s', '-o', d + '/a.o'], check=True)
    t = subprocess.run(['llvm-objdump', '-t', d + '/a.o'], capture_output=True, text=True).stdout
    sy = {m.group(2): int(m.group(1), 16) for m in re.finditer(r'^([0-9a-f]{16}) .*\.text\s+[0-9a-f]+ (?:\.protected |\.hidden )?(\S+)$', t, re.M)}
    base = sy['standalone__moe_arch_mod__prompt_kernel']
    return {n: v - base for n, v in sy.items()}
offs = offsets(L)
marks = [(i, ln) for i, ln in enumerate(L) if ln.startswith(';;WARM')]
mo = [offs[f'MK{k}'] for k in range(len(marks))]
chosen = []
segs = [(0, offs['L_end'])]
shift = 0
for (a, b) in segs:
    pass
    covered = ((a + shift) // 64) * 64 + 1088
    while covered < b + shift + 8:
        cand = [k for k in range(len(marks)) if a <= mo[k] < b and mo[k] + shift + 4 < covered + 64 and (not chosen or k > chosen[-1])]
        assert cand, (covered, mo, segs)
        k = cand[-1]
        sp4 = marks[k][1].startswith(';;WARMSPOT')
        pos = mo[k] + shift + (4 if sp4 else 0)
        chosen.append(k); shift += 8 if sp4 else 4
        nc = (pos // 64) * 64 + 1088
        assert nc > covered, (nc, covered, mo)
        covered = nc
assert offs['L_seg1_end'] + 20 < 4096
names = {k: n + 1 for n, k in enumerate(chosen)}
nst = len(chosen)
outl = []; k = 0
for ln in L:
    if ln.startswith(';;WARM'):
        if k in names:
            n = names[k]
            tgt = f'L_warm{n+3}' if n + 3 <= nst else 'L_p'
            if ln.startswith(';;WARMSPOT'): outl.append(f'    s_branch L_skip{n}')
            outl.append(f'L_warm{n}:'); outl.append(f'    s_branch {tgt}')
            if ln.startswith(';;WARMSPOT'): outl.append(f'L_skip{n}:')
        k += 1
    elif ln == 'L_p:':
        for n in range(nst + 1, 4): outl.append(f'L_warm{n}:')
        outl.append(ln)
    else: outl.append(ln)
sys.stderr.write(f'chosen {[mo[k] for k in chosen]} ' + ' '.join(f'{n}={v}' for n, v in sorted(offs.items(), key=lambda x: x[1]) if n in ('L_w','L_w_poll','L_p','L_end','L_seg1_end','L_r2','L_spare','L_s_end','L_r_end')) + '\n')
print(hdr); print('\n'.join(outl)); print(tail)
```

```python
import sys, subprocess, re, tempfile
def opt(name, d):
    a = sys.argv
    return type(d)(a[a.index(name)+1]) if name in a else d
def mod(name, d):
    v = opt(name, d); return '' if v == '-' else ' ' + v.replace('+', ' ')
STAMP = '--stamp' in sys.argv
MINI = '--mini' in sys.argv
WING = opt('--wing', 8); WIND = opt('--wind', 10); WIN0 = opt('--win0', 7)
NT = mod('--nt', 'nt'); XNT = mod('--xnt', '-'); ONT = mod('--ont', 'sc1')
CP = opt('--cp', 'D')
DIAG = opt('--diag', -1)
HOLD = opt('--hold', 1); WLAST = opt('--wlast', 0); LIGHT = opt('--light', 0)
WLDS = opt('--wlds', 1); TLB = opt('--tlb', 0); ACK = opt('--ack', 0)
K1SH = opt('--k1sh', 7)
SKEW = opt('--skew', -1)
X0 = opt('--x0', 0); APOLL = opt('--apoll', 1); ASL = opt('--asl', 0); SPEC = opt('--spec', 0)
B0 = opt('--b0', 0)
NOP = opt('--nop', 0); NOPT = opt('--nopt', 0); WST = opt('--wst', 0)
RST = opt('--rst', 0); LATE = opt('--late', 1); SPX = opt('--spx', 0)
NRD = opt('--nrd', 4); NBC = opt('--nbc', 64)
SPL = opt('--spl', 1)
ND1 = opt('--nd1', 8)
NOCOPY = opt('--nocopy', 0); EXM = mod('--exm', '-'); FOM = mod('--fom', '-')
EPM = mod('--epm', '-')
NOEP = opt('--noep', 0); NOFIN = opt('--nofin', 0); EARLYST = opt('--est', 0)
KD = opt('--kdiag', 0)
if KD: SKEW = 0
ROLL = opt('--roll', 1)
WEP = opt('--wep', 0); GMAP = opt('--gmap', 1); WSL = opt('--wsl', 0)
RPT = opt('--rpt', 1); WE0 = opt('--we0', 0)
PCNT = opt('--pcnt', 0)
K2X = opt('--k2x', 128); K2R = opt('--k2r', 8192)
TRIM = opt('--trim', 1)
GATE = opt('--gate', 0); ND0 = opt('--nd0', 0)
L1ST = opt('--l1st', 0)
A27 = opt('--a27', 1); APT = opt('--apt', 1)
SP27 = opt('--sp27', 0)
BF = opt('--bf', 1); TB = opt('--tb', 6)
WK = opt('--wk', 0)
ILV = opt('--ilv', 1)
BX = opt('--bx', 0)
if BX: BF = 0
SPIN = 100000
LOCN = opt('--locn', 60)

NDEST = 8 * (NRD + SPEC)
L = []
def e(s): L.append('    ' + s)
def lab(s): L.append(s + ':')
def c(s): L.append('    ; ' + s)
X, WR, WG, WU, WD, OUT, DBG, WS = 4, 6, 8, 10, 12, 14, 16, 18
def sp(n): return f's[{n}:{n+1}]'
S_WAVE, S_XCD, S_SLOT = 20, 21, 22
S_T0, S_T1, S_T2, S_T3 = 23, 24, 25, 26
S_SELLO, S_SELHI = 27, 28
S_CNT, S_TAG, S_T, S_K = 29, 30, 31, 32
S_XCC = 33
S_A, S_B = 34, 36
S_TB = 38; S_PS = 42
S_M = 46
S_XS = 48
S_ST = 80
K1L, K1G, WIN_G, ACCU, BC, K2, EXL, EXG = 0x20000, 0x30000, 0x3000, 0x4000, 0x8000, 0x40000, 0x100000, 0x180000
LDS_X, LDS_WIN, LDS_P = 0, 128, 256
LDS_W = 2048
LDS_BYTES = 3328

def stamp(i):
    if STAMP: e(f's_memrealtime s[{S_ST+2*i}:{S_ST+2*i+1}]')
def endpgm():
    e('s_branch L_flush' if STAMP else 's_endpgm')
def dpp(op, d, a, b, m, rm='0xf'):
    e(f'{op}_dpp v{d}, v{a}, v{b} {m} row_mask:{rm} bank_mask:0xf')
def mdpp(d, a, m, rm='0xf'):
    e(f'v_mov_b32_dpp v{d}, v{a} {m} row_mask:{rm} bank_mask:0xf')
def perms(raw, T, p):
    for j in range(8):
        sel = S_SELHI if (j & 1) else S_SELLO
        e(f'v_perm_b32 v{T+4*j+p}, v{raw+4*(2*p+1)+j//2}, v{raw+4*(2*p)+j//2}, s{sel}')
def bf16r(d, s):
    e(f'v_cvt_pk_bf16_f32 v{d}, v{s}, v{s}'); e(f'v_lshlrev_b32 v{d}, 16, v{d}')
def slot9():
    e(f's_mul_i32 s{S_T0}, s{S_SLOT}, 57')
    e(f's_lshr_b32 s{S_T0}, s{S_T0}, 9')
    e(f's_mul_i32 s{S_K}, s{S_T0}, 9')
    e(f's_sub_u32 s{S_K}, s{S_SLOT}, s{S_K}')
    e(f's_mul_i32 s{S_T}, s{S_XCD}, 3')
    e(f's_add_u32 s{S_T}, s{S_T}, s{S_T0}')
    e(f's_mul_i32 s{S_T}, s{S_T}, 3')
b1n = [0]
def bar1():
    if not HOLD: return
    if X0:
        b1n[0] += 1
        e(f's_cmp_eq_u32 s{S_XCD}, 0'); e(f's_cbranch_scc1 L_nob{b1n[0]}')
        e('s_barrier    ; B1')
        lab(f'L_nob{b1n[0]}')
    else: e('s_barrier')
def getxcc(): e(f's_getreg_b32 s{S_XCC}, hwreg(HW_REG_XCC_ID, 0, 3)')

if MINI and EARLYST: e('s_memrealtime s[80:81]')
e('s_load_dwordx16 s[4:19], s[0:1], 0')
e('s_cmp_ge_u32 s2, 256')
e('s_cbranch_scc1 L_exit0')
stamp(0)
if MINI and not EARLYST: e('s_memrealtime s[80:81]')
if DIAG >= 0 or SKEW >= 0 or GATE: e('s_memrealtime s[76:77]')
e(f'v_readfirstlane_b32 s{S_WAVE}, v0')
e('v_and_b32 v0, 63, v0')
e(f's_and_b32 s{S_XCD}, s2, 7')
e(f's_lshr_b32 s{S_SLOT}, s2, 3')
e(f's_lshr_b32 s{S_WAVE}, s{S_WAVE}, 6')
if STAMP:
    for i in range(1, 8): e(f's_mov_b64 s[{S_ST+2*i}:{S_ST+2*i+1}], 0')
e(f's_cmp_lt_u32 s{S_WAVE}, 4'); e('s_cbranch_scc1 L_notp')
if B0: e('s_barrier    ; B0')
if WK == 1: e('s_waitcnt lgkmcnt(0)')
if WK > 1: e(f's_sleep {WK}')
e(f's_cmp_eq_u32 s{S_WAVE}, 4'); e('s_cbranch_scc1 L_warm1')
e(f's_cmp_eq_u32 s{S_WAVE}, 5'); e('s_cbranch_scc1 L_warm2')
e(f's_cmp_eq_u32 s{S_WAVE}, 6'); e('s_cbranch_scc1 L_warm3')
e('s_branch L_warm_r')
lab('L_spare0')
if X0:
    e(f's_cmp_eq_u32 s{S_WAVE}, 1'); e('s_cbranch_scc1 L_rx')
e(f's_cmp_lg_u32 s{S_WAVE}, 0'); e('s_cbranch_scc1 L_warm_s')
e(f's_lshl_b32 s{S_T1}, s{S_XCD}, {6+K1SH}')
e(f's_add_u32 s{S_T1}, s{S_T1}, {K1L}')
if X0:
    e(f's_cmp_eq_u32 s{S_XCD}, 0')
    e(f's_cselect_b32 s{S_T2}, 27, 0'); e(f's_cselect_b32 s{S_T3}, 31, 35')
    e(f'v_max_u32 v40, s{S_T2}, v0'); e(f'v_min_u32 v40, s{S_T3}, v40')
else: e('v_min_u32 v40, 31, v0')
e(f'v_lshl_add_u32 v40, v40, {K1SH}, s{S_T1}')
e('s_waitcnt lgkmcnt(0)')
e(f's_load_dword s{S_TAG}, {sp(WS)}, 0')
if not RPT or APT:
    e(f's_cmp_lg_u32 s{S_SLOT}, 27'); e('s_cbranch_scc1 L_spare')
    c('the first spare of each group brings the key lines into this L2')
    e(f'global_load_dwordx2 v[8:9], v40, {sp(WS)} sc1')
e('s_branch L_spare')
lab('L_exit0')
e('s_endpgm')
lab('L_notp')
e(f's_cmp_lg_u32 s{S_WAVE}, 3'); e('s_cbranch_scc1 L_w')

XR, WW, ACC = 8, 44, 80
c('router wave: rows 8*wg + (l>>3), bytes 128c + 16*(l&7)')
e(f's_lshl_b32 s{S_T1}, s2, 3')
if X0:
    e(f's_cmp_lg_u32 s{S_XCD}, 0'); e('s_cbranch_scc1 L_r1')
    e(f's_cmp_ge_u32 s{S_SLOT}, 27'); e('s_cbranch_scc1 L_r1')
    e('s_endpgm')
    lab('L_rx')
    c('extra router wave: takes the rows of workgroup 8e, e = min(7*(31-slot) + xcd-1, 26)')
    e(f's_cmp_eq_u32 s{S_SLOT}, 27'); e('s_cbranch_scc1 L_exit0')
    e(f's_cmp_eq_u32 s{S_XCD}, 0'); e('s_cbranch_scc1 L_exit0')
    e(f's_mul_i32 s{S_T1}, s{S_SLOT}, -7')
    e(f's_add_u32 s{S_T1}, s{S_T1}, s{S_XCD}')
    e(f's_addk_i32 s{S_T1}, {7*31-1}')
    e(f's_min_u32 s{S_T1}, s{S_T1}, 26')
    e(f's_lshl_b32 s{S_T1}, s{S_T1}, 6')
    e(f's_addk_i32 s{S_SLOT}, 4')
    lab('L_r1')
e('s_setprio 3')
e('v_lshrrev_b32 v1, 3, v0')
e(f'v_add_u32 v1, s{S_T1}, v1')
e('v_and_b32 v2, 7, v0')
e('v_lshlrev_b32 v2, 4, v2')
e(f's_movk_i32 s{S_T2}, 1152')
e(f'v_mad_u32_u24 v4, v1, s{S_T2}, v2')
e(f's_lshl_b32 s{S_T0}, s{S_XCD}, 6')
e(f's_add_u32 s{S_T0}, s{S_T0}, s{S_SLOT}')
e(f's_lshl_b32 s{S_T0}, s{S_T0}, {K1SH}')
e(f's_add_u32 s{S_T0}, s{S_T0}, {K1L}')
e(f'v_mov_b32 v3, s{S_T0}')
if WLDS:
    e('v_lshlrev_b32 v5, 4, v0')
    e(f's_movk_i32 m0, {LDS_W}')
e('s_waitcnt lgkmcnt(0)')
def wl():
    if WLDS:
        e(f'global_load_lds_dwordx4 v5, {sp(WR)}')
        e('s_mov_b64 exec, 0xff')
        e(f'global_load_lds_dwordx4 v5, {sp(WR)} offset:1024')
        e('s_mov_b64 exec, -1')
        return
    for cc in range(9): e(f'global_load_dwordx4 v[{WW+4*cc}:{WW+4*cc+3}], v2, {sp(WR)} offset:{128*cc}')
if not WLAST: wl()
for cc in range(9): e(f'global_load_dwordx4 v[{XR+4*cc}:{XR+4*cc+3}], v4, {sp(X)} offset:{128*cc}{XNT}')
if WLAST: wl()
if RPT: e(f'global_load_dword v{ACC+8}, v3, {sp(WS)} sc1')
e(f's_load_dword s{S_TAG}, {sp(WS)}, 0')
if B0: e('s_barrier    ; B0')
stamp(1)
e('s_branch L_r2')

lab('L_w')
e(f's_cmp_ge_u32 s{S_SLOT}, 27'); e('s_cbranch_scc1 L_spare0')
RAW, TX, DA, AF = 16, 112, 144, 176
slot9()
e(f's_add_u32 s{S_T}, s{S_T}, s{S_WAVE}')
c('G: row = 64k + 32u + ' + ('8*(e>>1) + 2*(l>>4) + (e&1)' if GMAP else '8*(l>>4) + e') + ' ; col bytes = 128c + 16*(l&7) ; matrix = (l>>3)&1')
e('v_lshrrev_b32 v8, 4, v0')
e(f's_lshl_b32 s{S_T0}, s{S_K}, {5 if GMAP else 3}')
e(f'v_add_u32 v1, s{S_T0}, v8')
e(f's_mov_b32 s{S_T1}, {2*9216 if GMAP else 8*9216}')
e(f'v_mul_lo_u32 v1, v1, s{S_T1}')
e('v_and_b32 v9, 7, v0')
e('v_lshlrev_b32 v9, 4, v9')
e(f's_lshl_b32 s{S_T2}, s{S_T}, 7')
e(f'v_add3_u32 v1, v1, v9, s{S_T2}')
e('v_and_b32 v10, 8, v0')
e('v_cmp_ne_u32 vcc, 0, v10')
e(f's_mov_b32 s{S_A}, 9216'); e(f's_mov_b32 s{S_A+1}, 0')
e(f's_mov_b32 s{S_B}, {7*9216 if GMAP else 25*9216}'); e(f's_mov_b32 s{S_B+1}, 0')
e('s_waitcnt lgkmcnt(0)')
e(f'v_mov_b32 v2, s{WG}'); e(f'v_mov_b32 v3, s{WG+1}')
e(f'v_mov_b32 v4, s{WU}'); e(f'v_mov_b32 v5, s{WU+1}')
e('v_cndmask_b32 v2, v2, v4, vcc'); e('v_cndmask_b32 v3, v3, v5, vcc')
e('v_add_co_u32 v2, vcc, v2, v1')
e(f's_load_dword s{S_TAG}, {sp(WS)}, 0')
if not B0: e('s_nop 0')
if B0: e('s_barrier    ; B0')
e('v_addc_co_u32 v3, vcc, 0, v3, vcc')
DOFF = [-2880, -1728, 1728, 2880]
def wload(n):
    if n < 16:
        e(f'global_load_dwordx4 v[{RAW+4*n}:{RAW+4*n+3}], v[2:3], off{NT}')
        if n < 15: e(f'v_lshl_add_u64 v[2:3], v[2:3], 0, {sp(S_B if (n & 1 if GMAP else n == 7) else S_A)}')
    else:
        r = n - 16
        e(f'global_load_dwordx4 v[{RAW+4*n}:{RAW+4*n+3}], v{6+r//4}, {sp(WD)} offset:{DOFF[r%4]}{NT}')
TG = [TX, RAW]; TD = RAW + 32
def gperm(pair): perms(RAW + 32*(pair//4), TG[pair//4], pair % 4)
if not LATE:
    for n in range(WIN0): wload(n)
c('D: row = 64c + 32*(kg&1) + 16*m + 2*(kg>>1) + {0,1,4,5,8,9,12,13} ; col bytes = 128k + 16q')
e('v_and_b32 v6, 24, v0')
e('v_lshlrev_b32 v6, 1, v6')
e('v_lshrrev_b32 v7, 5, v0')
e('v_lshl_add_u32 v6, v7, 1, v6')
e(f's_lshl_b32 s{S_T0}, s{S_T}, 6')
e(f'v_add_u32 v6, s{S_T0}, v6')
e(f's_movk_i32 s{S_T1}, 1152')
e(f'v_mul_lo_u32 v6, v6, s{S_T1}')
e(f's_lshl_b32 s{S_T3}, s{S_K}, 7')
e(f's_add_u32 s{S_T3}, s{S_T3}, 2880')
e(f'v_add3_u32 v6, v6, v9, s{S_T3}')
e('v_add_u32 v7, 9216, v6')
e(f's_mov_b32 s{S_SELLO}, 0x05040100')
e(f's_mov_b32 s{S_SELHI}, 0x07060302')
c('A-fragment LDS address, exchange addresses, partial LDS address')
e('v_lshlrev_b32 v11, 4, v8')
e(f's_mul_i32 s{S_T0}, s{S_T}, 4608')
e(f's_add_u32 s{S_T0}, s{S_T0}, {EXL+2048}')
e(f'v_lshl_add_u32 v13, v0, 4, s{S_T0}')
e(f's_lshl_b32 s{S_T1}, s{S_K}, 9')
e(f's_add_u32 s{S_T0}, s{S_T0}, s{S_T1}')
e(f's_sub_u32 s{S_T0}, s{S_T0}, 2048')
e('v_and_b32 v12, 4, v0'); e('v_lshlrev_b32 v12, 6, v12')
e('v_lshl_add_u32 v12, v10, 4, v12')
e('v_and_b32 v14, 3, v0'); e('v_lshl_add_u32 v12, v14, 5, v12')
e(f'v_add3_u32 v12, v12, v11, s{S_T0}')
if not TRIM: e(f'v_cmp_eq_u32 {sp(S_M)}, 0, v10')
e(f's_lshl_b32 s{S_T0}, s{S_WAVE}, 9')
e('v_lshlrev_b32 v14, 5, v10')
e('v_lshl_add_u32 v14, v9, 1, v14')
e(f'v_add_u32 v14, s{S_T0}, v14')
getxcc()
if TB == 8:
    for i in range(4): e(f's_mov_b32 s{S_PS+i}, {0x07060500+i:#x}')
if LATE:
    for n in range(WE0): wload(n)
    if WEP or WSL:
        if X0: e(f's_cmp_eq_u32 s{S_XCD}, 0'); e('s_cbranch_scc1 L_w_nodl')
        if WEP: e('s_waitcnt lgkmcnt(0)')
        if WSL: e(f's_sleep {WSL}')
        lab('L_w_nodl')
    for n in range(WE0, WIN0): wload(n)
L.append(';;WARMSPOT')
bar1()
stamp(1)
done_pairs = 0; got = 0
NI = 16 + ND1
for n in range(WIN0, NI):
    w = WING if n < 16 else WIND
    if GATE and n == 16 + ND0: e('s_barrier    ; E')
    need = n - w + 1
    if need > got:
        e(f's_waitcnt vmcnt({w-1})'); got = need
    wload(n)
    while done_pairs < 8 and 2*done_pairs + 2 <= got:
        gperm(done_pairs); done_pairs += 1
    if n == WING + 2:
        e('s_waitcnt lgkmcnt(0)')
        e(f's_add_u32 s{S_TAG}, s{S_TAG}, 1')
        e(f's_lshl_b32 s{S_T0}, s{S_XCC}, {3*TB}')
        e(f's_xor_b32 s{S_TAG}, s{S_TAG}, s{S_T0}')
        for i in range(4): e(f's_bfe_u32 s{S_TB+i}, s{S_TAG}, {(TB<<16)|(TB*i)}')
        if TB == 8: e(f'v_mov_b32 v15, s{S_TAG}')
    L.append(';;WARMSPOT')
while done_pairs < (4 if ND1 == 8 else 7):
    e(f's_waitcnt vmcnt({NI - (2*done_pairs+2)})'); gperm(done_pairs); done_pairs += 1
if WST:
    e('s_waitcnt vmcnt(8)'); stamp(1); e('s_waitcnt vmcnt(0)')
stamp(2)
e('s_barrier    ; A')
e(f'ds_read_b128 v[{AF}:{AF+3}], v11 offset:{LDS_X}')
e(f'ds_read_b128 v[{AF+4}:{AF+7}], v11 offset:{LDS_X+64}')
for n in range(NI, 24): wload(n)
e('s_waitcnt lgkmcnt(0)' if STAMP else 's_waitcnt lgkmcnt(1)')
stamp(3)
JO = (0, 4, 1, 5, 2, 6, 3, 7)
for j in JO:
    e(f'v_mfma_f32_16x16x32_bf16 v[{DA+4*j}:{DA+4*j+3}], v[{AF}:{AF+3}], v[{TG[0]+4*j}:{TG[0]+4*j+3}], 0')
late = ILV and done_pairs < 8
while done_pairs < (7 if late else 8):
    e(f's_waitcnt vmcnt({24 - (2*done_pairs+2)})'); gperm(done_pairs); done_pairs += 1
def g7(j):
    sel = S_SELHI if (j & 1) else S_SELLO
    e(f'v_perm_b32 v{TG[1]+4*j+3}, v{RAW+32+28+j//2}, v{RAW+32+24+j//2}, s{sel}')
if late:
    e('s_waitcnt vmcnt(8) lgkmcnt(0)')
    for j in JO[:3]: g7(j)
else: e('s_waitcnt lgkmcnt(0)')
for n, j in enumerate(JO):
    e(f'v_mfma_f32_16x16x32_bf16 v[{DA+4*j}:{DA+4*j+3}], v[{AF+4}:{AF+7}], v[{TG[1]+4*j}:{TG[1]+4*j+3}], v[{DA+4*j}:{DA+4*j+3}]')
    if late and n + 3 < 8: g7(JO[n+3])
EX = TX
e('s_nop 1')
for j in range(4):
    mdpp(DA+4*j, DA+4*j+16, 'quad_perm:[0,1,2,3]', '0x2')
    e(f'v_perm_b32 v{AF+j}, v{DA+4*j}, v15, s{S_PS+j}' if TB == 8 else f'v_bfi_b32 v{AF+j}, {(1<<TB)-1}, s{S_TB+j}, v{DA+4*j}')
e('s_mov_b32 exec_hi, 0')
e(f'global_store_dwordx4 v12, v[{AF}:{AF+3}], {sp(WS)}{EXM}')
e('s_mov_b32 exec_hi, -1')
stamp(4)
L.append(';;WARMSPOT')
for p in range(3):
    e(f's_waitcnt vmcnt({7-2*p})'); perms(RAW+64, TD, p)
def five_loads():
    for i in range(4):
        e(f'global_load_dwordx4 v[{EX+4*i}:{EX+4*i+3}], v13, {sp(WS)} offset:{1024*i-2048} sc1')
    e('s_mov_b32 exec_hi, 0')
    e(f'global_load_dwordx4 v[{EX+16}:{EX+19}], v13, {sp(WS)} offset:2048 sc1')
    e('s_mov_b32 exec_hi, -1')
five_loads()
if not TRIM: e('s_waitcnt vmcnt(6)'); perms(RAW+64, TD, 3)
elif STAMP: e('s_waitcnt vmcnt(6)')
stamp(5)
e(f's_mov_b32 s{S_CNT}, 0')
if TRIM: e(f's_mov_b32 s{S_A}, 0xbfb8aa3b')
e('s_branch L_w_chk')
L.append(';;WARMFREE')
if ROLL:
    lab('L_w_poll')
    e(f's_add_u32 s{S_CNT}, s{S_CNT}, 1')
    e(f's_cmp_ge_u32 s{S_CNT}, {LOCN}')
    e('s_cbranch_scc1 L_w_far')
    lab('L_w_chk')
    AC, TM, M = EX + 20, EX + 24, EX + 28
    for i in range(5):
        e('s_waitcnt vmcnt(4)')
        if i == 4: e('s_mov_b32 exec_hi, 0')
        dst = AC if i == 0 else TM
        for d in range(4): e(f'v_xor_b32 v{dst+d}, s{S_TB+d}, v{EX+4*i+d}')
        e(f'global_load_dwordx4 v[{EX+4*i}:{EX+4*i+3}], v13, {sp(WS)} offset:{1024*i-2048} sc1')
        if i == 0: e(f'v_or_b32 v{M}, v{dst}, v{dst+1}')
        else: e(f'v_or3_b32 v{M}, v{M}, v{dst}, v{dst+1}')
        e(f'v_or3_b32 v{M}, v{M}, v{dst+2}, v{dst+3}')
        if i > 0:
            e(f'v_pk_add_f32 v[{AC}:{AC+1}], v[{AC}:{AC+1}], v[{TM}:{TM+1}]')
            e(f'v_pk_add_f32 v[{AC+2}:{AC+3}], v[{AC+2}:{AC+3}], v[{TM+2}:{TM+3}]')
    e('s_mov_b32 exec_hi, -1')
    e(f'v_and_b32 v{M}, {(1<<TB)-1}, v{M}')
    e(f'v_cmp_ne_u32 vcc, 0, v{M}')
    e('s_cbranch_vccnz L_w_poll')
    EX0 = EX; EX = AC
else:
    lab('L_w_poll')
    e(f's_add_u32 s{S_CNT}, s{S_CNT}, 1')
    e(f's_cmp_ge_u32 s{S_CNT}, {LOCN}')
    e('s_cbranch_scc1 L_w_far')
    lab('L_w_same')
    five_loads()
    lab('L_w_chk')
    M = EX + 20
    for i in range(5):
        e(f's_waitcnt vmcnt({4-i})')
        if i == 4: e('s_mov_b32 exec_hi, 0')
        for d in range(4): e(f'v_xor_b32 v{EX+4*i+d}, s{S_TB+d}, v{EX+4*i+d}')
        if i == 0: e(f'v_or_b32 v{M}, v{EX}, v{EX+1}')
        else: e(f'v_or3_b32 v{M}, v{M}, v{EX+4*i}, v{EX+4*i+1}')
        e(f'v_or3_b32 v{M}, v{M}, v{EX+4*i+2}, v{EX+4*i+3}')
        if i > 0:
            e(f'v_pk_add_f32 v[{EX}:{EX+1}], v[{EX}:{EX+1}], v[{EX+4*i}:{EX+4*i+1}]')
            e(f'v_pk_add_f32 v[{EX+2}:{EX+3}], v[{EX+2}:{EX+3}], v[{EX+4*i+2}:{EX+4*i+3}]')
    e('s_mov_b32 exec_hi, -1')
    e(f'v_and_b32 v{M}, {(1<<TB)-1}, v{M}')
    e(f'v_cmp_ne_u32 vcc, 0, v{M}')
    e('s_cbranch_vccnz L_w_poll')
    EX0 = EX
lab('L_w_go')
if BX: e('s_barrier    ; X')
stamp(6)
a0, a1, t0, t1 = EX, EX+1, EX+4, EX+5
if TRIM:
    def pj(j):
        sel = S_SELHI if (j & 1) else S_SELLO
        e(f'v_perm_b32 v{TD+4*j+3}, v{RAW+64+28+j//2}, v{RAW+64+24+j//2}, s{sel}')
    e(f'v_permlane32_swap_b32 v{EX}, v{EX+2}')
    e(f'v_permlane32_swap_b32 v{EX+1}, v{EX+3}')
    e(f'v_pk_add_f32 v[{EX}:{EX+1}], v[{EX}:{EX+1}], v[{EX+2}:{EX+3}]')
    e(f'v_cvt_pk_bf16_f32 v{EX+2}, v{a0}, v{a1}')
    e(f'v_lshlrev_b32 v{a0}, 16, v{EX+2}')
    e(f'v_and_b32 v{a1}, 0xffff0000, v{EX+2}')
    e(f'v_pk_mul_f32 v[{t0}:{t1}], v[{a0}:{a1}], {sp(S_A)} op_sel_hi:[1,0]')
    e(f'v_exp_f32 v{t0}, v{t0}')
    e(f'v_exp_f32 v{t1}, v{t1}')
    pj(0)
    e(f'v_pk_add_f32 v[{t0}:{t1}], v[{t0}:{t1}], 1.0 op_sel_hi:[1,0]')
    e(f'v_rcp_f32 v{t0}, v{t0}')
    e(f'v_rcp_f32 v{t1}, v{t1}')
    pj(1)
    e(f'v_pk_mul_f32 v[{t0}:{t1}], v[{a0}:{a1}], v[{t0}:{t1}]')
    e(f'v_cvt_pk_bf16_f32 v{t1}, v{t0}, v{t1}')
    e(f'v_lshlrev_b32 v{t0}, 16, v{t1}')
    e(f'v_and_b32 v{t1}, 0xffff0000, v{t1}')
    c('gate lanes (0..7 of each row) take u from the lane 8 further on; only they feed the MFMA rows that are read')
    pj(2)
    dpp('v_mul_f32', t0, a0, t0, 'row_ror:8')
    dpp('v_mul_f32', t1, a1, t1, 'row_ror:8')
    e(f'v_cvt_pk_bf16_f32 v{a0}, v{t0}, v{t1}')
    pj(3); pj(4)
    for p in range(4): mdpp(AF+4+p, a0, f'quad_perm:[{p},{p},{p},{p}]')
    pj(5); pj(6)
else:
    e(f'v_permlane32_swap_b32 v{EX}, v{EX+2}')
    e(f'v_permlane32_swap_b32 v{EX+1}, v{EX+3}')
    e(f'v_pk_add_f32 v[{EX}:{EX+1}], v[{EX}:{EX+1}], v[{EX+2}:{EX+3}]')
    e(f'v_cvt_pk_bf16_f32 v{EX+2}, v{a0}, v{a1}')
    e(f'v_lshlrev_b32 v{a0}, 16, v{EX+2}')
    e(f'v_and_b32 v{a1}, 0xffff0000, v{EX+2}')
    e(f'v_mul_f32 v{t0}, 0xbfb8aa3b, v{a0}')
    e(f'v_mul_f32 v{t1}, 0xbfb8aa3b, v{a1}')
    e(f'v_exp_f32 v{t0}, v{t0}')
    e(f'v_exp_f32 v{t1}, v{t1}')
    e('s_nop 0')
    e(f'v_pk_add_f32 v[{t0}:{t1}], v[{t0}:{t1}], 1.0 op_sel_hi:[1,0]')
    e(f'v_rcp_f32 v{t0}, v{t0}')
    e(f'v_rcp_f32 v{t1}, v{t1}')
    e('s_nop 0')
    e(f'v_pk_mul_f32 v[{t0}:{t1}], v[{a0}:{a1}], v[{t0}:{t1}]')
    e(f'v_cvt_pk_bf16_f32 v{t0}, v{t0}, v{t1}')
    e(f'v_cndmask_b32 v{t0}, v{EX+2}, v{t0}, {sp(S_M)}')
    e(f'v_lshlrev_b32 v{a0}, 16, v{t0}')
    e(f'v_and_b32 v{a1}, 0xffff0000, v{t0}')
    e('s_nop 0')
    dpp('v_mul_f32', a0, a0, a0, 'row_ror:8')
    dpp('v_mul_f32', a1, a1, a1, 'row_ror:8')
    e(f'v_cvt_pk_bf16_f32 v{a0}, v{a0}, v{a1}')
    e('s_nop 1')
    for p in range(4): mdpp(AF+4+p, a0, f'quad_perm:[{p},{p},{p},{p}]')
    e('s_nop 1')
for j in range(8):
    e(f'v_mfma_f32_16x16x32_bf16 v[{DA+4*j}:{DA+4*j+3}], v[{AF+4}:{AF+7}], v[{TD+4*j}:{TD+4*j+3}], 0')
    if TRIM and j == 0: pj(7)
e('s_mov_b32 exec_lo, 0xff0000ff')
e('s_mov_b32 exec_hi, 0')
for jj in range(4):
    if jj > 0: e('s_nop 0')
    e(f'ds_write2_b32 v14, v{DA+8*jj}, v{DA+8*jj+4} offset0:{LDS_P//4+2*jj} offset1:{LDS_P//4+2*jj+1}')
e('s_waitcnt lgkmcnt(0)')
e('s_barrier    ; D')
stamp(7)
if BF: e('s_barrier    ; F')
endpgm()
L.append(';;WARMFREE')

lab('L_p')
e(f's_cmp_ge_u32 s{S_SLOT}, 27'); e('s_cbranch_scc1 L_exit0')
getxcc()
slot9()
e('s_waitcnt lgkmcnt(0)')
e(f's_cmp_lg_u32 s{S_WAVE}, 6'); e('s_cbranch_scc1 L_p1')
c("bring this workgroup's three exchange slots (12 lines) into the L2")
e(f's_mul_i32 s{S_T0}, s{S_T}, 4608')
e(f's_lshl_b32 s{S_T1}, s{S_K}, 9')
e(f's_add_u32 s{S_T0}, s{S_T0}, s{S_T1}')
e(f's_add_u32 s{S_T0}, s{S_T0}, {EXL}')
e('v_lshrrev_b32 v1, 2, v0')
e(f's_movk_i32 s{S_T1}, 4608')
e(f'v_mul_u32_u24 v1, s{S_T1}, v1')
e('v_and_b32 v2, 3, v0')
e('v_lshlrev_b32 v2, 7, v2')
e(f'v_add3_u32 v1, v1, v2, s{S_T0}')
if TLB:
    e(f's_mul_i32 s{S_T1}, s{S_T}, {64*1152}')
    e(f's_lshl_b32 s{S_T2}, s{S_K}, 7')
    e(f's_add_u32 s{S_T1}, s{S_T1}, s{S_T2}')
    e(f's_movk_i32 s{S_T2}, {16*1152}')
    e(f'v_mul_u32_u24 v4, s{S_T2}, v0')
    e(f'v_add_u32 v4, s{S_T1}, v4')
e('s_mov_b64 exec, 0xfff')
if TLB == 1: e(f'global_load_dword v5, v4, {sp(WD)}')
bar1()
if TLB == 2: e(f'global_load_dword v5, v4, {sp(WD)}')
if not NOPT: e(f'global_load_dword v3, v1, {sp(WS)} sc1')
if GATE:
    e(f's_add_u32 s76, s76, {GATE}')
    if X0: e(f's_cmp_eq_u32 s{S_XCD}, 0'); e('s_cselect_b32 s74, 30, 0'); e('s_sub_u32 s76, s76, s74')
    lab('L_gate'); e('s_memrealtime s[72:73]'); e('s_waitcnt lgkmcnt(0)'); e('s_sub_u32 s75, s76, s72'); e('s_cmp_gt_i32 s75, 0'); e('s_cbranch_scc1 L_gate')
    e('s_barrier')
e('s_endpgm')
L.append(';;WARMFREE')
lab('L_p1')
e(f's_load_dword s{S_TAG}, {sp(WS)}, 0')
bar1()
e(f's_lshl_b32 s{S_T3}, s{S_XCC}, 12')
e(f's_add_u32 s{S_T3}, s{S_T3}, {BC}')
e(f's_add_u32 s{S_T2}, s{S_T3}, {64*NBC}')
e(f's_and_b32 s{S_T1}, s{S_WAVE}, 1')
e(f's_lshl_b32 s{S_T1}, s{S_T1}, 6')
e(f'v_lshl_add_u32 v4, v0, 2, s{S_T1}')
e(f's_lshl_b32 s{S_K}, s{S_K}, 7')
e(f's_add_u32 s{S_K}, s{S_K}, s{S_T1}')
e('v_and_b32 v10, 60, v0')
e(f'v_add_u32 v11, s{S_T1}, v10')
e('v_and_b32 v12, 1, v0')
e(f'v_cmp_eq_u32 {sp(S_M)}, 1, v12')
e('v_lshlrev_b32 v12, 2, v12')
e('v_lshl_add_u32 v12, v11, 1, v12')
if GMAP:
    e('v_and_b32 v11, 12, v0'); e('v_lshlrev_b32 v11, 2, v11')
    e('v_lshrrev_b32 v13, 4, v0'); e('v_lshl_add_u32 v11, v13, 2, v11')
    e(f'v_add_u32 v11, s{S_T1}, v11')
e('v_lshrrev_b32 v13, 4, v0')
e('v_and_b32 v14, 15, v0')
e('v_lshlrev_b32 v14, 2, v14')
e('v_lshl_add_u32 v13, v13, 7, v14')
e(f's_lshl_b32 s{S_T0}, s{S_K}, 3')
e(f's_add_u32 s{S_T0}, s{S_T0}, {ACCU}')
e(f'v_add_u32 v13, s{S_T0}, v13')
e('v_mov_b32 v7, 0')
e('s_mov_b64 exec, 0xffff')
L.append(';;WARMSPOT')
e('s_waitcnt lgkmcnt(0)')
e(f's_add_u32 s{S_TAG}, s{S_TAG}, 1')
if GATE: e('s_barrier    ; E')
stamp(1)
if NOP: e(f's_sleep {NOP}')
if SKEW >= 0:
    e('s_cmp_ge_u32 s2, 8'); e('s_cbranch_scc1 L_p_poll')
    e('s_lshl_b32 s72, s2, 2'); e('s_add_u32 s72, s72, 0x300000'); e('v_mov_b32 v20, s72'); e('v_mov_b32 v21, s76')
    e(f'global_store_dword v20, v21, {sp(WS)} sc1')
lab('L_p_poll')
e(f's_load_dwordx2 {sp(S_A)}, {sp(WS)}, s{S_T3}')
e(f's_add_u32 s{S_T3}, s{S_T3}, 64')
e(f's_cmp_ge_u32 s{S_T3}, s{S_T2}')
e('s_cbranch_scc1 L_p_slow')
e('s_waitcnt lgkmcnt(0)')
e(f's_cmp_lg_u32 s{S_A+1}, s{S_TAG}')
e('s_cbranch_scc1 L_p_poll')
lab('L_p_got')
if PCNT: e(f's_sub_u32 s{S_ST+2}, s{S_T2}, s{S_T3}'); e(f's_mov_b32 s{S_ST+3}, 0')
e(f's_andn2_b32 s{S_T1}, 0x7ff, s{S_A}')
e(f's_mul_i32 s{S_T0}, s{S_T1}, 1152')
e(f's_add_u32 s{S_T0}, s{S_T0}, s{S_K}')
e(f's_load_dwordx16 s[{S_XS}:{S_XS+15}], {sp(X)}, s{S_T0}')
stamp(2)
e(f'v_mov_b32 v6, s{S_T1}')
e(f'ds_write_b32 v7, v6 offset:{LDS_WIN}')
e('s_waitcnt lgkmcnt(0)')
stamp(3)
for d in range(16): e(f'v_writelane_b32 v5, s{S_XS+d}, {4*(d&3)+(d>>2) if GMAP else d}')
e(f'ds_write_b32 v4, v5 offset:{LDS_X}')
e('s_waitcnt lgkmcnt(0)')
e('s_barrier    ; A')
L.append(';;WARMSPOT')
e('s_mov_b64 exec, -1')
e(f'ds_read_b32 v5, v11 offset:{LDS_X}')
e(f'v_add_u32 v10, s{S_T0}, v10')
c('r_sel = bf16(sigmoid(r))')
e(f's_ashr_i32 s{S_T2}, s{S_A}, 31')
e(f's_not_b32 s{S_T2}, s{S_T2}')
e(f's_or_b32 s{S_T2}, s{S_T2}, 0x80000000')
e(f's_xor_b32 s{S_T1}, s{S_A}, s{S_T2}')
e(f's_and_b32 s{S_T1}, s{S_T1}, 0xffff0000')
e(f'v_mov_b32 v8, s{S_T1}')
e('v_mul_f32 v8, 0xbfb8aa3b, v8')
e('v_exp_f32 v8, v8')
e(f's_mov_b32 s{S_B}, 0x11111111'); e(f's_mov_b32 s{S_B+1}, 0x11111111')
e('v_add_f32 v8, 1.0, v8')
e('v_rcp_f32 v8, v8')
e(f's_lshl_b64 {sp(S_A)}, {sp(S_B)}, 2')
bf16r(8, 8)
e('s_waitcnt lgkmcnt(0)')
e('v_lshlrev_b32 v6, 16, v5')
e('v_and_b32 v5, 0xffff0000, v5')
e(f'v_cndmask_b32 v5, v6, v5, {sp(S_M)}')
e('v_fma_f32 v5, v5, 0, v5')
e('v_mov_b32 v9, 0x41b80000')
e(f'v_mov_b32 v15, s{S_TAG}')
e('s_mov_b32 exec_lo, 0x77777777'); e('s_mov_b32 exec_hi, 0x77777777')
stamp(4)
if BX: e('s_barrier    ; X')
e('s_barrier    ; D')
for i in range(3):
    e(f'ds_read2st64_b32 v[{16+2*i}:{17+2*i}], v12 offset0:{LDS_P//256+2*i} offset1:{LDS_P//256+2*i+1}')
e('s_waitcnt lgkmcnt(1)' if not STAMP else 's_waitcnt lgkmcnt(0)')
e('v_pk_add_f32 v[16:17], v[16:17], v[18:19]')
e('s_waitcnt lgkmcnt(0)')
e('v_pk_add_f32 v[16:17], v[16:17], v[20:21]')
e('v_add_f32 v16, v16, v17')
e(f'v_cndmask_b32 v16, v16, 1.0, {sp(S_A)}')
e(f'global_atomic_add_f32 v17, v13, v16, {sp(WS)} sc0 sc1')
if BF: e('s_barrier    ; F')
stamp(5)
e('s_waitcnt vmcnt(0)')
stamp(6)
mdpp(18, 17, 'quad_perm:[2,2,2,2]')
e('v_add_f32 v16, v16, v17')
e('v_cmp_eq_f32 vcc, v9, v18')
bf16r(16, 16)
e(f's_and_b64 vcc, vcc, {sp(S_B)}')
e('s_cbranch_scc0 L_end')
e('v_mul_f32 v16, v16, v8')
bf16r(16, 16)
e('v_add_f32 v16, v5, v16')
e('s_nop 1')
mdpp(17, 16, 'quad_perm:[1,1,1,1]')
e('v_cvt_pk_bf16_f32 v16, v16, v17')
e('s_mov_b64 exec, vcc')
if not NOFIN: e(f'global_store_dword v10, v16, {sp(OUT)}{FOM}')
if ACK: e('s_waitcnt vmcnt(0)')
stamp(7)
c('the last adder of the first granule moves the epoch on')
e(f's_cmp_lg_u32 s{S_K}, 0'); e('s_cbranch_scc1 L_end')
e('s_and_b64 exec, vcc, 1'); e('s_cbranch_scc0 L_end')
if not NOEP: e(f'global_store_dword v7, v15, {sp(WS)}{EPM}')
if KD: e('s_memrealtime s[78:79]'); e('s_branch L_kd')
lab('L_end')
if MINI:
    e('s_memrealtime s[82:83]'); e('s_mov_b64 exec, 1')
    e(f's_lshl_b32 s{S_T0}, s2, 4'); e(f's_add_u32 s{S_T0}, s{S_T0}, s{S_WAVE}')
    e(f's_lshl_b32 s{S_T0}, s{S_T0}, 6'); e(f's_add_u32 s{S_T0}, s{S_T0}, 0x8000000')
    e(f'v_mov_b32 v2, s{S_T0}'); e('s_waitcnt lgkmcnt(0)')
    for k in range(4): e(f'v_mov_b32 v{20+k}, s{80+k}')
    e(f'global_store_dwordx4 v2, v[20:23], {sp(WS)}')
if SKEW >= 0:
    if KD: e('s_endpgm'); lab('L_kd')
    else: e('s_cmp_lg_u32 s2, 9'); e('s_cbranch_scc1 L_exit0')
    e('s_mov_b32 s72, 0x300000'); e(f's_load_dwordx8 s[64:71], {sp(WS)}, s72'); e('s_waitcnt lgkmcnt(0)')
    e('s_mov_b32 s74, s64')
    for i in range(1, 8): e(f's_min_u32 s74, s74, s{64+i}')
    if KD == 2:
        e('s_sub_u32 s74, s78, s74'); e('s_min_u32 s74, s74, 900'); e('s_max_u32 s74, s74, 400'); e('s_sub_u32 s74, s74, 400')
        e('s_mul_i32 s74, s74, 6554'); e('s_lshr_b32 s74, s74, 16'); e('s_mul_i32 s74, s74, 1000')
    elif KD: e('s_sub_u32 s74, s78, s74'); e('s_min_u32 s74, s74, 2000'); e('s_mul_i32 s74, s74, 10')
    else: e(f's_sub_u32 s74, s{64+SKEW}, s74'); e('s_min_u32 s74, s74, 500'); e('s_mul_i32 s74, s74, 20')
    if KD == 2: e('s_add_u32 s74, s74, s78')
    else: e('s_memrealtime s[72:73]'); e('s_waitcnt lgkmcnt(0)'); e('s_add_u32 s74, s74, s72')
    lab('L_dspin')
    e('s_memrealtime s[72:73]'); e('s_waitcnt lgkmcnt(0)')
    e('s_sub_u32 s75, s74, s72'); e('s_cmp_gt_i32 s75, 0'); e('s_cbranch_scc1 L_dspin')
if DIAG >= 0:
    e(f's_cmp_lg_u32 s2, {DIAG}'); e('s_cbranch_scc1 L_exit0')
    e('s_memrealtime s[72:73]'); e('s_waitcnt lgkmcnt(0)')
    e('s_sub_u32 s74, s72, s76'); e('s_min_u32 s74, s74, 5000'); e('s_mul_i32 s74, s74, 10'); e('s_add_u32 s74, s74, s72')
    lab('L_dspin')
    e('s_memrealtime s[72:73]'); e('s_waitcnt lgkmcnt(0)')
    e('s_sub_u32 s75, s74, s72'); e('s_cmp_gt_i32 s75, 0'); e('s_cbranch_scc1 L_dspin')
endpgm()
lab('L_seg1_end')
e('.p2align 12')

lab('L_warm_s')
e('s_endpgm')
lab('L_spare')
getxcc()
e(f's_sub_u32 s{S_T}, s2, 224')
e(f's_lshl_b32 s{S_T3}, s{S_XCC}, 12')
e(f's_add_u32 s{S_T3}, s{S_T3}, {BC}')
e(f'v_lshl_add_u32 v3, v0, 6, s{S_T3}')
e(f's_cmp_lg_u32 s{S_SLOT}, 27'); e('s_cbranch_scc1 L_s_noclr')
c('clear 9 accumulator lines, bring the broadcast lines into this L2')
e(f's_mul_i32 s{S_T0}, s{S_XCD}, {9*128}')
e(f's_addk_i32 s{S_T0}, {ACCU}')
e(f'v_lshl_add_u32 v1, v0, 4, s{S_T0}')
e('v_mov_b64 v[12:13], 0'); e('v_mov_b64 v[14:15], 0')
e(f'global_store_dwordx4 v1, v[12:15], {sp(WS)} sc1')
e(f'global_store_dwordx4 v1, v[12:15], {sp(WS)} offset:128 sc1')
if NBC < 64: e('s_mov_b32 exec_hi, 0')
e(f'global_load_dwordx2 v[8:9], v3, {sp(WS)} sc1')
if NBC < 64: e('s_mov_b32 exec_hi, -1')
lab('L_s_noclr')
e(f's_mul_i32 s{S_T0}, s{S_XCD}, {K2X}')
if SP27:
    e(f's_cmp_eq_u32 s{S_SLOT}, 27'); e(f's_cselect_b32 s{S_T1}, 32, s{S_SLOT}'); e(f's_mul_i32 s{S_T1}, s{S_T1}, {K2R}')
else: e(f's_mul_i32 s{S_T1}, s{S_SLOT}, {K2R}')
e(f's_add_u32 s{S_T0}, s{S_T0}, s{S_T1}')
e(f's_add_u32 s{S_T0}, s{S_T0}, {(K2 - 28*K2R) & 0xffffffff}')
e('v_and_b32 v41, 7, v0')
e(f'v_mul_u32_u24 v42, {K2X}, v41')
e(f'v_lshl_add_u32 v41, v41, {3 if APOLL else 7}, s{S_T0}')
if not APOLL:
    e(f's_cmp_ge_u32 s{S_T}, {NDEST}'); e('s_cbranch_scc1 L_s_nopt')
    e(f'global_load_dwordx2 v[8:9], v41, {sp(WS)} sc1')
    lab('L_s_nopt')
e(f's_lshl_b32 s{S_T0}, s{S_XCD}, {3 if APOLL else 7}')
e(f's_add_u32 s{S_T0}, s{S_T0}, {K2}')
e('v_lshrrev_b32 v2, 3, v0'); e(f'v_mul_u32_u24 v2, {K2R}, v2'); e(f'v_add3_u32 v42, v42, v2, s{S_T0}')
e(f's_movk_i32 s{S_T1}, 1152')
e(f's_movk_i32 s{S_T2}, 0x7ff')
e('v_mov_b32 v13, 0')
e('s_waitcnt lgkmcnt(0)')
e(f's_add_u32 s{S_TAG}, s{S_TAG}, 1')
e(f'v_mov_b32 v7, s{S_TAG}')
stamp(1)
e('s_barrier    ; B1')
e(f's_cmp_lt_u32 s{S_T}, {NDEST}'); e('s_cbranch_scc1 L_s_l2')
e(f's_cmp_lg_u32 s{S_SLOT}, 27'); e('s_cbranch_scc1 L_s_wait')
e(f's_mov_b32 s{S_CNT}, 0')
if L1ST: stamp(6)
lab('L_s_poll1')
if L1ST:
    e(f's_mov_b64 s[{S_ST+6}:{S_ST+7}], s[{S_ST+4}:{S_ST+5}]'); stamp(2); e('s_waitcnt lgkmcnt(0)')
    e('s_mov_b64 s[70:71], vcc')
e(f'global_load_dwordx2 v[8:9], v40, {sp(WS)} sc1')
e(f's_add_u32 s{S_CNT}, s{S_CNT}, 1')
e(f's_cmp_lg_u32 s{S_CNT}, {LOCN}')
e('s_cbranch_scc1 L_s_same1')
if A27:
    c("the key of this very workgroup is always in the local copy")
    e('v_bfe_u32 v2, v40, %d, 6' % K1SH); e('v_cmp_ne_u32 vcc, 27, v2'); e('s_mov_b64 exec, vcc')
e(f'v_add_u32 v40, {K1G-K1L}, v40')
if A27: e('s_mov_b64 exec, -1')
lab('L_s_same1')
e(f's_cmp_gt_u32 s{S_CNT}, {SPIN}')
e('s_cbranch_scc1 L_s_got1')
e('s_waitcnt vmcnt(0)')
e(f'v_cmp_ne_u32 vcc, s{S_TAG}, v9')
e('s_cbranch_vccnz L_s_poll1')
lab('L_s_got1')
stamp(7)
if L1ST: e(f's_mov_b64 s[{S_ST+2}:{S_ST+3}], s[70:71]')
for m in ('row_shr:1', 'row_shr:2', 'row_shr:4', 'row_shr:8'):
    dpp('v_max_u32', 8, 8, 8, m); e('s_nop 1')
dpp('v_max_u32', 8, 8, 8, 'row_bcast:15', '0xa')
if X0:
    e('s_nop 1'); dpp('v_max_u32', 8, 8, 8, 'row_bcast:31', '0xc')
e(f's_mov_b64 exec, {(1<<NDEST)-1:#x}' if NDEST < 32 else f's_mov_b32 exec_hi, {0xff if SP27 else 0}')
e(f'v_readlane_b32 s{S_T0}, v8, {63 if X0 else 31}')
e('s_nop 1')
e(f'v_mov_b32 v6, s{S_T0}')
e(f'global_store_dwordx2 v42, v[6:7], {sp(WS)} sc1')
if STAMP:
    stamp(5); e('s_waitcnt vmcnt(0)'); stamp(4)
if SP27:
    e('s_mov_b64 exec, -1'); e('s_branch L_s_l2')
lab('L_s_wait')
c('not a reader: take the winner from the local broadcast or the device-wide copy')
e('s_mov_b64 exec, 3')
e(f's_movk_i32 s{S_T0}, {WIN_G}'); e(f'v_writelane_b32 v3, s{S_T0}, 1')
e(f's_mov_b32 s{S_CNT}, {SPIN}')
lab('L_s_wpoll')
e(f'global_load_dwordx2 v[8:9], v3, {sp(WS)} sc1')
e(f's_sub_u32 s{S_CNT}, s{S_CNT}, 1')
e('s_cbranch_scc1 L_s_nog')
if opt('--wsleep', 0): e('s_sleep 2')
e('s_waitcnt vmcnt(0)')
e(f'v_cmp_eq_u32 vcc, s{S_TAG}, v9')
e(f'v_bfi_b32 v14, v8, 0, s{S_T2}')
e('s_cbranch_vccz L_s_wpoll')
e('s_mov_b64 exec, vcc')
e('s_branch L_s_nog')
lab('L_s_l2')
e(f's_mov_b32 s{S_CNT}, {SPIN}')
e('v_min_u32 v5, 8, v0')
e('v_lshlrev_b32 v5, 7, v5')
if SPEC or SP27:
    e(f's_cmp_ge_u32 s{S_T}, {8*NRD}'); e('s_cbranch_scc1 L_s_spec')
if APOLL:
    e('v_mov_b64 v[10:11], 0')
    for i in range(APOLL): e(f'v_not_b32 v{17+2*i}, v7')
    e('s_mov_b64 exec, 0xff')
    lab('L_s_poll')
    for i in range(APOLL):
        o = (i + 1) % APOLL
        e(f'global_atomic_add_x2 v[{16+2*i}:{17+2*i}], v41, v[10:11], {sp(WS)} sc0 sc1')
        if ASL: e(f's_sleep {ASL}')
        e(f's_waitcnt vmcnt({APOLL-1})')
        e(f'v_cmp_ne_u32 vcc, s{S_TAG}, v{17+2*o}')
        dpp('v_max_u32', 8, 16+2*o, 16+2*o, 'quad_perm:[1,0,3,2]')
        e('s_cbranch_vccz L_s_got')
    e(f's_sub_u32 s{S_CNT}, s{S_CNT}, 1')
    e('s_cbranch_scc0 L_s_poll')
    lab('L_s_got')
    stamp(2)
    e('s_nop 0')
    dpp('v_max_u32', 8, 8, 8, 'quad_perm:[2,3,0,1]'); e('s_nop 1')
    dpp('v_max_u32', 8, 8, 8, 'row_half_mirror')
    e('s_mov_b64 exec, -1')
    e(f'v_readfirstlane_b32 s{S_T0}, v8')
    e('s_nop 1')
    e(f'v_mov_b32 v6, s{S_T0}')
else:
    lab('L_s_poll')
    if STAMP:
        e(f's_mov_b64 s[{S_ST+12}:{S_ST+13}], s[{S_ST+10}:{S_ST+11}]'); stamp(5); e('s_waitcnt lgkmcnt(0)')
    e(f'global_load_dwordx2 v[8:9], v41, {sp(WS)} sc1')
    e(f's_sub_u32 s{S_CNT}, s{S_CNT}, 1')
    e('s_cbranch_scc1 L_s_got')
    e('s_waitcnt vmcnt(0)')
    e(f'v_cmp_ne_u32 vcc, s{S_TAG}, v9')
    dpp('v_max_u32', 8, 8, 8, 'quad_perm:[1,0,3,2]')
    e('s_cbranch_vccnz L_s_poll')
    lab('L_s_got')
    stamp(2)
    e('s_nop 0')
    dpp('v_max_u32', 8, 8, 8, 'quad_perm:[2,3,0,1]'); e('s_nop 1')
    dpp('v_max_u32', 6, 8, 8, 'row_half_mirror')
if NBC < 64: e('s_mov_b32 exec_hi, 0')
e(f'global_store_dwordx2 v3, v[6:7], {sp(WS)}')
e(f'v_bfi_b32 v14, v6, 0, s{S_T2}')
e(f'v_mad_u32_u24 v5, v14, s{S_T1}, v5')
e(f'global_load_dword v39, v5, {sp(X)}')
stamp(3)
e(f's_cmp_lg_u32 s{S_T}, 7')
e('s_cbranch_scc1 L_s_nog')
e(f'v_mov_b32 v5, {WIN_G}')
e('s_mov_b64 exec, 1')
e(f'global_store_dwordx2 v5, v[6:7], {sp(WS)} sc1')
lab('L_s_nog')
e(f'ds_write_b32 v13, v14 offset:{LDS_WIN}')
e('s_waitcnt lgkmcnt(0)')
e('s_barrier    ; A')
e('s_barrier    ; D')
if BF or BX: e('s_barrier    ; F')
lab('L_s_end')
endpgm()

if SPEC or SP27:
    lab('L_s_spec')
    c("this spare pulls every candidate row into the L2 as its key arrives")
    e('v_lshrrev_b32 v12, 3, v0'); e('v_lshlrev_b32 v12, 7, v12')
    lab('L_s_spoll')
    e(f'global_load_dwordx2 v[8:9], v41, {sp(WS)} sc1')
    e(f's_sub_u32 s{S_CNT}, s{S_CNT}, 1')
    e('s_cbranch_scc1 L_s_got')
    e('s_waitcnt vmcnt(0)')
    e(f'v_cmp_eq_u32 vcc, s{S_TAG}, v9')
    e(f'v_bfi_b32 v10, v8, 0, s{S_T2}')
    e(f'v_mad_u32_u24 v11, v10, s{S_T1}, v12')
    e('s_and_b64 exec, vcc, -1')
    e('s_cbranch_scc0 L_s_snone')
    e(f'global_load_dword v38, v11, {sp(X)}')
    e(f'global_load_dword v38, v11, {sp(X)} offset:128')
    lab('L_s_snone')
    e('s_mov_b64 exec, -1')
    dpp('v_max_u32', 8, 8, 8, 'quad_perm:[1,0,3,2]')
    e('s_cmp_eq_u64 vcc, -1')
    e('s_cbranch_scc0 L_s_spoll')
    e('s_branch L_s_got')
e('.p2align 6')
lab('L_warm_r')
e('s_endpgm')
lab('L_r2')
for i in range(4): e(f'v_mov_b32 v{ACC+i}, 0')
e('v_sub_u32 v6, 0xffff, v1')
e(f'v_add_u32 v7, {K1G-K1L}, v3')
e(f's_mov_b32 s{S_T2}, 0xffff0000')
KY = 84
if WLDS:
    if RST: e('s_waitcnt lgkmcnt(0)'); stamp(7)
    e(f's_waitcnt vmcnt({9+RPT})')
    if RST: stamp(5)
    for cc in range(9): e(f'ds_read_b128 v[{WW+4*cc}:{WW+4*cc+3}], v2 offset:{LDS_W+128*cc}')
e('s_waitcnt lgkmcnt(0)')
e(f's_add_u32 s{S_TAG}, s{S_TAG}, 1')
e(f'v_mov_b32 v{KY+1}, s{S_TAG}')
e(f's_cmp_ge_u32 s{S_SLOT}, 27')
for cc in range(9):
    e(f's_waitcnt vmcnt({8-cc+RPT})')
    if RST and cc == 0: stamp(6)
    for d in range(4): e(f'v_dot2c_f32_bf16 v{ACC+d}, v{XR+4*cc+d}, v{WW+4*cc+d}')
stamp(2)
e('s_nop 2')
e(f'v_pk_add_f32 v[{ACC}:{ACC+1}], v[{ACC}:{ACC+1}], v[{ACC+2}:{ACC+3}]')
e(f'v_add_f32 v{ACC}, v{ACC}, v{ACC+1}')
for m in ['quad_perm:[1,0,3,2]', 'quad_perm:[2,3,0,1]', 'row_half_mirror']:
    e('s_nop 1'); dpp('v_add_f32', ACC, ACC, ACC, m)
K0, K1 = KY+2, KY+3
e(f'v_cmp_o_f32 vcc, v{ACC}, v{ACC}')
e(f'v_cvt_pk_bf16_f32 v{K0}, v{ACC}, v{ACC}')
e(f'v_ashrrev_i32 v{K1}, 31, v{K0}')
e(f'v_or_b32 v{K1}, 0x80000000, v{K1}')
e(f'v_xor_b32 v{K0}, v{K0}, v{K1}')
e(f'v_cndmask_b32 v{K0}, 0, v{K0}, vcc')
e(f'v_and_or_b32 v{KY}, v{K0}, s{S_T2}, v6')
e('s_nop 1'); dpp('v_max_u32', KY, KY, KY, 'row_shr:8')
e('s_nop 1'); dpp('v_max_u32', KY, KY, KY, 'row_bcast:15', '0xa')
e('s_nop 1'); dpp('v_max_u32', KY, KY, KY, 'row_bcast:31', '0xc')
e('s_mov_b32 exec_lo, 0'); e('s_brev_b32 exec_hi, 1')
e('s_cbranch_scc0 L_r_k1')
e('s_barrier    ; B1')
lab('L_r_k1')
e(f'global_store_dwordx2 v3, v[{KY}:{KY+1}], {sp(WS)}')
if L1ST: stamp(7)
e('s_cbranch_scc1 L_r_k2')
if HOLD: e('s_barrier    ; B1')
lab('L_r_k2')
if A27: e(f's_cmp_eq_u32 s{S_SLOT}, 27'); e('s_cbranch_scc1 L_r_k3')
e(f'global_store_dwordx2 v7, v[{KY}:{KY+1}], {sp(WS)} sc1')
if A27: lab('L_r_k3')
e('s_mov_b64 exec, -1')
stamp(3)
e(f'v_mov_b32 v{K1}, 0x207')
e(f'v_cmp_class_f32 vcc, v{ACC}, v{K1}')
e('s_cbranch_vccnz L_r_fix')
lab('L_r_nofix')
if GATE:
    e(f's_cmp_ge_u32 s{S_SLOT}, 27'); e('s_cbranch_scc1 L_r_noe'); e('s_barrier'); lab('L_r_noe')
def copy_rows(m=ONT):
    if NOCOPY == 1 or (NOCOPY == 2 and m == '') or (NOCOPY == 3 and m != ''): return
    for cc in range(9):
        e(f'global_store_dwordx4 v4, v[{XR+4*cc}:{XR+4*cc+3}], {sp(OUT)} offset:{128*cc}{m}')
if CP == 'E':
    e(f'v_readlane_b32 s{S_T1}, v{KY}, 63')
    e(f's_andn2_b32 s{S_T1}, 0x7ff, s{S_T1}')
    e(f'v_cmp_ne_u32 vcc, s{S_T1}, v1')
    e('s_mov_b64 exec, vcc')
    copy_rows()
    e('s_not_b64 exec, vcc')
e('s_barrier    ; A')
e('v_mov_b32 v2, 0')
e(f'ds_read_b32 v2, v2 offset:{LDS_WIN}')
e('s_waitcnt lgkmcnt(0)')
e('v_cmp_ne_u32 vcc, v2, v1')
if CP == 'D': e('s_barrier    ; D')
if BF: e('s_barrier    ; F')
stamp(4)
e('s_and_b64 exec, exec, vcc')
if CP == 'E': e('s_cbranch_scc0 L_r_end')
if SPL:
    e(f's_cmp_ge_u32 s{S_SLOT}, 27'); e('s_cbranch_scc1 L_r_plain')
copy_rows()
lab('L_r_end')
if BX: e('s_barrier    ; D')
if CP != 'D': e('s_barrier    ; D')
if STAMP and not RST:
    stamp(5); e('s_waitcnt vmcnt(0)'); stamp(6)
endpgm()

if SPL:
    lab('L_r_plain')
    copy_rows('')
    e('s_branch L_r_end')
lab('L_w_far')
c('partners may sit on another die: publish a device-wide copy, then alternate between the two copies')
e(f's_cmp_gt_u32 s{S_CNT}, {SPIN}')
e('s_cbranch_scc1 L_w_go')
e(f'v_xor_b32 v13, {EXG^EXL}, v13')
e(f's_xor_b32 s{S_TB+3}, s{S_TB+3}, s{S_XCC}')
e(f's_cmp_lg_u32 s{S_CNT}, {LOCN}')
e('s_cbranch_scc1 L_w_same')
e(f'v_xor_b32 v12, {EXG^EXL}, v12')
e(f'v_xor_b32 v{AF+3}, s{S_XCC}, v{AF+3}')
e('s_mov_b32 exec_hi, 0')
e(f'global_store_dwordx4 v12, v[{AF}:{AF+3}], {sp(WS)} sc1')
e('s_mov_b32 exec_hi, -1')
if ROLL:
    lab('L_w_same')
    e('s_waitcnt vmcnt(0)')
    EX = EX0
    five_loads()
    e('s_branch L_w_chk')
else: e('s_branch L_w_same')
lab('L_p_slow')
e(f'v_mov_b32 v6, {WIN_G}')
e(f's_mov_b32 s{S_CNT}, {SPIN}')
lab('L_p_slowpoll')
e(f'global_load_dwordx2 v[8:9], v6, {sp(WS)} sc1')
e('s_waitcnt vmcnt(0) lgkmcnt(0)')
e(f'v_readfirstlane_b32 s{S_A}, v8')
e(f'v_readfirstlane_b32 s{S_A+1}, v9')
e(f's_sub_u32 s{S_CNT}, s{S_CNT}, 1')
e('s_cbranch_scc1 L_p_got')
e(f's_cmp_lg_u32 s{S_A+1}, s{S_TAG}')
e('s_cbranch_scc1 L_p_slowpoll')
e('s_branch L_p_got')
if STAMP:
    lab('L_flush')
    e('s_waitcnt vmcnt(0) lgkmcnt(0)')
    e('s_mov_b64 exec, 1')
    e('s_sleep 40')
    e(f's_lshl_b32 s{S_T0}, s2, 4'); e(f's_add_u32 s{S_T0}, s{S_T0}, s{S_WAVE}')
    e(f's_lshl_b32 s{S_T0}, s{S_T0}, 6'); e(f's_add_u32 s{S_T0}, s{S_T0}, 0x8000000')
    e(f'v_mov_b32 v2, s{S_T0}')
    for i in range(4):
        for k in range(4): e(f'v_mov_b32 v{4+k}, s{S_ST+4*i+k}')
        e(f'global_store_dwordx4 v2, v[4:7], {sp(WS)} offset:{16*i}'); e('s_nop 1')
    e('s_endpgm')
lab('L_r_fix')
c('x + x*0 turns an infinity into a NaN')
e(f's_mov_b32 s{S_SELHI}, 0x07060302')
for d in range(36):
    r = XR + d
    e(f'v_lshlrev_b32 v{K0}, 16, v{r}')
    e(f'v_and_b32 v{K1}, s{S_T2}, v{r}')
    e(f'v_fma_f32 v{K0}, v{K0}, 0, v{K0}')
    e(f'v_fma_f32 v{K1}, v{K1}, 0, v{K1}')
    e(f'v_perm_b32 v{r}, v{K1}, v{K0}, s{S_SELHI}')
e('s_branch L_r_nofix')

hdr = f'''; Mixture-of-depths block, capacity 1: r = x.w_r, the row with the largest r goes through a SwiGLU FFN
;   waves 0-2 (W) : workgroups 0..215 stream w_gate/w_up (64 rows x 64 columns, both matrices) and w_down
;                   (64 rows x 64 columns) into registers while the argmax is still being found; 9 workgroups
; @launch grid=(256,1,1) block=(512,1,1) lds={LDS_BYTES}
.amdgcn_target "amdgcn-amd-amdhsa--gfx950"
.text
.globl standalone__moe_arch_mod__prompt_kernel
.p2align 12
.fill {(4096-768)//4}, 4, 0xBF800000
.p2align 8
.type standalone__moe_arch_mod__prompt_kernel,@function
standalone__moe_arch_mod__prompt_kernel:'''
tail = '''.section .rodata,"a"
.p2align 6
.amdhsa_kernel standalone__moe_arch_mod__prompt_kernel
  .amdhsa_next_free_vgpr 184
  .amdhsa_next_free_sgpr %SG%
  .amdhsa_accum_offset 184
  .amdhsa_group_segment_fixed_size 0
  .amdhsa_kernarg_size 64
  .amdhsa_user_sgpr_count 2
  .amdhsa_user_sgpr_kernarg_segment_ptr 1
  .amdhsa_system_sgpr_workgroup_id_x 1
  .amdhsa_float_denorm_mode_32 3
.end_amdhsa_kernel
'''
tail = tail.replace('%SG%', '96' if (STAMP or MINI or DIAG >= 0 or SKEW >= 0 or GATE) else '64')
def offsets(lines):
    out = []; k = 0
    for ln in lines:
        if ln.startswith(';;WARM'): out.append(f'MK{k}:'); k += 1
        else: out.append(ln)
    src = hdr.replace('.fill 832,', '.fill 1024,') + '\n' + '\n'.join(out) + '\nL_warm1:\nL_warm2:\nL_warm3:\n' + tail
    d = tempfile.mkdtemp()
    open(d + '/a.s', 'w').write(src)
    subprocess.run(['clang', '-x', 'assembler', '-target', 'amdgcn-amd-amdhsa', '-mcpu=gfx950', '-c', d + '/a.s', '-o', d + '/a.o'], check=True)
    t = subprocess.run(['llvm-objdump', '-t', d + '/a.o'], capture_output=True, text=True).stdout
    sy = {m.group(2): int(m.group(1), 16) for m in re.finditer(r'^([0-9a-f]{16}) .*\.text\s+[0-9a-f]+ (?:\.protected |\.hidden )?(\S+)$', t, re.M)}
    base = sy['standalone__moe_arch_mod__prompt_kernel']
    return {n: v - base for n, v in sy.items()}
offs = offsets(L)
marks = [(i, ln) for i, ln in enumerate(L) if ln.startswith(';;WARM')]
mo = [offs[f'MK{k}'] for k in range(len(marks))]
chosen = []
segs = [(0, offs['L_end'])]
shift = 0
for (a, b) in segs:
    pass
    covered = ((a + shift) // 64) * 64 + 1088
    while covered < b + shift + 8:
        cand = [k for k in range(len(marks)) if a <= mo[k] < b and mo[k] + shift + 4 < covered + 64 and (not chosen or k > chosen[-1])]
        assert cand, (covered, mo, segs)
        k = cand[-1]
        sp4 = marks[k][1].startswith(';;WARMSPOT')
        pos = mo[k] + shift + (4 if sp4 else 0)
        chosen.append(k); shift += 8 if sp4 else 4
        nc = (pos // 64) * 64 + 1088
        assert nc > covered, (nc, covered, mo)
        covered = nc
assert offs['L_seg1_end'] + 20 < 4096
names = {k: n + 1 for n, k in enumerate(chosen)}
nst = len(chosen)
outl = []; k = 0
for ln in L:
    if ln.startswith(';;WARM'):
        if k in names:
            n = names[k]
            tgt = f'L_warm{n+3}' if n + 3 <= nst else 'L_p'
            if ln.startswith(';;WARMSPOT'): outl.append(f'    s_branch L_skip{n}')
            outl.append(f'L_warm{n}:'); outl.append(f'    s_branch {tgt}')
            if ln.startswith(';;WARMSPOT'): outl.append(f'L_skip{n}:')
        k += 1
    elif ln == 'L_p:':
        for n in range(nst + 1, 4): outl.append(f'L_warm{n}:')
        outl.append(ln)
    else: outl.append(ln)
sys.stderr.write(f'chosen {[mo[k] for k in chosen]} ' + ' '.join(f'{n}={v}' for n, v in sorted(offs.items(), key=lambda x: x[1]) if n in ('L_w','L_w_poll','L_p','L_end','L_seg1_end','L_r2','L_spare','L_s_end','L_r_end')) + '\n')
print(hdr); print('\n'.join(outl)); print(tail)
```

```python
import sys, subprocess, re, tempfile
def opt(name, d):
    a = sys.argv
    return type(d)(a[a.index(name)+1]) if name in a else d
def mod(name, d):
    v = opt(name, d); return '' if v == '-' else ' ' + v.replace('+', ' ')
STAMP = '--stamp' in sys.argv
MINI = '--mini' in sys.argv
WING = opt('--wing', 8); WIND = opt('--wind', 10); WIN0 = opt('--win0', 7)
NT = mod('--nt', 'nt'); XNT = mod('--xnt', '-'); ONT = mod('--ont', 'sc1')
CP = opt('--cp', 'D')
DIAG = opt('--diag', -1)
HOLD = opt('--hold', 1); WLAST = opt('--wlast', 0); LIGHT = opt('--light', 0)
WLDS = opt('--wlds', 1); TLB = opt('--tlb', 0); ACK = opt('--ack', 0)
K1SH = opt('--k1sh', 7)
SKEW = opt('--skew', -1)
X0 = opt('--x0', 0); APOLL = opt('--apoll', 1); ASL = opt('--asl', 0); SPEC = opt('--spec', 0)
B0 = opt('--b0', 0)
NOP = opt('--nop', 0); NOPT = opt('--nopt', 0); WST = opt('--wst', 0)
RST = opt('--rst', 0); LATE = opt('--late', 1); SPX = opt('--spx', 0)
NRD = opt('--nrd', 4); NBC = opt('--nbc', 64)
SPL = opt('--spl', 1)
ND1 = opt('--nd1', 8)
NOCOPY = opt('--nocopy', 0); EXM = mod('--exm', '-'); FOM = mod('--fom', '-')
EPM = mod('--epm', '-')
NOEP = opt('--noep', 0); NOFIN = opt('--nofin', 0); EARLYST = opt('--est', 0)
KD = opt('--kdiag', 0)
if KD: SKEW = 0
ROLL = opt('--roll', 1)
WEP = opt('--wep', 0); GMAP = opt('--gmap', 1); WSL = opt('--wsl', 0)
RPT = opt('--rpt', 1); WE0 = opt('--we0', 0)
PCNT = opt('--pcnt', 0)
K2X = opt('--k2x', 128); K2R = opt('--k2r', 8192)
TRIM = opt('--trim', 1)
GATE = opt('--gate', 0); ND0 = opt('--nd0', 0)
L1ST = opt('--l1st', 0)
A27 = opt('--a27', 1); APT = opt('--apt', 1)
SP27 = opt('--sp27', 0)
BF = opt('--bf', 1); TB = opt('--tb', 6)
WK = opt('--wk', 0)
ILV = opt('--ilv', 1)
BX = opt('--bx', 0)
if BX: BF = 0
KP = opt('--kp', '')
SPIN = 100000
LOCN = opt('--locn', 60)

NDEST = 8 * (NRD + SPEC)
L = []
def e(s): L.append('    ' + s)
def lab(s): L.append(s + ':')
def c(s): L.append('    ; ' + s)
X, WR, WG, WU, WD, OUT, DBG, WS = 4, 6, 8, 10, 12, 14, 16, 18
def sp(n): return f's[{n}:{n+1}]'
S_WAVE, S_XCD, S_SLOT = 20, 21, 22
S_T0, S_T1, S_T2, S_T3 = 23, 24, 25, 26
S_SELLO, S_SELHI = 27, 28
S_CNT, S_TAG, S_T, S_K = 29, 30, 31, 32
S_XCC = 33
S_A, S_B = 34, 36
S_TB = 38; S_PS = 42
S_M = 46
S_XS = 48
S_ST = 80
K1L, K1G, WIN_G, ACCU, BC, K2, EXL, EXG = 0x20000, 0x30000, 0x3000, 0x4000, 0x8000, 0x40000, 0x100000, 0x180000
LDS_X, LDS_WIN, LDS_P = 0, 128, 256
LDS_W = 2048
LDS_BYTES = 3328

role = ['?']
def stamp(i):
    if KP and KP == role[0] + str(i): e('s_memrealtime s[90:91]')
    if STAMP: e(f's_memrealtime s[{S_ST+2*i}:{S_ST+2*i+1}]')
def kpflush():
    if KP and KP[0] == role[0]:
        e('s_mov_b64 s[92:93], exec'); e('s_mov_b64 exec, 1'); e('s_waitcnt lgkmcnt(0)'); e('v_mov_b32 v2, 0'); e('v_mov_b32 v3, s90')
        e(f'global_atomic_umax v2, v3, {sp(DBG)} sc1'); e('s_mov_b64 exec, s[92:93]')
def endpgm():
    e('s_branch L_flush' if STAMP else 's_endpgm')
def dpp(op, d, a, b, m, rm='0xf'):
    e(f'{op}_dpp v{d}, v{a}, v{b} {m} row_mask:{rm} bank_mask:0xf')
def mdpp(d, a, m, rm='0xf'):
    e(f'v_mov_b32_dpp v{d}, v{a} {m} row_mask:{rm} bank_mask:0xf')
def perms(raw, T, p):
    for j in range(8):
        sel = S_SELHI if (j & 1) else S_SELLO
        e(f'v_perm_b32 v{T+4*j+p}, v{raw+4*(2*p+1)+j//2}, v{raw+4*(2*p)+j//2}, s{sel}')
def bf16r(d, s):
    e(f'v_cvt_pk_bf16_f32 v{d}, v{s}, v{s}'); e(f'v_lshlrev_b32 v{d}, 16, v{d}')
def slot9():
    e(f's_mul_i32 s{S_T0}, s{S_SLOT}, 57')
    e(f's_lshr_b32 s{S_T0}, s{S_T0}, 9')
    e(f's_mul_i32 s{S_K}, s{S_T0}, 9')
    e(f's_sub_u32 s{S_K}, s{S_SLOT}, s{S_K}')
    e(f's_mul_i32 s{S_T}, s{S_XCD}, 3')
    e(f's_add_u32 s{S_T}, s{S_T}, s{S_T0}')
    e(f's_mul_i32 s{S_T}, s{S_T}, 3')
b1n = [0]
def bar1():
    if not HOLD: return
    if X0:
        b1n[0] += 1
        e(f's_cmp_eq_u32 s{S_XCD}, 0'); e(f's_cbranch_scc1 L_nob{b1n[0]}')
        e('s_barrier    ; B1')
        lab(f'L_nob{b1n[0]}')
    else: e('s_barrier')
def getxcc(): e(f's_getreg_b32 s{S_XCC}, hwreg(HW_REG_XCC_ID, 0, 3)')

if MINI and EARLYST: e('s_memrealtime s[80:81]')
e('s_load_dwordx16 s[4:19], s[0:1], 0')
e('s_cmp_ge_u32 s2, 256')
e('s_cbranch_scc1 L_exit0')
stamp(0)
if MINI and not EARLYST: e('s_memrealtime s[80:81]')
if DIAG >= 0 or SKEW >= 0 or GATE: e('s_memrealtime s[76:77]')
e(f'v_readfirstlane_b32 s{S_WAVE}, v0')
e('v_and_b32 v0, 63, v0')
e(f's_and_b32 s{S_XCD}, s2, 7')
e(f's_lshr_b32 s{S_SLOT}, s2, 3')
e(f's_lshr_b32 s{S_WAVE}, s{S_WAVE}, 6')
if STAMP:
    for i in range(1, 8): e(f's_mov_b64 s[{S_ST+2*i}:{S_ST+2*i+1}], 0')
e(f's_cmp_lt_u32 s{S_WAVE}, 4'); e('s_cbranch_scc1 L_notp')
if B0: e('s_barrier    ; B0')
if WK == 1: e('s_waitcnt lgkmcnt(0)')
if WK > 1: e(f's_sleep {WK}')
e(f's_cmp_eq_u32 s{S_WAVE}, 4'); e('s_cbranch_scc1 L_warm1')
e(f's_cmp_eq_u32 s{S_WAVE}, 5'); e('s_cbranch_scc1 L_warm2')
e(f's_cmp_eq_u32 s{S_WAVE}, 6'); e('s_cbranch_scc1 L_warm3')
e('s_branch L_warm_r')
lab('L_spare0')
if X0:
    e(f's_cmp_eq_u32 s{S_WAVE}, 1'); e('s_cbranch_scc1 L_rx')
e(f's_cmp_lg_u32 s{S_WAVE}, 0'); e('s_cbranch_scc1 L_warm_s')
e(f's_lshl_b32 s{S_T1}, s{S_XCD}, {6+K1SH}')
e(f's_add_u32 s{S_T1}, s{S_T1}, {K1L}')
if X0:
    e(f's_cmp_eq_u32 s{S_XCD}, 0')
    e(f's_cselect_b32 s{S_T2}, 27, 0'); e(f's_cselect_b32 s{S_T3}, 31, 35')
    e(f'v_max_u32 v40, s{S_T2}, v0'); e(f'v_min_u32 v40, s{S_T3}, v40')
else: e('v_min_u32 v40, 31, v0')
e(f'v_lshl_add_u32 v40, v40, {K1SH}, s{S_T1}')
e('s_waitcnt lgkmcnt(0)')
e(f's_load_dword s{S_TAG}, {sp(WS)}, 0')
if not RPT or APT:
    e(f's_cmp_lg_u32 s{S_SLOT}, 27'); e('s_cbranch_scc1 L_spare')
    c('the first spare of each group brings the key lines into this L2')
    e(f'global_load_dwordx2 v[8:9], v40, {sp(WS)} sc1')
e('s_branch L_spare')
lab('L_exit0')
e('s_endpgm')
lab('L_notp')
e(f's_cmp_lg_u32 s{S_WAVE}, 3'); e('s_cbranch_scc1 L_w')

XR, WW, ACC = 8, 44, 80
c('router wave: rows 8*wg + (l>>3), bytes 128c + 16*(l&7)')
e(f's_lshl_b32 s{S_T1}, s2, 3')
if X0:
    e(f's_cmp_lg_u32 s{S_XCD}, 0'); e('s_cbranch_scc1 L_r1')
    e(f's_cmp_ge_u32 s{S_SLOT}, 27'); e('s_cbranch_scc1 L_r1')
    e('s_endpgm')
    lab('L_rx')
    c('extra router wave: takes the rows of workgroup 8e, e = min(7*(31-slot) + xcd-1, 26)')
    e(f's_cmp_eq_u32 s{S_SLOT}, 27'); e('s_cbranch_scc1 L_exit0')
    e(f's_cmp_eq_u32 s{S_XCD}, 0'); e('s_cbranch_scc1 L_exit0')
    e(f's_mul_i32 s{S_T1}, s{S_SLOT}, -7')
    e(f's_add_u32 s{S_T1}, s{S_T1}, s{S_XCD}')
    e(f's_addk_i32 s{S_T1}, {7*31-1}')
    e(f's_min_u32 s{S_T1}, s{S_T1}, 26')
    e(f's_lshl_b32 s{S_T1}, s{S_T1}, 6')
    e(f's_addk_i32 s{S_SLOT}, 4')
    lab('L_r1')
e('s_setprio 3')
e('v_lshrrev_b32 v1, 3, v0')
e(f'v_add_u32 v1, s{S_T1}, v1')
e('v_and_b32 v2, 7, v0')
e('v_lshlrev_b32 v2, 4, v2')
e(f's_movk_i32 s{S_T2}, 1152')
e(f'v_mad_u32_u24 v4, v1, s{S_T2}, v2')
e(f's_lshl_b32 s{S_T0}, s{S_XCD}, 6')
e(f's_add_u32 s{S_T0}, s{S_T0}, s{S_SLOT}')
e(f's_lshl_b32 s{S_T0}, s{S_T0}, {K1SH}')
e(f's_add_u32 s{S_T0}, s{S_T0}, {K1L}')
e(f'v_mov_b32 v3, s{S_T0}')
if WLDS:
    e('v_lshlrev_b32 v5, 4, v0')
    e(f's_movk_i32 m0, {LDS_W}')
e('s_waitcnt lgkmcnt(0)')
def wl():
    if WLDS:
        e(f'global_load_lds_dwordx4 v5, {sp(WR)}')
        e('s_mov_b64 exec, 0xff')
        e(f'global_load_lds_dwordx4 v5, {sp(WR)} offset:1024')
        e('s_mov_b64 exec, -1')
        return
    for cc in range(9): e(f'global_load_dwordx4 v[{WW+4*cc}:{WW+4*cc+3}], v2, {sp(WR)} offset:{128*cc}')
if not WLAST: wl()
for cc in range(9): e(f'global_load_dwordx4 v[{XR+4*cc}:{XR+4*cc+3}], v4, {sp(X)} offset:{128*cc}{XNT}')
if WLAST: wl()
if RPT: e(f'global_load_dword v{ACC+8}, v3, {sp(WS)} sc1')
e(f's_load_dword s{S_TAG}, {sp(WS)}, 0')
if B0: e('s_barrier    ; B0')
stamp(1)
e('s_branch L_r2')

lab('L_w')
role[0] = 'W'
e(f's_cmp_ge_u32 s{S_SLOT}, 27'); e('s_cbranch_scc1 L_spare0')
RAW, TX, DA, AF = 16, 112, 144, 176
slot9()
e(f's_add_u32 s{S_T}, s{S_T}, s{S_WAVE}')
c('G: row = 64k + 32u + ' + ('8*(e>>1) + 2*(l>>4) + (e&1)' if GMAP else '8*(l>>4) + e') + ' ; col bytes = 128c + 16*(l&7) ; matrix = (l>>3)&1')
e('v_lshrrev_b32 v8, 4, v0')
e(f's_lshl_b32 s{S_T0}, s{S_K}, {5 if GMAP else 3}')
e(f'v_add_u32 v1, s{S_T0}, v8')
e(f's_mov_b32 s{S_T1}, {2*9216 if GMAP else 8*9216}')
e(f'v_mul_lo_u32 v1, v1, s{S_T1}')
e('v_and_b32 v9, 7, v0')
e('v_lshlrev_b32 v9, 4, v9')
e(f's_lshl_b32 s{S_T2}, s{S_T}, 7')
e(f'v_add3_u32 v1, v1, v9, s{S_T2}')
e('v_and_b32 v10, 8, v0')
e('v_cmp_ne_u32 vcc, 0, v10')
e(f's_mov_b32 s{S_A}, 9216'); e(f's_mov_b32 s{S_A+1}, 0')
e(f's_mov_b32 s{S_B}, {7*9216 if GMAP else 25*9216}'); e(f's_mov_b32 s{S_B+1}, 0')
e('s_waitcnt lgkmcnt(0)')
e(f'v_mov_b32 v2, s{WG}'); e(f'v_mov_b32 v3, s{WG+1}')
e(f'v_mov_b32 v4, s{WU}'); e(f'v_mov_b32 v5, s{WU+1}')
e('v_cndmask_b32 v2, v2, v4, vcc'); e('v_cndmask_b32 v3, v3, v5, vcc')
e('v_add_co_u32 v2, vcc, v2, v1')
e(f's_load_dword s{S_TAG}, {sp(WS)}, 0')
if not B0: e('s_nop 0')
if B0: e('s_barrier    ; B0')
e('v_addc_co_u32 v3, vcc, 0, v3, vcc')
DOFF = [-2880, -1728, 1728, 2880]
def wload(n):
    if n < 16:
        e(f'global_load_dwordx4 v[{RAW+4*n}:{RAW+4*n+3}], v[2:3], off{NT}')
        if n < 15: e(f'v_lshl_add_u64 v[2:3], v[2:3], 0, {sp(S_B if (n & 1 if GMAP else n == 7) else S_A)}')
    else:
        r = n - 16
        e(f'global_load_dwordx4 v[{RAW+4*n}:{RAW+4*n+3}], v{6+r//4}, {sp(WD)} offset:{DOFF[r%4]}{NT}')
TG = [TX, RAW]; TD = RAW + 32
def gperm(pair): perms(RAW + 32*(pair//4), TG[pair//4], pair % 4)
if not LATE:
    for n in range(WIN0): wload(n)
c('D: row = 64c + 32*(kg&1) + 16*m + 2*(kg>>1) + {0,1,4,5,8,9,12,13} ; col bytes = 128k + 16q')
e('v_and_b32 v6, 24, v0')
e('v_lshlrev_b32 v6, 1, v6')
e('v_lshrrev_b32 v7, 5, v0')
e('v_lshl_add_u32 v6, v7, 1, v6')
e(f's_lshl_b32 s{S_T0}, s{S_T}, 6')
e(f'v_add_u32 v6, s{S_T0}, v6')
e(f's_movk_i32 s{S_T1}, 1152')
e(f'v_mul_lo_u32 v6, v6, s{S_T1}')
e(f's_lshl_b32 s{S_T3}, s{S_K}, 7')
e(f's_add_u32 s{S_T3}, s{S_T3}, 2880')
e(f'v_add3_u32 v6, v6, v9, s{S_T3}')
e('v_add_u32 v7, 9216, v6')
e(f's_mov_b32 s{S_SELLO}, 0x05040100')
e(f's_mov_b32 s{S_SELHI}, 0x07060302')
c('A-fragment LDS address, exchange addresses, partial LDS address')
e('v_lshlrev_b32 v11, 4, v8')
e(f's_mul_i32 s{S_T0}, s{S_T}, 4608')
e(f's_add_u32 s{S_T0}, s{S_T0}, {EXL+2048}')
e(f'v_lshl_add_u32 v13, v0, 4, s{S_T0}')
e(f's_lshl_b32 s{S_T1}, s{S_K}, 9')
e(f's_add_u32 s{S_T0}, s{S_T0}, s{S_T1}')
e(f's_sub_u32 s{S_T0}, s{S_T0}, 2048')
e('v_and_b32 v12, 4, v0'); e('v_lshlrev_b32 v12, 6, v12')
e('v_lshl_add_u32 v12, v10, 4, v12')
e('v_and_b32 v14, 3, v0'); e('v_lshl_add_u32 v12, v14, 5, v12')
e(f'v_add3_u32 v12, v12, v11, s{S_T0}')
if not TRIM: e(f'v_cmp_eq_u32 {sp(S_M)}, 0, v10')
e(f's_lshl_b32 s{S_T0}, s{S_WAVE}, 9')
e('v_lshlrev_b32 v14, 5, v10')
e('v_lshl_add_u32 v14, v9, 1, v14')
e(f'v_add_u32 v14, s{S_T0}, v14')
getxcc()
if TB == 8:
    for i in range(4): e(f's_mov_b32 s{S_PS+i}, {0x07060500+i:#x}')
if LATE:
    for n in range(WE0): wload(n)
    if WEP or WSL:
        if X0: e(f's_cmp_eq_u32 s{S_XCD}, 0'); e('s_cbranch_scc1 L_w_nodl')
        if WEP: e('s_waitcnt lgkmcnt(0)')
        if WSL: e(f's_sleep {WSL}')
        lab('L_w_nodl')
    for n in range(WE0, WIN0): wload(n)
L.append(';;WARMSPOT')
bar1()
stamp(1)
done_pairs = 0; got = 0
NI = 16 + ND1
for n in range(WIN0, NI):
    w = WING if n < 16 else WIND
    if GATE and n == 16 + ND0: e('s_barrier    ; E')
    need = n - w + 1
    if need > got:
        e(f's_waitcnt vmcnt({w-1})'); got = need
    wload(n)
    while done_pairs < 8 and 2*done_pairs + 2 <= got:
        gperm(done_pairs); done_pairs += 1
    if n == WING + 2:
        e('s_waitcnt lgkmcnt(0)')
        e(f's_add_u32 s{S_TAG}, s{S_TAG}, 1')
        e(f's_lshl_b32 s{S_T0}, s{S_XCC}, {3*TB}')
        e(f's_xor_b32 s{S_TAG}, s{S_TAG}, s{S_T0}')
        for i in range(4): e(f's_bfe_u32 s{S_TB+i}, s{S_TAG}, {(TB<<16)|(TB*i)}')
        if TB == 8: e(f'v_mov_b32 v15, s{S_TAG}')
    L.append(';;WARMSPOT')
while done_pairs < (4 if ND1 == 8 else 7):
    e(f's_waitcnt vmcnt({NI - (2*done_pairs+2)})'); gperm(done_pairs); done_pairs += 1
if WST:
    e('s_waitcnt vmcnt(8)'); stamp(1); e('s_waitcnt vmcnt(0)')
stamp(2)
e('s_barrier    ; A')
e(f'ds_read_b128 v[{AF}:{AF+3}], v11 offset:{LDS_X}')
e(f'ds_read_b128 v[{AF+4}:{AF+7}], v11 offset:{LDS_X+64}')
for n in range(NI, 24): wload(n)
e('s_waitcnt lgkmcnt(0)' if STAMP else 's_waitcnt lgkmcnt(1)')
stamp(3)
JO = (0, 4, 1, 5, 2, 6, 3, 7)
for j in JO:
    e(f'v_mfma_f32_16x16x32_bf16 v[{DA+4*j}:{DA+4*j+3}], v[{AF}:{AF+3}], v[{TG[0]+4*j}:{TG[0]+4*j+3}], 0')
late = ILV and done_pairs < 8
while done_pairs < (7 if late else 8):
    e(f's_waitcnt vmcnt({24 - (2*done_pairs+2)})'); gperm(done_pairs); done_pairs += 1
def g7(j):
    sel = S_SELHI if (j & 1) else S_SELLO
    e(f'v_perm_b32 v{TG[1]+4*j+3}, v{RAW+32+28+j//2}, v{RAW+32+24+j//2}, s{sel}')
if late:
    e('s_waitcnt vmcnt(8) lgkmcnt(0)')
    for j in JO[:3]: g7(j)
else: e('s_waitcnt lgkmcnt(0)')
for n, j in enumerate(JO):
    e(f'v_mfma_f32_16x16x32_bf16 v[{DA+4*j}:{DA+4*j+3}], v[{AF+4}:{AF+7}], v[{TG[1]+4*j}:{TG[1]+4*j+3}], v[{DA+4*j}:{DA+4*j+3}]')
    if late and n + 3 < 8: g7(JO[n+3])
EX = TX
e('s_nop 1')
for j in range(4):
    mdpp(DA+4*j, DA+4*j+16, 'quad_perm:[0,1,2,3]', '0x2')
    e(f'v_perm_b32 v{AF+j}, v{DA+4*j}, v15, s{S_PS+j}' if TB == 8 else f'v_bfi_b32 v{AF+j}, {(1<<TB)-1}, s{S_TB+j}, v{DA+4*j}')
e('s_mov_b32 exec_hi, 0')
e(f'global_store_dwordx4 v12, v[{AF}:{AF+3}], {sp(WS)}{EXM}')
e('s_mov_b32 exec_hi, -1')
stamp(4)
L.append(';;WARMSPOT')
for p in range(3):
    e(f's_waitcnt vmcnt({7-2*p})'); perms(RAW+64, TD, p)
def five_loads():
    for i in range(4):
        e(f'global_load_dwordx4 v[{EX+4*i}:{EX+4*i+3}], v13, {sp(WS)} offset:{1024*i-2048} sc1')
    e('s_mov_b32 exec_hi, 0')
    e(f'global_load_dwordx4 v[{EX+16}:{EX+19}], v13, {sp(WS)} offset:2048 sc1')
    e('s_mov_b32 exec_hi, -1')
five_loads()
if not TRIM: e('s_waitcnt vmcnt(6)'); perms(RAW+64, TD, 3)
elif STAMP or KP == 'W5': e('s_waitcnt vmcnt(6)')
stamp(5)
e(f's_mov_b32 s{S_CNT}, 0')
if TRIM: e(f's_mov_b32 s{S_A}, 0xbfb8aa3b')
e('s_branch L_w_chk')
L.append(';;WARMFREE')
if ROLL:
    lab('L_w_poll')
    e(f's_add_u32 s{S_CNT}, s{S_CNT}, 1')
    e(f's_cmp_ge_u32 s{S_CNT}, {LOCN}')
    e('s_cbranch_scc1 L_w_far')
    lab('L_w_chk')
    AC, TM, M = EX + 20, EX + 24, EX + 28
    for i in range(5):
        e('s_waitcnt vmcnt(4)')
        if i == 4: e('s_mov_b32 exec_hi, 0')
        dst = AC if i == 0 else TM
        for d in range(4): e(f'v_xor_b32 v{dst+d}, s{S_TB+d}, v{EX+4*i+d}')
        e(f'global_load_dwordx4 v[{EX+4*i}:{EX+4*i+3}], v13, {sp(WS)} offset:{1024*i-2048} sc1')
        if i == 0: e(f'v_or_b32 v{M}, v{dst}, v{dst+1}')
        else: e(f'v_or3_b32 v{M}, v{M}, v{dst}, v{dst+1}')
        e(f'v_or3_b32 v{M}, v{M}, v{dst+2}, v{dst+3}')
        if i > 0:
            e(f'v_pk_add_f32 v[{AC}:{AC+1}], v[{AC}:{AC+1}], v[{TM}:{TM+1}]')
            e(f'v_pk_add_f32 v[{AC+2}:{AC+3}], v[{AC+2}:{AC+3}], v[{TM+2}:{TM+3}]')
    e('s_mov_b32 exec_hi, -1')
    e(f'v_and_b32 v{M}, {(1<<TB)-1}, v{M}')
    e(f'v_cmp_ne_u32 vcc, 0, v{M}')
    e('s_cbranch_vccnz L_w_poll')
    EX0 = EX; EX = AC
else:
    lab('L_w_poll')
    e(f's_add_u32 s{S_CNT}, s{S_CNT}, 1')
    e(f's_cmp_ge_u32 s{S_CNT}, {LOCN}')
    e('s_cbranch_scc1 L_w_far')
    lab('L_w_same')
    five_loads()
    lab('L_w_chk')
    M = EX + 20
    for i in range(5):
        e(f's_waitcnt vmcnt({4-i})')
        if i == 4: e('s_mov_b32 exec_hi, 0')
        for d in range(4): e(f'v_xor_b32 v{EX+4*i+d}, s{S_TB+d}, v{EX+4*i+d}')
        if i == 0: e(f'v_or_b32 v{M}, v{EX}, v{EX+1}')
        else: e(f'v_or3_b32 v{M}, v{M}, v{EX+4*i}, v{EX+4*i+1}')
        e(f'v_or3_b32 v{M}, v{M}, v{EX+4*i+2}, v{EX+4*i+3}')
        if i > 0:
            e(f'v_pk_add_f32 v[{EX}:{EX+1}], v[{EX}:{EX+1}], v[{EX+4*i}:{EX+4*i+1}]')
            e(f'v_pk_add_f32 v[{EX+2}:{EX+3}], v[{EX+2}:{EX+3}], v[{EX+4*i+2}:{EX+4*i+3}]')
    e('s_mov_b32 exec_hi, -1')
    e(f'v_and_b32 v{M}, {(1<<TB)-1}, v{M}')
    e(f'v_cmp_ne_u32 vcc, 0, v{M}')
    e('s_cbranch_vccnz L_w_poll')
    EX0 = EX
lab('L_w_go')
if BX: e('s_barrier    ; X')
stamp(6)
a0, a1, t0, t1 = EX, EX+1, EX+4, EX+5
if TRIM:
    def pj(j):
        sel = S_SELHI if (j & 1) else S_SELLO
        e(f'v_perm_b32 v{TD+4*j+3}, v{RAW+64+28+j//2}, v{RAW+64+24+j//2}, s{sel}')
    e(f'v_permlane32_swap_b32 v{EX}, v{EX+2}')
    e(f'v_permlane32_swap_b32 v{EX+1}, v{EX+3}')
    e(f'v_pk_add_f32 v[{EX}:{EX+1}], v[{EX}:{EX+1}], v[{EX+2}:{EX+3}]')
    e(f'v_cvt_pk_bf16_f32 v{EX+2}, v{a0}, v{a1}')
    e(f'v_lshlrev_b32 v{a0}, 16, v{EX+2}')
    e(f'v_and_b32 v{a1}, 0xffff0000, v{EX+2}')
    e(f'v_pk_mul_f32 v[{t0}:{t1}], v[{a0}:{a1}], {sp(S_A)} op_sel_hi:[1,0]')
    e(f'v_exp_f32 v{t0}, v{t0}')
    e(f'v_exp_f32 v{t1}, v{t1}')
    pj(0)
    e(f'v_pk_add_f32 v[{t0}:{t1}], v[{t0}:{t1}], 1.0 op_sel_hi:[1,0]')
    e(f'v_rcp_f32 v{t0}, v{t0}')
    e(f'v_rcp_f32 v{t1}, v{t1}')
    pj(1)
    e(f'v_pk_mul_f32 v[{t0}:{t1}], v[{a0}:{a1}], v[{t0}:{t1}]')
    e(f'v_cvt_pk_bf16_f32 v{t1}, v{t0}, v{t1}')
    e(f'v_lshlrev_b32 v{t0}, 16, v{t1}')
    e(f'v_and_b32 v{t1}, 0xffff0000, v{t1}')
    c('gate lanes (0..7 of each row) take u from the lane 8 further on; only they feed the MFMA rows that are read')
    pj(2)
    dpp('v_mul_f32', t0, a0, t0, 'row_ror:8')
    dpp('v_mul_f32', t1, a1, t1, 'row_ror:8')
    e(f'v_cvt_pk_bf16_f32 v{a0}, v{t0}, v{t1}')
    pj(3); pj(4)
    for p in range(4): mdpp(AF+4+p, a0, f'quad_perm:[{p},{p},{p},{p}]')
    pj(5); pj(6)
else:
    e(f'v_permlane32_swap_b32 v{EX}, v{EX+2}')
    e(f'v_permlane32_swap_b32 v{EX+1}, v{EX+3}')
    e(f'v_pk_add_f32 v[{EX}:{EX+1}], v[{EX}:{EX+1}], v[{EX+2}:{EX+3}]')
    e(f'v_cvt_pk_bf16_f32 v{EX+2}, v{a0}, v{a1}')
    e(f'v_lshlrev_b32 v{a0}, 16, v{EX+2}')
    e(f'v_and_b32 v{a1}, 0xffff0000, v{EX+2}')
    e(f'v_mul_f32 v{t0}, 0xbfb8aa3b, v{a0}')
    e(f'v_mul_f32 v{t1}, 0xbfb8aa3b, v{a1}')
    e(f'v_exp_f32 v{t0}, v{t0}')
    e(f'v_exp_f32 v{t1}, v{t1}')
    e('s_nop 0')
    e(f'v_pk_add_f32 v[{t0}:{t1}], v[{t0}:{t1}], 1.0 op_sel_hi:[1,0]')
    e(f'v_rcp_f32 v{t0}, v{t0}')
    e(f'v_rcp_f32 v{t1}, v{t1}')
    e('s_nop 0')
    e(f'v_pk_mul_f32 v[{t0}:{t1}], v[{a0}:{a1}], v[{t0}:{t1}]')
    e(f'v_cvt_pk_bf16_f32 v{t0}, v{t0}, v{t1}')
    e(f'v_cndmask_b32 v{t0}, v{EX+2}, v{t0}, {sp(S_M)}')
    e(f'v_lshlrev_b32 v{a0}, 16, v{t0}')
    e(f'v_and_b32 v{a1}, 0xffff0000, v{t0}')
    e('s_nop 0')
    dpp('v_mul_f32', a0, a0, a0, 'row_ror:8')
    dpp('v_mul_f32', a1, a1, a1, 'row_ror:8')
    e(f'v_cvt_pk_bf16_f32 v{a0}, v{a0}, v{a1}')
    e('s_nop 1')
    for p in range(4): mdpp(AF+4+p, a0, f'quad_perm:[{p},{p},{p},{p}]')
    e('s_nop 1')
for j in range(8):
    e(f'v_mfma_f32_16x16x32_bf16 v[{DA+4*j}:{DA+4*j+3}], v[{AF+4}:{AF+7}], v[{TD+4*j}:{TD+4*j+3}], 0')
    if TRIM and j == 0: pj(7)
e('s_mov_b32 exec_lo, 0xff0000ff')
e('s_mov_b32 exec_hi, 0')
for jj in range(4):
    if jj > 0: e('s_nop 0')
    e(f'ds_write2_b32 v14, v{DA+8*jj}, v{DA+8*jj+4} offset0:{LDS_P//4+2*jj} offset1:{LDS_P//4+2*jj+1}')
e('s_waitcnt lgkmcnt(0)')
e('s_barrier    ; D')
stamp(7)
if BF: e('s_barrier    ; F')
kpflush()
endpgm()
L.append(';;WARMFREE')

lab('L_p')
role[0] = 'P'
e(f's_cmp_ge_u32 s{S_SLOT}, 27'); e('s_cbranch_scc1 L_exit0')
getxcc()
slot9()
e('s_waitcnt lgkmcnt(0)')
e(f's_cmp_lg_u32 s{S_WAVE}, 6'); e('s_cbranch_scc1 L_p1')
c("bring this workgroup's three exchange slots (12 lines) into the L2")
e(f's_mul_i32 s{S_T0}, s{S_T}, 4608')
e(f's_lshl_b32 s{S_T1}, s{S_K}, 9')
e(f's_add_u32 s{S_T0}, s{S_T0}, s{S_T1}')
e(f's_add_u32 s{S_T0}, s{S_T0}, {EXL}')
e('v_lshrrev_b32 v1, 2, v0')
e(f's_movk_i32 s{S_T1}, 4608')
e(f'v_mul_u32_u24 v1, s{S_T1}, v1')
e('v_and_b32 v2, 3, v0')
e('v_lshlrev_b32 v2, 7, v2')
e(f'v_add3_u32 v1, v1, v2, s{S_T0}')
if TLB:
    e(f's_mul_i32 s{S_T1}, s{S_T}, {64*1152}')
    e(f's_lshl_b32 s{S_T2}, s{S_K}, 7')
    e(f's_add_u32 s{S_T1}, s{S_T1}, s{S_T2}')
    e(f's_movk_i32 s{S_T2}, {16*1152}')
    e(f'v_mul_u32_u24 v4, s{S_T2}, v0')
    e(f'v_add_u32 v4, s{S_T1}, v4')
e('s_mov_b64 exec, 0xfff')
if TLB == 1: e(f'global_load_dword v5, v4, {sp(WD)}')
bar1()
if TLB == 2: e(f'global_load_dword v5, v4, {sp(WD)}')
if not NOPT: e(f'global_load_dword v3, v1, {sp(WS)} sc1')
if GATE:
    e(f's_add_u32 s76, s76, {GATE}')
    if X0: e(f's_cmp_eq_u32 s{S_XCD}, 0'); e('s_cselect_b32 s74, 30, 0'); e('s_sub_u32 s76, s76, s74')
    lab('L_gate'); e('s_memrealtime s[72:73]'); e('s_waitcnt lgkmcnt(0)'); e('s_sub_u32 s75, s76, s72'); e('s_cmp_gt_i32 s75, 0'); e('s_cbranch_scc1 L_gate')
    e('s_barrier')
e('s_endpgm')
L.append(';;WARMFREE')
lab('L_p1')
e(f's_load_dword s{S_TAG}, {sp(WS)}, 0')
bar1()
e(f's_lshl_b32 s{S_T3}, s{S_XCC}, 12')
e(f's_add_u32 s{S_T3}, s{S_T3}, {BC}')
e(f's_add_u32 s{S_T2}, s{S_T3}, {64*NBC}')
e(f's_and_b32 s{S_T1}, s{S_WAVE}, 1')
e(f's_lshl_b32 s{S_T1}, s{S_T1}, 6')
e(f'v_lshl_add_u32 v4, v0, 2, s{S_T1}')
e(f's_lshl_b32 s{S_K}, s{S_K}, 7')
e(f's_add_u32 s{S_K}, s{S_K}, s{S_T1}')
e('v_and_b32 v10, 60, v0')
e(f'v_add_u32 v11, s{S_T1}, v10')
e('v_and_b32 v12, 1, v0')
e(f'v_cmp_eq_u32 {sp(S_M)}, 1, v12')
e('v_lshlrev_b32 v12, 2, v12')
e('v_lshl_add_u32 v12, v11, 1, v12')
if GMAP:
    e('v_and_b32 v11, 12, v0'); e('v_lshlrev_b32 v11, 2, v11')
    e('v_lshrrev_b32 v13, 4, v0'); e('v_lshl_add_u32 v11, v13, 2, v11')
    e(f'v_add_u32 v11, s{S_T1}, v11')
e('v_lshrrev_b32 v13, 4, v0')
e('v_and_b32 v14, 15, v0')
e('v_lshlrev_b32 v14, 2, v14')
e('v_lshl_add_u32 v13, v13, 7, v14')
e(f's_lshl_b32 s{S_T0}, s{S_K}, 3')
e(f's_add_u32 s{S_T0}, s{S_T0}, {ACCU}')
e(f'v_add_u32 v13, s{S_T0}, v13')
e('v_mov_b32 v7, 0')
e('s_mov_b64 exec, 0xffff')
L.append(';;WARMSPOT')
e('s_waitcnt lgkmcnt(0)')
e(f's_add_u32 s{S_TAG}, s{S_TAG}, 1')
if GATE: e('s_barrier    ; E')
stamp(1)
if NOP: e(f's_sleep {NOP}')
if SKEW >= 0:
    e('s_cmp_ge_u32 s2, 8'); e('s_cbranch_scc1 L_p_poll')
    e('s_lshl_b32 s72, s2, 2'); e('s_add_u32 s72, s72, 0x300000'); e('v_mov_b32 v20, s72'); e('v_mov_b32 v21, s76')
    e(f'global_store_dword v20, v21, {sp(WS)} sc1')
lab('L_p_poll')
e(f's_load_dwordx2 {sp(S_A)}, {sp(WS)}, s{S_T3}')
e(f's_add_u32 s{S_T3}, s{S_T3}, 64')
e(f's_cmp_ge_u32 s{S_T3}, s{S_T2}')
e('s_cbranch_scc1 L_p_slow')
e('s_waitcnt lgkmcnt(0)')
e(f's_cmp_lg_u32 s{S_A+1}, s{S_TAG}')
e('s_cbranch_scc1 L_p_poll')
lab('L_p_got')
if PCNT: e(f's_sub_u32 s{S_ST+2}, s{S_T2}, s{S_T3}'); e(f's_mov_b32 s{S_ST+3}, 0')
e(f's_andn2_b32 s{S_T1}, 0x7ff, s{S_A}')
e(f's_mul_i32 s{S_T0}, s{S_T1}, 1152')
e(f's_add_u32 s{S_T0}, s{S_T0}, s{S_K}')
e(f's_load_dwordx16 s[{S_XS}:{S_XS+15}], {sp(X)}, s{S_T0}')
stamp(2)
e(f'v_mov_b32 v6, s{S_T1}')
e(f'ds_write_b32 v7, v6 offset:{LDS_WIN}')
e('s_waitcnt lgkmcnt(0)')
stamp(3)
for d in range(16): e(f'v_writelane_b32 v5, s{S_XS+d}, {4*(d&3)+(d>>2) if GMAP else d}')
e(f'ds_write_b32 v4, v5 offset:{LDS_X}')
e('s_waitcnt lgkmcnt(0)')
e('s_barrier    ; A')
L.append(';;WARMSPOT')
e('s_mov_b64 exec, -1')
e(f'ds_read_b32 v5, v11 offset:{LDS_X}')
e(f'v_add_u32 v10, s{S_T0}, v10')
c('r_sel = bf16(sigmoid(r))')
e(f's_ashr_i32 s{S_T2}, s{S_A}, 31')
e(f's_not_b32 s{S_T2}, s{S_T2}')
e(f's_or_b32 s{S_T2}, s{S_T2}, 0x80000000')
e(f's_xor_b32 s{S_T1}, s{S_A}, s{S_T2}')
e(f's_and_b32 s{S_T1}, s{S_T1}, 0xffff0000')
e(f'v_mov_b32 v8, s{S_T1}')
e('v_mul_f32 v8, 0xbfb8aa3b, v8')
e('v_exp_f32 v8, v8')
e(f's_mov_b32 s{S_B}, 0x11111111'); e(f's_mov_b32 s{S_B+1}, 0x11111111')
e('v_add_f32 v8, 1.0, v8')
e('v_rcp_f32 v8, v8')
e(f's_lshl_b64 {sp(S_A)}, {sp(S_B)}, 2')
bf16r(8, 8)
e('s_waitcnt lgkmcnt(0)')
e('v_lshlrev_b32 v6, 16, v5')
e('v_and_b32 v5, 0xffff0000, v5')
e(f'v_cndmask_b32 v5, v6, v5, {sp(S_M)}')
e('v_fma_f32 v5, v5, 0, v5')
e('v_mov_b32 v9, 0x41b80000')
e(f'v_mov_b32 v15, s{S_TAG}')
e('s_mov_b32 exec_lo, 0x77777777'); e('s_mov_b32 exec_hi, 0x77777777')
stamp(4)
if BX: e('s_barrier    ; X')
e('s_barrier    ; D')
for i in range(3):
    e(f'ds_read2st64_b32 v[{16+2*i}:{17+2*i}], v12 offset0:{LDS_P//256+2*i} offset1:{LDS_P//256+2*i+1}')
e('s_waitcnt lgkmcnt(1)' if not STAMP else 's_waitcnt lgkmcnt(0)')
e('v_pk_add_f32 v[16:17], v[16:17], v[18:19]')
e('s_waitcnt lgkmcnt(0)')
e('v_pk_add_f32 v[16:17], v[16:17], v[20:21]')
e('v_add_f32 v16, v16, v17')
e(f'v_cndmask_b32 v16, v16, 1.0, {sp(S_A)}')
e(f'global_atomic_add_f32 v17, v13, v16, {sp(WS)} sc0 sc1')
if BF: e('s_barrier    ; F')
stamp(5)
e('s_waitcnt vmcnt(0)')
stamp(6)
kpflush()
mdpp(18, 17, 'quad_perm:[2,2,2,2]')
e('v_add_f32 v16, v16, v17')
e('v_cmp_eq_f32 vcc, v9, v18')
bf16r(16, 16)
e(f's_and_b64 vcc, vcc, {sp(S_B)}')
e('s_cbranch_scc0 L_end')
e('v_mul_f32 v16, v16, v8')
bf16r(16, 16)
e('v_add_f32 v16, v5, v16')
e('s_nop 1')
mdpp(17, 16, 'quad_perm:[1,1,1,1]')
e('v_cvt_pk_bf16_f32 v16, v16, v17')
e('s_mov_b64 exec, vcc')
if not NOFIN: e(f'global_store_dword v10, v16, {sp(OUT)}{FOM}')
if ACK: e('s_waitcnt vmcnt(0)')
stamp(7)
c('the last adder of the first granule moves the epoch on')
e(f's_cmp_lg_u32 s{S_K}, 0'); e('s_cbranch_scc1 L_end')
e('s_and_b64 exec, vcc, 1'); e('s_cbranch_scc0 L_end')
if not NOEP: e(f'global_store_dword v7, v15, {sp(WS)}{EPM}')
if KD: e('s_memrealtime s[78:79]'); e('s_branch L_kd')
lab('L_end')
if MINI:
    e('s_memrealtime s[82:83]'); e('s_mov_b64 exec, 1')
    e(f's_lshl_b32 s{S_T0}, s2, 4'); e(f's_add_u32 s{S_T0}, s{S_T0}, s{S_WAVE}')
    e(f's_lshl_b32 s{S_T0}, s{S_T0}, 6'); e(f's_add_u32 s{S_T0}, s{S_T0}, 0x8000000')
    e(f'v_mov_b32 v2, s{S_T0}'); e('s_waitcnt lgkmcnt(0)')
    for k in range(4): e(f'v_mov_b32 v{20+k}, s{80+k}')
    e(f'global_store_dwordx4 v2, v[20:23], {sp(WS)}')
if SKEW >= 0:
    if KD: e('s_endpgm'); lab('L_kd')
    else: e('s_cmp_lg_u32 s2, 9'); e('s_cbranch_scc1 L_exit0')
    e('s_mov_b32 s72, 0x300000'); e(f's_load_dwordx8 s[64:71], {sp(WS)}, s72'); e('s_waitcnt lgkmcnt(0)')
    e('s_mov_b32 s74, s64')
    for i in range(1, 8): e(f's_min_u32 s74, s74, s{64+i}')
    if KD == 2 and KP:
        e('s_sleep 127'); e('s_sleep 127'); e('s_sleep 127'); e(f's_load_dword s77, {sp(DBG)}, 0'); e('s_waitcnt lgkmcnt(0)')
        e('s_sub_u32 s74, s77, s74'); e('s_min_u32 s74, s74, 600'); e('s_add_u32 s74, s74, 20')
        e('s_mul_i32 s74, s74, 6554'); e('s_lshr_b32 s74, s74, 16'); e('s_mul_i32 s74, s74, 1000')
    elif KD == 2:
        e('s_sub_u32 s74, s78, s74'); e('s_min_u32 s74, s74, 900'); e('s_max_u32 s74, s74, 400'); e('s_sub_u32 s74, s74, 400')
        e('s_mul_i32 s74, s74, 6554'); e('s_lshr_b32 s74, s74, 16'); e('s_mul_i32 s74, s74, 1000')
    elif KD: e('s_sub_u32 s74, s78, s74'); e('s_min_u32 s74, s74, 2000'); e('s_mul_i32 s74, s74, 10')
    else: e(f's_sub_u32 s74, s{64+SKEW}, s74'); e('s_min_u32 s74, s74, 500'); e('s_mul_i32 s74, s74, 20')
    if KD == 2: e('s_add_u32 s74, s74, s78')
    else: e('s_memrealtime s[72:73]'); e('s_waitcnt lgkmcnt(0)'); e('s_add_u32 s74, s74, s72')
    lab('L_dspin')
    e('s_memrealtime s[72:73]'); e('s_waitcnt lgkmcnt(0)')
    e('s_sub_u32 s75, s74, s72'); e('s_cmp_gt_i32 s75, 0'); e('s_cbranch_scc1 L_dspin')
if DIAG >= 0:
    e(f's_cmp_lg_u32 s2, {DIAG}'); e('s_cbranch_scc1 L_exit0')
    e('s_memrealtime s[72:73]'); e('s_waitcnt lgkmcnt(0)')
    e('s_sub_u32 s74, s72, s76'); e('s_min_u32 s74, s74, 5000'); e('s_mul_i32 s74, s74, 10'); e('s_add_u32 s74, s74, s72')
    lab('L_dspin')
    e('s_memrealtime s[72:73]'); e('s_waitcnt lgkmcnt(0)')
    e('s_sub_u32 s75, s74, s72'); e('s_cmp_gt_i32 s75, 0'); e('s_cbranch_scc1 L_dspin')
endpgm()
lab('L_seg1_end')
e('.p2align 12')

lab('L_warm_s')
e('s_endpgm')
lab('L_spare')
role[0] = 'S'
getxcc()
e(f's_sub_u32 s{S_T}, s2, 224')
e(f's_lshl_b32 s{S_T3}, s{S_XCC}, 12')
e(f's_add_u32 s{S_T3}, s{S_T3}, {BC}')
e(f'v_lshl_add_u32 v3, v0, 6, s{S_T3}')
e(f's_cmp_lg_u32 s{S_SLOT}, 27'); e('s_cbranch_scc1 L_s_noclr')
c('clear 9 accumulator lines, bring the broadcast lines into this L2')
e(f's_mul_i32 s{S_T0}, s{S_XCD}, {9*128}')
e(f's_addk_i32 s{S_T0}, {ACCU}')
e(f'v_lshl_add_u32 v1, v0, 4, s{S_T0}')
e('v_mov_b64 v[12:13], 0'); e('v_mov_b64 v[14:15], 0')
e(f'global_store_dwordx4 v1, v[12:15], {sp(WS)} sc1')
e(f'global_store_dwordx4 v1, v[12:15], {sp(WS)} offset:128 sc1')
if NBC < 64: e('s_mov_b32 exec_hi, 0')
e(f'global_load_dwordx2 v[8:9], v3, {sp(WS)} sc1')
if NBC < 64: e('s_mov_b32 exec_hi, -1')
lab('L_s_noclr')
e(f's_mul_i32 s{S_T0}, s{S_XCD}, {K2X}')
if SP27:
    e(f's_cmp_eq_u32 s{S_SLOT}, 27'); e(f's_cselect_b32 s{S_T1}, 32, s{S_SLOT}'); e(f's_mul_i32 s{S_T1}, s{S_T1}, {K2R}')
else: e(f's_mul_i32 s{S_T1}, s{S_SLOT}, {K2R}')
e(f's_add_u32 s{S_T0}, s{S_T0}, s{S_T1}')
e(f's_add_u32 s{S_T0}, s{S_T0}, {(K2 - 28*K2R) & 0xffffffff}')
e('v_and_b32 v41, 7, v0')
e(f'v_mul_u32_u24 v42, {K2X}, v41')
e(f'v_lshl_add_u32 v41, v41, {3 if APOLL else 7}, s{S_T0}')
if not APOLL:
    e(f's_cmp_ge_u32 s{S_T}, {NDEST}'); e('s_cbranch_scc1 L_s_nopt')
    e(f'global_load_dwordx2 v[8:9], v41, {sp(WS)} sc1')
    lab('L_s_nopt')
e(f's_lshl_b32 s{S_T0}, s{S_XCD}, {3 if APOLL else 7}')
e(f's_add_u32 s{S_T0}, s{S_T0}, {K2}')
e('v_lshrrev_b32 v2, 3, v0'); e(f'v_mul_u32_u24 v2, {K2R}, v2'); e(f'v_add3_u32 v42, v42, v2, s{S_T0}')
e(f's_movk_i32 s{S_T1}, 1152')
e(f's_movk_i32 s{S_T2}, 0x7ff')
e('v_mov_b32 v13, 0')
e('s_waitcnt lgkmcnt(0)')
e(f's_add_u32 s{S_TAG}, s{S_TAG}, 1')
e(f'v_mov_b32 v7, s{S_TAG}')
stamp(1)
e('s_barrier    ; B1')
e(f's_cmp_lt_u32 s{S_T}, {NDEST}'); e('s_cbranch_scc1 L_s_l2')
e(f's_cmp_lg_u32 s{S_SLOT}, 27'); e('s_cbranch_scc1 L_s_wait')
e(f's_mov_b32 s{S_CNT}, 0')
if L1ST: stamp(6)
lab('L_s_poll1')
if L1ST:
    e(f's_mov_b64 s[{S_ST+6}:{S_ST+7}], s[{S_ST+4}:{S_ST+5}]'); stamp(2); e('s_waitcnt lgkmcnt(0)')
    e('s_mov_b64 s[70:71], vcc')
e(f'global_load_dwordx2 v[8:9], v40, {sp(WS)} sc1')
e(f's_add_u32 s{S_CNT}, s{S_CNT}, 1')
e(f's_cmp_lg_u32 s{S_CNT}, {LOCN}')
e('s_cbranch_scc1 L_s_same1')
if A27:
    c("the key of this very workgroup is always in the local copy")
    e('v_bfe_u32 v2, v40, %d, 6' % K1SH); e('v_cmp_ne_u32 vcc, 27, v2'); e('s_mov_b64 exec, vcc')
e(f'v_add_u32 v40, {K1G-K1L}, v40')
if A27: e('s_mov_b64 exec, -1')
lab('L_s_same1')
e(f's_cmp_gt_u32 s{S_CNT}, {SPIN}')
e('s_cbranch_scc1 L_s_got1')
e('s_waitcnt vmcnt(0)')
e(f'v_cmp_ne_u32 vcc, s{S_TAG}, v9')
e('s_cbranch_vccnz L_s_poll1')
lab('L_s_got1')
stamp(7)
if L1ST: e(f's_mov_b64 s[{S_ST+2}:{S_ST+3}], s[70:71]')
for m in ('row_shr:1', 'row_shr:2', 'row_shr:4', 'row_shr:8'):
    dpp('v_max_u32', 8, 8, 8, m); e('s_nop 1')
dpp('v_max_u32', 8, 8, 8, 'row_bcast:15', '0xa')
if X0:
    e('s_nop 1'); dpp('v_max_u32', 8, 8, 8, 'row_bcast:31', '0xc')
e(f's_mov_b64 exec, {(1<<NDEST)-1:#x}' if NDEST < 32 else f's_mov_b32 exec_hi, {0xff if SP27 else 0}')
e(f'v_readlane_b32 s{S_T0}, v8, {63 if X0 else 31}')
e('s_nop 1')
e(f'v_mov_b32 v6, s{S_T0}')
e(f'global_store_dwordx2 v42, v[6:7], {sp(WS)} sc1')
if STAMP:
    stamp(5); e('s_waitcnt vmcnt(0)'); stamp(4)
if SP27:
    e('s_mov_b64 exec, -1'); e('s_branch L_s_l2')
lab('L_s_wait')
c('not a reader: take the winner from the local broadcast or the device-wide copy')
e('s_mov_b64 exec, 3')
e(f's_movk_i32 s{S_T0}, {WIN_G}'); e(f'v_writelane_b32 v3, s{S_T0}, 1')
e(f's_mov_b32 s{S_CNT}, {SPIN}')
lab('L_s_wpoll')
e(f'global_load_dwordx2 v[8:9], v3, {sp(WS)} sc1')
e(f's_sub_u32 s{S_CNT}, s{S_CNT}, 1')
e('s_cbranch_scc1 L_s_nog')
if opt('--wsleep', 0): e('s_sleep 2')
e('s_waitcnt vmcnt(0)')
e(f'v_cmp_eq_u32 vcc, s{S_TAG}, v9')
e(f'v_bfi_b32 v14, v8, 0, s{S_T2}')
e('s_cbranch_vccz L_s_wpoll')
e('s_mov_b64 exec, vcc')
e('s_branch L_s_nog')
lab('L_s_l2')
e(f's_mov_b32 s{S_CNT}, {SPIN}')
e('v_min_u32 v5, 8, v0')
e('v_lshlrev_b32 v5, 7, v5')
if SPEC or SP27:
    e(f's_cmp_ge_u32 s{S_T}, {8*NRD}'); e('s_cbranch_scc1 L_s_spec')
if APOLL:
    e('v_mov_b64 v[10:11], 0')
    for i in range(APOLL): e(f'v_not_b32 v{17+2*i}, v7')
    e('s_mov_b64 exec, 0xff')
    lab('L_s_poll')
    for i in range(APOLL):
        o = (i + 1) % APOLL
        e(f'global_atomic_add_x2 v[{16+2*i}:{17+2*i}], v41, v[10:11], {sp(WS)} sc0 sc1')
        if ASL: e(f's_sleep {ASL}')
        e(f's_waitcnt vmcnt({APOLL-1})')
        e(f'v_cmp_ne_u32 vcc, s{S_TAG}, v{17+2*o}')
        dpp('v_max_u32', 8, 16+2*o, 16+2*o, 'quad_perm:[1,0,3,2]')
        e('s_cbranch_vccz L_s_got')
    e(f's_sub_u32 s{S_CNT}, s{S_CNT}, 1')
    e('s_cbranch_scc0 L_s_poll')
    lab('L_s_got')
    stamp(2)
    e('s_nop 0')
    dpp('v_max_u32', 8, 8, 8, 'quad_perm:[2,3,0,1]'); e('s_nop 1')
    dpp('v_max_u32', 8, 8, 8, 'row_half_mirror')
    e('s_mov_b64 exec, -1')
    e(f'v_readfirstlane_b32 s{S_T0}, v8')
    e('s_nop 1')
    e(f'v_mov_b32 v6, s{S_T0}')
else:
    lab('L_s_poll')
    if STAMP:
        e(f's_mov_b64 s[{S_ST+12}:{S_ST+13}], s[{S_ST+10}:{S_ST+11}]'); stamp(5); e('s_waitcnt lgkmcnt(0)')
    e(f'global_load_dwordx2 v[8:9], v41, {sp(WS)} sc1')
    e(f's_sub_u32 s{S_CNT}, s{S_CNT}, 1')
    e('s_cbranch_scc1 L_s_got')
    e('s_waitcnt vmcnt(0)')
    e(f'v_cmp_ne_u32 vcc, s{S_TAG}, v9')
    dpp('v_max_u32', 8, 8, 8, 'quad_perm:[1,0,3,2]')
    e('s_cbranch_vccnz L_s_poll')
    lab('L_s_got')
    stamp(2)
    e('s_nop 0')
    dpp('v_max_u32', 8, 8, 8, 'quad_perm:[2,3,0,1]'); e('s_nop 1')
    dpp('v_max_u32', 6, 8, 8, 'row_half_mirror')
if NBC < 64: e('s_mov_b32 exec_hi, 0')
e(f'global_store_dwordx2 v3, v[6:7], {sp(WS)}')
e(f'v_bfi_b32 v14, v6, 0, s{S_T2}')
e(f'v_mad_u32_u24 v5, v14, s{S_T1}, v5')
e(f'global_load_dword v39, v5, {sp(X)}')
stamp(3)
e(f's_cmp_lg_u32 s{S_T}, 7')
e('s_cbranch_scc1 L_s_nog')
e(f'v_mov_b32 v5, {WIN_G}')
e('s_mov_b64 exec, 1')
e(f'global_store_dwordx2 v5, v[6:7], {sp(WS)} sc1')
lab('L_s_nog')
e(f'ds_write_b32 v13, v14 offset:{LDS_WIN}')
e('s_waitcnt lgkmcnt(0)')
e('s_barrier    ; A')
e('s_barrier    ; D')
if BF or BX: e('s_barrier    ; F')
lab('L_s_end')
kpflush()
endpgm()

if SPEC or SP27:
    lab('L_s_spec')
    c("this spare pulls every candidate row into the L2 as its key arrives")
    e('v_lshrrev_b32 v12, 3, v0'); e('v_lshlrev_b32 v12, 7, v12')
    lab('L_s_spoll')
    e(f'global_load_dwordx2 v[8:9], v41, {sp(WS)} sc1')
    e(f's_sub_u32 s{S_CNT}, s{S_CNT}, 1')
    e('s_cbranch_scc1 L_s_got')
    e('s_waitcnt vmcnt(0)')
    e(f'v_cmp_eq_u32 vcc, s{S_TAG}, v9')
    e(f'v_bfi_b32 v10, v8, 0, s{S_T2}')
    e(f'v_mad_u32_u24 v11, v10, s{S_T1}, v12')
    e('s_and_b64 exec, vcc, -1')
    e('s_cbranch_scc0 L_s_snone')
    e(f'global_load_dword v38, v11, {sp(X)}')
    e(f'global_load_dword v38, v11, {sp(X)} offset:128')
    lab('L_s_snone')
    e('s_mov_b64 exec, -1')
    dpp('v_max_u32', 8, 8, 8, 'quad_perm:[1,0,3,2]')
    e('s_cmp_eq_u64 vcc, -1')
    e('s_cbranch_scc0 L_s_spoll')
    e('s_branch L_s_got')
e('.p2align 6')
lab('L_warm_r')
e('s_endpgm')
lab('L_r2')
role[0] = 'R'
for i in range(4): e(f'v_mov_b32 v{ACC+i}, 0')
e('v_sub_u32 v6, 0xffff, v1')
e(f'v_add_u32 v7, {K1G-K1L}, v3')
e(f's_mov_b32 s{S_T2}, 0xffff0000')
KY = 84
if WLDS:
    if RST: e('s_waitcnt lgkmcnt(0)'); stamp(7)
    e(f's_waitcnt vmcnt({9+RPT})')
    if RST: stamp(5)
    for cc in range(9): e(f'ds_read_b128 v[{WW+4*cc}:{WW+4*cc+3}], v2 offset:{LDS_W+128*cc}')
e('s_waitcnt lgkmcnt(0)')
e(f's_add_u32 s{S_TAG}, s{S_TAG}, 1')
e(f'v_mov_b32 v{KY+1}, s{S_TAG}')
e(f's_cmp_ge_u32 s{S_SLOT}, 27')
for cc in range(9):
    e(f's_waitcnt vmcnt({8-cc+RPT})')
    if RST and cc == 0: stamp(6)
    for d in range(4): e(f'v_dot2c_f32_bf16 v{ACC+d}, v{XR+4*cc+d}, v{WW+4*cc+d}')
stamp(2)
e('s_nop 2')
e(f'v_pk_add_f32 v[{ACC}:{ACC+1}], v[{ACC}:{ACC+1}], v[{ACC+2}:{ACC+3}]')
e(f'v_add_f32 v{ACC}, v{ACC}, v{ACC+1}')
for m in ['quad_perm:[1,0,3,2]', 'quad_perm:[2,3,0,1]', 'row_half_mirror']:
    e('s_nop 1'); dpp('v_add_f32', ACC, ACC, ACC, m)
K0, K1 = KY+2, KY+3
e(f'v_cmp_o_f32 vcc, v{ACC}, v{ACC}')
e(f'v_cvt_pk_bf16_f32 v{K0}, v{ACC}, v{ACC}')
e(f'v_ashrrev_i32 v{K1}, 31, v{K0}')
e(f'v_or_b32 v{K1}, 0x80000000, v{K1}')
e(f'v_xor_b32 v{K0}, v{K0}, v{K1}')
e(f'v_cndmask_b32 v{K0}, 0, v{K0}, vcc')
e(f'v_and_or_b32 v{KY}, v{K0}, s{S_T2}, v6')
e('s_nop 1'); dpp('v_max_u32', KY, KY, KY, 'row_shr:8')
e('s_nop 1'); dpp('v_max_u32', KY, KY, KY, 'row_bcast:15', '0xa')
e('s_nop 1'); dpp('v_max_u32', KY, KY, KY, 'row_bcast:31', '0xc')
e('s_mov_b32 exec_lo, 0'); e('s_brev_b32 exec_hi, 1')
e('s_cbranch_scc0 L_r_k1')
e('s_barrier    ; B1')
lab('L_r_k1')
e(f'global_store_dwordx2 v3, v[{KY}:{KY+1}], {sp(WS)}')
if L1ST: stamp(7)
e('s_cbranch_scc1 L_r_k2')
if HOLD: e('s_barrier    ; B1')
lab('L_r_k2')
if A27: e(f's_cmp_eq_u32 s{S_SLOT}, 27'); e('s_cbranch_scc1 L_r_k3')
e(f'global_store_dwordx2 v7, v[{KY}:{KY+1}], {sp(WS)} sc1')
if A27: lab('L_r_k3')
e('s_mov_b64 exec, -1')
stamp(3)
e(f'v_mov_b32 v{K1}, 0x207')
e(f'v_cmp_class_f32 vcc, v{ACC}, v{K1}')
e('s_cbranch_vccnz L_r_fix')
lab('L_r_nofix')
if GATE:
    e(f's_cmp_ge_u32 s{S_SLOT}, 27'); e('s_cbranch_scc1 L_r_noe'); e('s_barrier'); lab('L_r_noe')
def copy_rows(m=ONT):
    if NOCOPY == 1 or (NOCOPY == 2 and m == '') or (NOCOPY == 3 and m != ''): return
    for cc in range(9):
        e(f'global_store_dwordx4 v4, v[{XR+4*cc}:{XR+4*cc+3}], {sp(OUT)} offset:{128*cc}{m}')
if CP == 'E':
    e(f'v_readlane_b32 s{S_T1}, v{KY}, 63')
    e(f's_andn2_b32 s{S_T1}, 0x7ff, s{S_T1}')
    e(f'v_cmp_ne_u32 vcc, s{S_T1}, v1')
    e('s_mov_b64 exec, vcc')
    copy_rows()
    e('s_not_b64 exec, vcc')
e('s_barrier    ; A')
e('v_mov_b32 v2, 0')
e(f'ds_read_b32 v2, v2 offset:{LDS_WIN}')
e('s_waitcnt lgkmcnt(0)')
e('v_cmp_ne_u32 vcc, v2, v1')
if CP == 'D': e('s_barrier    ; D')
if BF: e('s_barrier    ; F')
stamp(4)
e('s_and_b64 exec, exec, vcc')
if CP == 'E': e('s_cbranch_scc0 L_r_end')
if SPL:
    e(f's_cmp_ge_u32 s{S_SLOT}, 27'); e('s_cbranch_scc1 L_r_plain')
copy_rows()
lab('L_r_end')
kpflush()
if BX: e('s_barrier    ; D')
if CP != 'D': e('s_barrier    ; D')
if STAMP and not RST:
    stamp(5); e('s_waitcnt vmcnt(0)'); stamp(6)
endpgm()

if SPL:
    lab('L_r_plain')
    copy_rows('')
    e('s_branch L_r_end')
lab('L_w_far')
c('partners may sit on another die: publish a device-wide copy, then alternate between the two copies')
e(f's_cmp_gt_u32 s{S_CNT}, {SPIN}')
e('s_cbranch_scc1 L_w_go')
e(f'v_xor_b32 v13, {EXG^EXL}, v13')
e(f's_xor_b32 s{S_TB+3}, s{S_TB+3}, s{S_XCC}')
e(f's_cmp_lg_u32 s{S_CNT}, {LOCN}')
e('s_cbranch_scc1 L_w_same')
e(f'v_xor_b32 v12, {EXG^EXL}, v12')
e(f'v_xor_b32 v{AF+3}, s{S_XCC}, v{AF+3}')
e('s_mov_b32 exec_hi, 0')
e(f'global_store_dwordx4 v12, v[{AF}:{AF+3}], {sp(WS)} sc1')
e('s_mov_b32 exec_hi, -1')
if ROLL:
    lab('L_w_same')
    e('s_waitcnt vmcnt(0)')
    EX = EX0
    five_loads()
    e('s_branch L_w_chk')
else: e('s_branch L_w_same')
lab('L_p_slow')
e(f'v_mov_b32 v6, {WIN_G}')
e(f's_mov_b32 s{S_CNT}, {SPIN}')
lab('L_p_slowpoll')
e(f'global_load_dwordx2 v[8:9], v6, {sp(WS)} sc1')
e('s_waitcnt vmcnt(0) lgkmcnt(0)')
e(f'v_readfirstlane_b32 s{S_A}, v8')
e(f'v_readfirstlane_b32 s{S_A+1}, v9')
e(f's_sub_u32 s{S_CNT}, s{S_CNT}, 1')
e('s_cbranch_scc1 L_p_got')
e(f's_cmp_lg_u32 s{S_A+1}, s{S_TAG}')
e('s_cbranch_scc1 L_p_slowpoll')
e('s_branch L_p_got')
if STAMP:
    lab('L_flush')
    e('s_waitcnt vmcnt(0) lgkmcnt(0)')
    e('s_mov_b64 exec, 1')
    e('s_sleep 40')
    e(f's_lshl_b32 s{S_T0}, s2, 4'); e(f's_add_u32 s{S_T0}, s{S_T0}, s{S_WAVE}')
    e(f's_lshl_b32 s{S_T0}, s{S_T0}, 6'); e(f's_add_u32 s{S_T0}, s{S_T0}, 0x8000000')
    e(f'v_mov_b32 v2, s{S_T0}')
    for i in range(4):
        for k in range(4): e(f'v_mov_b32 v{4+k}, s{S_ST+4*i+k}')
        e(f'global_store_dwordx4 v2, v[4:7], {sp(WS)} offset:{16*i}'); e('s_nop 1')
    e('s_endpgm')
lab('L_r_fix')
c('x + x*0 turns an infinity into a NaN')
e(f's_mov_b32 s{S_SELHI}, 0x07060302')
for d in range(36):
    r = XR + d
    e(f'v_lshlrev_b32 v{K0}, 16, v{r}')
    e(f'v_and_b32 v{K1}, s{S_T2}, v{r}')
    e(f'v_fma_f32 v{K0}, v{K0}, 0, v{K0}')
    e(f'v_fma_f32 v{K1}, v{K1}, 0, v{K1}')
    e(f'v_perm_b32 v{r}, v{K1}, v{K0}, s{S_SELHI}')
e('s_branch L_r_nofix')

hdr = f'''; Mixture-of-depths block, capacity 1: r = x.w_r, the row with the largest r goes through a SwiGLU FFN
;   waves 0-2 (W) : workgroups 0..215 stream w_gate/w_up (64 rows x 64 columns, both matrices) and w_down
;                   (64 rows x 64 columns) into registers while the argmax is still being found; 9 workgroups
; @launch grid=(256,1,1) block=(512,1,1) lds={LDS_BYTES}
.amdgcn_target "amdgcn-amd-amdhsa--gfx950"
.text
.globl standalone__moe_arch_mod__prompt_kernel
.p2align 12
.fill {(4096-768)//4}, 4, 0xBF800000
.p2align 8
.type standalone__moe_arch_mod__prompt_kernel,@function
standalone__moe_arch_mod__prompt_kernel:'''
tail = '''.section .rodata,"a"
.p2align 6
.amdhsa_kernel standalone__moe_arch_mod__prompt_kernel
  .amdhsa_next_free_vgpr 184
  .amdhsa_next_free_sgpr %SG%
  .amdhsa_accum_offset 184
  .amdhsa_group_segment_fixed_size 0
  .amdhsa_kernarg_size 64
  .amdhsa_user_sgpr_count 2
  .amdhsa_user_sgpr_kernarg_segment_ptr 1
  .amdhsa_system_sgpr_workgroup_id_x 1
  .amdhsa_float_denorm_mode_32 3
.end_amdhsa_kernel
'''
tail = tail.replace('%SG%', '96' if (STAMP or MINI or DIAG >= 0 or SKEW >= 0 or GATE) else '64')
def offsets(lines):
    out = []; k = 0
    for ln in lines:
        if ln.startswith(';;WARM'): out.append(f'MK{k}:'); k += 1
        else: out.append(ln)
    src = hdr.replace('.fill 832,', '.fill 1024,') + '\n' + '\n'.join(out) + '\nL_warm1:\nL_warm2:\nL_warm3:\n' + tail
    d = tempfile.mkdtemp()
    open(d + '/a.s', 'w').write(src)
    subprocess.run(['clang', '-x', 'assembler', '-target', 'amdgcn-amd-amdhsa', '-mcpu=gfx950', '-c', d + '/a.s', '-o', d + '/a.o'], check=True)
    t = subprocess.run(['llvm-objdump', '-t', d + '/a.o'], capture_output=True, text=True).stdout
    sy = {m.group(2): int(m.group(1), 16) for m in re.finditer(r'^([0-9a-f]{16}) .*\.text\s+[0-9a-f]+ (?:\.protected |\.hidden )?(\S+)$', t, re.M)}
    base = sy['standalone__moe_arch_mod__prompt_kernel']
    return {n: v - base for n, v in sy.items()}
offs = offsets(L)
marks = [(i, ln) for i, ln in enumerate(L) if ln.startswith(';;WARM')]
mo = [offs[f'MK{k}'] for k in range(len(marks))]
chosen = []
segs = [(0, offs['L_end'])]
shift = 0
for (a, b) in segs:
    pass
    covered = ((a + shift) // 64) * 64 + 1088
    while covered < b + shift + 8:
        cand = [k for k in range(len(marks)) if a <= mo[k] < b and mo[k] + shift + 4 < covered + 64 and (not chosen or k > chosen[-1])]
        assert cand, (covered, mo, segs)
        k = cand[-1]
        sp4 = marks[k][1].startswith(';;WARMSPOT')
        pos = mo[k] + shift + (4 if sp4 else 0)
        chosen.append(k); shift += 8 if sp4 else 4
        nc = (pos // 64) * 64 + 1088
        assert nc > covered, (nc, covered, mo)
        covered = nc
assert offs['L_seg1_end'] + 20 < 4096
names = {k: n + 1 for n, k in enumerate(chosen)}
nst = len(chosen)
outl = []; k = 0
for ln in L:
    if ln.startswith(';;WARM'):
        if k in names:
            n = names[k]
            tgt = f'L_warm{n+3}' if n + 3 <= nst else 'L_p'
            if ln.startswith(';;WARMSPOT'): outl.append(f'    s_branch L_skip{n}')
            outl.append(f'L_warm{n}:'); outl.append(f'    s_branch {tgt}')
            if ln.startswith(';;WARMSPOT'): outl.append(f'L_skip{n}:')
        k += 1
    elif ln == 'L_p:':
        for n in range(nst + 1, 4): outl.append(f'L_warm{n}:')
        outl.append(ln)
    else: outl.append(ln)
sys.stderr.write(f'chosen {[mo[k] for k in chosen]} ' + ' '.join(f'{n}={v}' for n, v in sorted(offs.items(), key=lambda x: x[1]) if n in ('L_w','L_w_poll','L_p','L_end','L_seg1_end','L_r2','L_spare','L_s_end','L_r_end')) + '\n')
print(hdr); print('\n'.join(outl)); print(tail)
```
